```python
import torch

def _softmax(x, axis=-1):
    return torch.softmax(x, dim=axis)

def _gelu(x):
    return torch.nn.functional.gelu(x, approximate='tanh')

def _silu(x):
    return torch.nn.functional.silu(x)

def _sigmoid(x):
    return torch.sigmoid(x)

def _layernorm(x, axis=-1, eps=1e-05):
    m = x.mean(dim=axis, keepdim=True)
    v = x.var(dim=axis, keepdim=True, unbiased=False)
    return (x - m) / torch.sqrt(v + eps)

def _scatter_add(tgt, idx, src, axis=0):
    return tgt.clone().index_add_(axis, idx, src)

def _segment_sum(src, seg, n):
    out = torch.zeros((n,) + src.shape[1:], dtype=src.dtype)
    return out.index_add_(0, seg, src)

def _pad(x, pw):
    flat = tuple((v for pair in reversed(pw) for v in pair))
    return torch.nn.functional.pad(x, flat)
kernel_name = 'adaLN_cond__gqa_block_cached__dense_activation_relu__decode'

def setup_inputs():

    _w = lambda a: (lambda t: t.to(torch.bfloat16) if t.is_floating_point() else t)(torch.as_tensor(a))

    def _A_setup():
        B, Sq, D = (1, 1, 512)
        Hq, Hkv, Sk, Dh = (32, 32, 8192, 128)
        assert Hq % Hkv == 0, (Hq, Hkv)
        return {'x': _w((lambda *s: torch.randn(*s, dtype=torch.bfloat16) * 0.1)(B, Sq, D)), 'k_cache': _w((lambda *s: torch.randn(*s, dtype=torch.bfloat16) * 0.8)(B, Hkv, Sk, Dh)), 'v_cache': _w((lambda *s: torch.randn(*s, dtype=torch.bfloat16) * 0.8)(B, Hkv, Sk, Dh)), 'wq': _w((lambda *s: torch.randn(*s, dtype=torch.bfloat16) * 0.8)(D, Hq * Dh) * D ** (-0.5)), 'wo': _w((lambda *s: torch.randn(*s, dtype=torch.bfloat16) * 0.8)(Hq * Dh, D) * (Hq * Dh) ** (-0.5))}
    _A_in = _A_setup()

    def _B_setup():
        B, S, D, Dff = (1, 1, 512, 1376)
        return {'x': _w((lambda *s: torch.randn(*s, dtype=torch.bfloat16) * 0.1)(B, S, D)), 'w1': _w((lambda *s: torch.randn(*s, dtype=torch.bfloat16) * 0.1)(D, Dff)), 'w2': _w((lambda *s: torch.randn(*s, dtype=torch.bfloat16) * 0.1)(Dff, D))}
    _B_in = _B_setup()
    return {'A_x': _A_in['x'], 'A_k_cache': _A_in['k_cache'], 'A_v_cache': _A_in['v_cache'], 'A_wq': _A_in['wq'], 'A_wo': _A_in['wo'], 'B_x': _B_in['x'], 'B_w1': _B_in['w1'], 'B_w2': _B_in['w2'], 'c': _w((lambda *s: torch.randn(*s, dtype=torch.bfloat16) * 0.4)(1, 512) * 8.0), 'w_mod': _w((lambda *s: torch.randn(*s, dtype=torch.bfloat16) * 0.4)(512, 6 * 512) * 512 ** (-0.5) * 8.0)}

def reference(A_x, A_k_cache, A_v_cache, A_wq, A_wo, B_x, B_w1, B_w2, c, w_mod):

    def _A_ref(x, k_cache, v_cache, wq, wo):
        B, Sq, D = x.shape
        Hq, Dh = (32, 128)
        Hkv = k_cache.shape[1]
        rep = Hq // Hkv
        q = (lambda x, *d: x.permute(*d))((x @ wq).reshape(B, Sq, Hq, Dh), 0, 2, 1, 3)
        k = (lambda x, n, axis: torch.repeat_interleave(x, n, dim=axis))(k_cache, rep, axis=1)
        v = (lambda x, n, axis: torch.repeat_interleave(x, n, dim=axis))(v_cache, rep, axis=1)
        scores = torch.einsum('bhqd,bhkd->bhqk', q, k) * Dh ** (-0.5)
        p = _softmax(scores, axis=-1)
        o = torch.einsum('bhqk,bhkd->bhqd', p, v)
        return (lambda x, *d: x.permute(*d))(o, 0, 2, 1, 3).reshape(B, Sq, Hq * Dh) @ wo

    def _B_ref(x, w1, w2):
        h = torch.einsum('bsd,df->bsf', x, w1)
        zero = torch.zeros_like(h)
        h = torch.maximum(h, zero)
        return torch.einsum('bsf,fd->bsd', h, w2)
    x = A_x
    mod = (_silu(c) @ w_mod).reshape(c.shape[0], 6, 1, -1)
    sa, ca, ga, sb, cb, gb = (mod[:, 0].clone(), mod[:, 1].clone(), mod[:, 2].clone(), mod[:, 3].clone(), mod[:, 4].clone(), mod[:, 5].clone())
    h = _layernorm(x, axis=-1) * (1 + ca) + sa
    x = x + ga * _A_ref(h, A_k_cache, A_v_cache, A_wq, A_wo)
    h = _layernorm(x, axis=-1) * (1 + cb) + sb
    x = x + gb * _B_ref(h, B_w1, B_w2)
    return x
```

```python
import re

TRANS = ("v_exp_f32", "v_log_f32", "v_rcp_f32", "v_rsq_f32", "v_sqrt_f32", "v_sin_f32", "v_cos_f32", "v_rcp_iflag_f32")

def _regs(tok):
    tok = tok.strip()
    tok = tok.lstrip('-').replace('abs(', '').replace(')', '').strip('|')
    m = re.fullmatch(r'([vsa])(\d+)', tok)
    if m: return {(m.group(1), int(m.group(2)))}
    m = re.fullmatch(r'([vsa])\[(\d+):(\d+)\]', tok)
    if m: return {(m.group(1), i) for i in range(int(m.group(2)), int(m.group(3)) + 1)}
    if tok in ('vcc', 'vcc_lo', 'vcc_hi'): return {('vcc', 0)}
    if tok in ('exec', 'exec_lo', 'exec_hi'): return {('exec', 0)}
    if tok == 'm0': return {('m0', 0)}
    return set()

class Ins:
    __slots__ = ('text', 'op', 'defs', 'uses', 'cls', 'passes', 'srcC', 'srcAB', 'dpp', 'states', 'storedata', 'sgpr_uses', 'lanesel')

def parse(text):
    I = Ins(); I.text = text
    t = text.split(';')[0].strip()
    parts = t.split(None, 1)
    op = parts[0]; I.op = op
    rest = parts[1] if len(parts) > 1 else ''
    ops = []; cur = ''; depth = 0
    for ch in rest:
        if ch in '[(': depth += 1
        if ch in '])': depth -= 1
        if ch == ',' and depth == 0: ops.append(cur.strip()); cur = ''
        else: cur += ch
    if cur.strip(): ops.append(cur.strip())
    mods = ''
    if ops:
        lp = ops[-1].split(None, 1)
        ops[-1] = lp[0]
        if len(lp) > 1: mods = lp[1]
    I.defs = set(); I.uses = set(); I.passes = 0; I.srcC = set(); I.srcAB = set(); I.storedata = set(); I.lanesel = set()
    I.dpp = ('_dpp' in op) or ('row_' in mods) or ('quad_perm' in mods) or ('wave_' in mods)
    I.states = 1
    R = [_regs(o) for o in ops]
    U = lambda idx: set().union(*[R[i] for i in idx if i < len(R)]) if idx else set()
    n = len(ops)
    if op == 's_nop':
        I.cls = 'nop'; I.states = int(ops[0], 0) + 1
    elif op.startswith('v_mfma'):
        I.cls = 'mfma'; I.defs = R[0]; I.srcAB = R[1] | R[2]; I.srcC = R[3]; I.uses = I.srcAB | I.srcC
        I.passes = 8 if '32x32' in op else 4
    elif op.startswith('v_cmp'):
        I.cls = 'valu'; I.defs = R[0]; I.uses = U(range(1, n))
    elif op.startswith('v_readlane') or op.startswith('v_readfirstlane'):
        I.cls = 'valu'; I.defs = R[0]; I.uses = U(range(1, n))
        if op.startswith('v_readlane') and n > 2: I.lanesel = R[2]
    elif op.startswith('v_writelane'):
        I.cls = 'valu'; I.defs = R[0]; I.uses = U(range(0, n)); I.lanesel = R[2]
    elif op.startswith('v_permlane'):
        I.cls = 'valu'; I.defs = R[0] | R[1]; I.uses = R[0] | R[1]
    elif op.startswith('v_add_co') or op.startswith('v_sub_co') or op.startswith('v_addc_co') or op.startswith('v_div_scale'):
        I.cls = 'valu'; I.defs = R[0] | R[1]; I.uses = U(range(2, n))
    elif op.startswith('v_'):
        I.cls = 'valu'; I.defs = R[0]; I.uses = U(range(1, n))
        if op.startswith(('v_fmac', 'v_mac', 'v_dot2c', 'v_dot4c', 'v_pk_fmac')): I.uses |= R[0]
        if I.dpp: I.uses |= R[0]
        if op.startswith('v_cndmask') and n == 3: I.uses |= {('vcc', 0)}
        if op.endswith('_d16_hi') or 'cvt_pk' in op and False: pass
    elif op.startswith('ds_'):
        I.cls = 'ds'
        if op.startswith(('ds_write', 'ds_add', 'ds_max', 'ds_min', 'ds_or')) and '_rtn' not in op: I.uses = U(range(n))
        else: I.defs = R[0]; I.uses = U(range(1, n))
    elif op.startswith(('buffer_', 'global_')):
        I.cls = 'vmem'
        if op.startswith(('buffer_wbl2', 'buffer_inv')): pass
        elif 'store' in op or ('atomic' in op and 'sc0' not in mods):
            I.uses = U(range(n))
            if 'x4' in op or 'x3' in op:
                I.storedata = R[0] if op.startswith('buffer_') else R[1]
        elif ' lds' in (' ' + mods) or '_lds_' in op:
            I.uses = U(range(n)) | {('m0', 0)}
        else:
            I.defs = R[0]; I.uses = U(range(1, n))
    elif op.startswith('s_load') or op.startswith('s_buffer_load') or op.startswith('s_mem'):
        I.cls = 'smem'; I.defs = R[0]; I.uses = U(range(1, n))
    elif op.startswith('s_cmp') or op.startswith('s_bitcmp'):
        I.cls = 'salu'; I.uses = U(range(n))
    elif op.startswith(('s_cbranch', 's_branch', 's_endpgm', 's_waitcnt', 's_barrier', 's_sleep', 's_setprio')):
        I.cls = 'sctl'
    elif op.startswith('s_'):
        I.cls = 'salu'; I.defs = R[0]; I.uses = U(range(1, n))
        if 'saveexec' in op: I.defs = I.defs | {('exec', 0)}; I.uses |= {('exec', 0)}
    else:
        raise ValueError('unknown instr: ' + text)
    return I

def need(prev, cur):
    w = 0
    pv = {r for r in prev.defs if r[0] in 'va' and r[0] != 'vcc'}
    ps = {r for r in prev.defs if r[0] == 's' or r[0] == 'vcc'}
    cur_v_uses = {r for r in cur.uses if r[0] in ('v', 'a')}
    cur_v_defs = {r for r in cur.defs if r[0] in ('v', 'a')}
    if prev.cls == 'valu':
        isdot = prev.op.startswith('v_dot')
        if pv & cur_v_uses:
            if cur.cls == 'valu' and cur.dpp: w = max(w, 2)
            if cur.op.startswith(('v_readlane', 'v_readfirstlane')): w = max(w, 1)
            if cur.op.startswith('v_permlane'): w = max(w, 2)
            if cur.cls == 'mfma': w = max(w, 2)
            if prev.op.startswith(TRANS) and cur.cls in ('valu', 'mfma'): w = max(w, 1)
        if isdot and (pv & (cur_v_uses | cur_v_defs)):
            same = cur.op == prev.op
            if same:
                ab = set()
                t = cur.text.split(';')[0].split(None, 1)[1].split(',')
                ab = _regs(t[1]) | _regs(t[2].split()[0])
                if pv & ab: w = max(w, 3)
            else:
                w = max(w, 3)
        if ps:
            su = {r for r in cur.uses if r[0] == 's' or r[0] == 'vcc'}
            if ps & su:
                if cur.cls == 'valu': w = max(w, 2)
                if cur.cls == 'vmem': w = max(w, 5)
            if ps & cur.lanesel: w = max(w, 4)
        if ('exec', 0) in prev.defs:
            raise ValueError('VALU exec write not supported')
    if prev.cls == 'mfma':
        P = prev.passes
        d = prev.defs
        if cur.cls == 'mfma':
            if d & cur.srcAB: w = max(w, {4: 8, 8: 12}[P])
            if d & cur.srcC:
                if not (cur.srcC == d and cur.passes == P): w = max(w, {4: 6, 8: 10}[P])
            if d & cur.defs and not (cur.defs == d): w = max(w, {4: 8, 8: 12}[P])
        elif cur.cls in ('valu', 'vmem', 'ds'):
            if d & (cur_v_uses | cur_v_defs): w = max(w, {4: 8, 8: 12}[P])
        if cur.cls == 'valu' and (prev.srcC & cur_v_defs): w = max(w, {4: 3, 8: 7}[P])
    if prev.cls == 'vmem' and prev.storedata:
        if prev.storedata & cur_v_defs:
            w = max(w, 2 if cur.cls == 'valu' else 1)
    if prev.cls == 'salu' and ('m0', 0) in prev.defs and ('m0', 0) in cur.uses and cur.cls == 'vmem':
        w = max(w, 1)
    return w

class Asm:
    def __init__(self):
        self.lines = []
        self.hist = []
        self.pending = {}
        self.labels = {}
        self.ins = []
        self.nops = 0
    def raw(self, s): self.lines.append(s)
    def c(self, s): self.lines.append('    ; ' + s)
    def _age(self, n):
        self.hist = [(i, a + n) for i, a in self.hist if a + n < 24]
    def _push(self, I):
        self.lines.append('    ' + I.text); self.ins.append(I)
        self._age(I.states)
        self.hist.append((I, 0))
    def __call__(self, text):
        for t in text.strip().split('\n'):
            t = t.strip()
            if not t or t.startswith(';'): continue
            self.one(t)
    def one(self, text):
        I = parse(text)
        w = 0
        for p, a in self.hist: w = max(w, need(p, I) - a)
        if w > 0:
            while w > 0:
                k = min(w, 16)
                self._push(parse('s_nop %d' % (k - 1))); self.nops += k; w -= k
        if I.op.startswith(('s_cbranch', 's_branch')):
            lab = text.split()[1]
            snap = [(i, a + 1) for i, a in self.hist]
            if lab in self.labels:
                k = self.labels[lab]; age = 0
                for J in self.ins[k:k + 16]:
                    for p, a in snap:
                        if need(p, J) > a + age:
                            raise ValueError('hazard across backward branch to %s: %s -> %s' % (lab, p.text, J.text))
                    age += J.states
            else:
                self.pending.setdefault(lab, []).append(snap)
        self._push(I)
        if I.op in ('s_branch', 's_endpgm'): self.hist = []
    def label(self, name):
        self.lines.append(name + ':')
        self.labels[name] = len(self.ins)
        for snap in self.pending.pop(name, []):
            self.hist = self.hist + snap
    def text(self): return '\n'.join(self.lines) + '\n'
```

```python
import sys
from asmlib import Asm

NAME = "adaLN_cond__gqa_block_cached__dense_activation_relu__decode_kernel"

A1_OFF = 0x1000; A2_OFF = 0x9000; ML_OFF = 0xD000; Y_OFF = 0x10000
B_OFF = 0x20000; O_OFF = 0x60000; F_OFF = 0xA0000; STAMP_OFF = 0x100000
F_TILE = 48 * 128
G_A2 = 64; G_WO = 96; G_FFN = 160; G_FFN_END = 203
QBUF = 0
MBUF = 256
LBUF = 288
STAT = 320
ABUF = 512
OBUF = 4096
YP = 8192
FP = 9216
XP = 10240; GA = XP + 2048; SB = GA + 2048; CB1 = SB + 2048; GBN = CB1 + 2048; X1N = GBN + 2048
STG = 24576
LDS_BYTES = STG + 65536
S_X, S_K, S_V, S_WQ, S_WO, S_W1, S_W2 = 8, 10, 12, 14, 16, 20, 22
S_C, S_WM, S_OUT, S_DBG, S_WS = 24, 26, 28, 30, 32
S_E = 34; T0, T1 = "s36", "s37"; SPIN = "s38"
SRD_WS = "s[40:43]"; SRD_A = "s[44:47]"; SRD_B = "s[48:51]"
M_B1 = "s[64:65]"; M_B0 = "s[66:67]"; M_G1 = "s[68:69]"; M_G2 = "s[70:71]"; M_G3 = "s[72:73]"
S_HI = "s74"
STAMP0 = 76
RING = 40
LOG2E = "0x3fb8aa3b"; SCALE = "0x3db504f3"

class Gen:
    def __init__(self, W=3, stamps=False, hintA=True, hintB=True, kvflag="nt", prefetch=True, wflag="nt", dbg=False, exp="", slA=4, slB=2):
        self.a = Asm(); self.W = W; self.stamps = stamps; self.hintA = hintA; self.hintB = hintB
        self.kv = kvflag; self.prefetch = prefetch; self.wflag = wflag; self.uid = 0; self.dbg = dbg; self.exp = exp.split(','); self.slA = slA; self.slB = slB
    def lab(self, p):
        self.uid += 1; return f"L_{p}_{self.uid}"
    def stamp(self, i):
        if self.stamps: self.a(f"s_memrealtime s[{STAMP0+2*i}:{STAMP0+2*i+1}]")
    def finish(self):
        a = self.a
        if self.stamps:
            a("s_waitcnt lgkmcnt(0)\ns_mov_b64 exec, -1")
            a("v_mov_b32 v2, 0")
            for i in range(24): a(f"v_writelane_b32 v2, s{STAMP0+i}, {i}")
            a(f"s_mul_i32 s52, s2, 12\ns_add_u32 s52, s52, s3\ns_lshl_b32 s52, s52, 7\ns_add_u32 s52, s52, {STAMP_OFF}")
            a("v_lshlrev_b32 v3, 2, v0\ns_mov_b32 exec_hi, 0")
            a(f"buffer_store_dword v2, v3, {SRD_WS}, s52 offen")
        a("s_endpgm")
    def rbf(self, dst, src):
        self.a(f"v_cvt_pk_bf16_f32 {dst}, {src}, {src}\nv_and_b32 {dst}, {S_HI}, {dst}")
    def rbf2(self, d0, d1, s0, s1, tmp):
        self.a(f"v_cvt_pk_bf16_f32 {tmp}, {s0}, {s1}\nv_lshlrev_b32 {d0}, 16, {tmp}\nv_and_b32 {d1}, {S_HI}, {tmp}")
    def dpp(self, op, d, s0, s1, ctl, rm="0xf", bm="0xf"):
        self.a(f"{op}_dpp {d}, {s0}, {s1} {ctl} row_mask:{rm} bank_mask:{bm}")
    def row_reduce(self, op, v, steps=(8, 4, 2, 1)):
        for k in steps: self.dpp(op, v, v, v, f"row_ror:{k}")
    def wave_reduce_to_s(self, op, v, s):
        self.row_reduce(op, v)
        self.dpp(op, v, v, v, "row_bcast:15", rm="0xa")
        self.dpp(op, v, v, v, "row_bcast:31", rm="0xc")
        self.a(f"v_readlane_b32 {s}, {v}, 63")
    def xor32_add(self, v, t):
        self.a(f"v_mov_b32 {t}, {v}\nv_permlane32_swap_b32 {v}, {t}\nv_add_f32 {v}, {v}, {t}")
    def xor16_add(self, v, t):
        self.a(f"v_mov_b32 {t}, {v}\nv_permlane16_swap_b32 {v}, {t}\nv_add_f32 {v}, {v}, {t}")
    def tagcheck(self, regs, acc, first=True):
        a = self.a
        for r in regs:
            if first:
                a(f"v_xor_b32 {acc}, {T0}, v{r+2}"); first = False
            else:
                a(f"v_bitop3_b32 {acc}, {acc}, {T0}, v{r+2} bitop3:0xf6")
            a(f"v_bitop3_b32 {acc}, {acc}, {T1}, v{r+3} bitop3:0xf6")
    def poll(self, issue, regs, acc="v2", sleep=0, pre=False):
        a = self.a
        L = self.lab("poll"); D = self.lab("pok")
        a.label(L)
        issue()
        a("s_waitcnt vmcnt(0)")
        self.tagcheck(regs, acc)
        a(f"v_cmp_ne_u32 vcc, 0, {acc}")
        if "nopoll" in self.exp and pre: a(f"s_branch {D}")
        a(f"s_cbranch_vccz {D}")
        a(f"s_cmp_eq_u32 {SPIN}, 0")
        a(f"s_cbranch_scc1 {D}")
        a(f"s_sub_u32 {SPIN}, {SPIN}, 1")
        if sleep: a(f"s_sleep {sleep}")
        a(f"s_branch {L}")
        a.label(D)
    def srd(self, srd, base, size, add=None):
        n = int(srd[2:srd.index(':')])
        if add is None: self.a(f"s_mov_b32 s{n}, s{base}\ns_mov_b32 s{n+1}, s{base+1}")
        else: self.a(f"s_add_u32 s{n}, s{base}, {add}\ns_addc_u32 s{n+1}, s{base+1}, 0")
        self.a(f"s_mov_b32 s{n+2}, {size}\ns_mov_b32 s{n+3}, 0x20000")
    def consts(self):
        a = self.a
        a(f"s_mov_b32 {S_HI}, 0xffff0000\ns_mov_b32 {SPIN}, 0x40000")
        a("s_mov_b32 s64, 0xcccccccc\ns_mov_b32 s65, 0xcccccccc\ns_mov_b32 s66, 0xaaaaaaaa\ns_mov_b32 s67, 0xaaaaaaaa")
        a("s_mov_b32 s68, 0xffff0000\ns_mov_b32 s69, 0\ns_mov_b32 s70, 0\ns_mov_b32 s71, 0xffff\ns_mov_b32 s72, 0\ns_mov_b32 s73, 0xffff0000")
    def epoch(self):
        self.a(f"s_add_u32 s34, s34, 1\ns_addc_u32 s35, s35, 0\ns_xor_b32 {T0}, s34, 0x5bd1e995\ns_xor_b32 {T1}, s35, 0x9e3779b9")
    def dma_tile(self, srd, voff, n, step, lds_base, soff0="0"):
        a = self.a
        a(f"s_mov_b32 s53, {soff0}\ns_mov_b32 m0, {lds_base}")
        for i in range(n):
            a(f"buffer_load_dwordx4 {voff}, {srd}, s53 offen {self.wflag} lds")
            if i < n - 1: a(f"s_add_u32 s53, s53, {step}\ns_add_u32 m0, m0, 1024")
    def tr_addr(self, dst, rowbytes, t0, t1):
        sh = rowbytes.bit_length() - 1
        self.a(f"""v_lshrrev_b32 {t0}, 4, v0
v_bfe_u32 {t1}, v0, 2, 2
v_lshl_add_u32 {t0}, {t0}, 3, {t1}
v_lshlrev_b32 {t0}, {sh}, {t0}
v_and_b32 {t1}, 3, v0
v_lshl_add_u32 {dst}, {t1}, 3, {t0}""")
    def tr_frags(self, base_reg, vaddr, lds_base, rowbytes, nsteps, ntiles):
        for s in range(nsteps):
            for t in range(ntiles):
                r = base_reg + 4 * (s * ntiles + t)
                for h in range(2):
                    off = lds_base + (32 * s + 4 * h) * rowbytes + t * 32
                    self.a(f"ds_read_b64_tr_b16 v[{r+2*h}:{r+2*h+1}], {vaddr} offset:{off}")
    def mfma_tiles(self, dbase, abase, bbase, nsteps, ntiles, zero_first=True):
        for s in range(nsteps):
            for t in range(ntiles):
                d = f"v[{dbase+4*t}:{dbase+4*t+3}]"
                c = "0" if (s == 0 and zero_first) else d
                b = bbase + 4 * (s * ntiles + t)
                self.a(f"v_mfma_f32_16x16x32_bf16 {d}, v[{abase+4*s}:{abase+4*s+3}], v[{b}:{b+3}], {c}")

    def build(self):
        a = self.a; W = self.W
        a.raw(f"; @launch grid=(256,1,1) block=(768,1,1) lds={LDS_BYTES}")
        a.raw('.amdgcn_target "amdgcn-amd-amdhsa--gfx950"')
        a.raw(".text"); a.raw(f".globl {NAME}"); a.raw(".p2align 8"); a.raw(f".type {NAME},@function"); a.raw(f"{NAME}:")
        a("s_cmp_ge_u32 s2, 256\ns_cbranch_scc1 L_exit")
        self.stamp(0)
        a("""s_load_dwordx16 s[8:23], s[0:1], 0
s_load_dwordx8 s[24:31], s[0:1], 64
s_load_dwordx2 s[32:33], s[0:1], 96
v_lshrrev_b32 v1, 6, v0
v_and_b32 v0, 63, v0
v_readfirstlane_b32 s3, v1
s_cmp_ge_u32 s3, 8
s_cbranch_scc1 L_ctl""")
        self.stream_wave()
        a.label("L_ctl")
        self.ctl_waves()
        a.label("L_exit")
        a("s_endpgm")
        a.raw("L_code_end:")
        a.raw('.section .rodata,"a"'); a.raw(".p2align 6"); a.raw(f".amdhsa_kernel {NAME}")
        for l in ["  .amdhsa_next_free_vgpr 168", "  .amdhsa_next_free_sgpr 102", "  .amdhsa_accum_offset 168",
                  "  .amdhsa_group_segment_fixed_size 0", "  .amdhsa_kernarg_size 104", "  .amdhsa_user_sgpr_count 2",
                  "  .amdhsa_user_sgpr_kernarg_segment_ptr 1", "  .amdhsa_system_sgpr_workgroup_id_x 1", ".end_amdhsa_kernel"]:
            a.raw(l)
        return a.text()

    def stream_wave(self):
        a = self.a; W = self.W; kv = self.kv
        ring = lambda j: RING + 4 * j
        a("""s_lshl_b32 s52, s2, 3
s_add_u32 s52, s52, s3
s_lshl_b32 s52, s52, 15
v_lshlrev_b32 v1, 4, v0
s_lshl_b32 s54, s3, 2
s_add_u32 s54, s54, s2
s_and_b32 s54, s54, 31
s_lshl_b32 s54, s54, 10
s_waitcnt lgkmcnt(0)""")
        self.srd(SRD_A, S_K, 32768, "s52")
        def load(j, srd):
            r = ring(j)
            a(f"buffer_load_dwordx4 v[{r}:{r+3}], v1, {srd}, s54 offen {kv}")
            a("s_add_u32 s54, s54, 1024\ns_and_b32 s54, s54, 0x7fff")
        for j in range(W): load(j, SRD_A)
        a(f"s_load_dwordx2 s[34:35], s[{S_WS}:{S_WS+1}], 0")
        self.srd(SRD_B, S_V, 32768, "s52")
        self.srd(SRD_WS, S_WS, 0x200000 if self.stamps else 0x100000)
        self.consts()
        for j in range(W, 32):
            a(f"s_waitcnt vmcnt({W-1})")
            load(j, SRD_A)
            if j == W + 1:
                a("s_waitcnt lgkmcnt(0)"); self.epoch()
        self.stamp(1)
        a("v_and_b32 v2, 15, v0\nv_lshlrev_b32 v2, 4, v2")
        a("s_barrier")
        self.stamp(2)
        a(f"ds_read_b128 v[4:7], v2 offset:{QBUF}\ns_waitcnt lgkmcnt(0)")
        t = [10, 11, 12, 13]; ra, rb = 14, 15; u = [16, 17, 18, 19]; x, y = 20, 21; S = [8, 9]
        def group(k):
            js = [4 * k + b for b in range(4)]
            for e in range(4):
                for b in range(4):
                    c = "0" if e == 0 else f"v{t[b]}"
                    a(f"v_dot2_f32_bf16 v{t[b]}, v{ring(js[b])+e}, v{4+e}, {c}")
            self.dpp("v_add_f32", f"v{ra}", f"v{t[0]}", f"v{t[0]}", "row_ror:8", bm="0x3")
            self.dpp("v_add_f32", f"v{rb}", f"v{t[2]}", f"v{t[2]}", "row_ror:8", bm="0x3")
            self.dpp("v_add_f32", f"v{ra}", f"v{t[1]}", f"v{t[1]}", "row_ror:8", bm="0xc")
            self.dpp("v_add_f32", f"v{rb}", f"v{t[3]}", f"v{t[3]}", "row_ror:8", bm="0xc")
            uk = u[k & 3]
            self.dpp("v_add_f32", f"v{uk}", f"v{ra}", f"v{ra}", "row_half_mirror", bm="0x5")
            self.dpp("v_add_f32", f"v{uk}", f"v{rb}", f"v{rb}", "row_half_mirror", bm="0xa")
            if (k & 3) == 3:
                def merge(dst, p, q, ctl, mask):
                    self.dpp("v_add_f32", f"v{x}", f"v{p}", f"v{p}", ctl)
                    self.dpp("v_add_f32", f"v{y}", f"v{q}", f"v{q}", ctl)
                    a(f"v_cndmask_b32 v{dst}, v{x}, v{y}, {mask}")
                merge(u[0], u[0], u[1], "quad_perm:[2,3,0,1]", M_B1)
                merge(u[2], u[2], u[3], "quad_perm:[2,3,0,1]", M_B1)
                merge(S[k >> 2], u[0], u[2], "quad_perm:[1,0,3,2]", M_B0)
        safe = (32 - W) // 4
        g = 0
        for i in range(W):
            upto = min(safe, max(g + 1, (i + 1) * safe // W)) if i < W - 1 else safe
            if i == 0: upto = min(safe, 1)
            while g < upto: group(g); g += 1
            a(f"s_waitcnt vmcnt({W-1})")
            load(i, SRD_B)
        while g < 8: group(g); g += 1
        self.stamp(3)
        self.rbf2("v8", "v9", "v8", "v9", "v10")
        a(f"v_mul_f32 v8, {SCALE}, v8\nv_mul_f32 v9, {SCALE}, v9")
        self.rbf2("v8", "v9", "v8", "v9", "v10")
        a("v_max_f32 v10, v8, v9")
        self.wave_reduce_to_s("v_max_f32", "v10", "s55")
        a(f"""v_subrev_f32 v8, s55, v8
v_subrev_f32 v9, s55, v9
v_mul_f32 v8, {LOG2E}, v8
v_mul_f32 v9, {LOG2E}, v9
v_exp_f32 v8, v8
v_exp_f32 v9, v9
v_mov_b32 v11, s55
s_lshl_b32 s56, s3, 2
v_mov_b32 v12, s56
s_mov_b64 exec, 1
ds_write_b32 v12, v11 offset:{MBUF}
s_mov_b64 exec, -1
v_add_f32 v10, v8, v9""")
        self.wave_reduce_to_s("v_add_f32", "v10", "s56")
        acc = list(range(10, 18)); un = list(range(18, 26)); pb = 26
        for e in acc: a(f"v_mov_b32 v{e}, 0")
        def lane_of(j):
            jj = j & 15; ga_, b = jj >> 2, jj & 3
            return ((b & 1) << 3) | ((b >> 1) << 2) | ((ga_ & 1) << 1) | (ga_ >> 1)
        for j in range(32):
            a(f"s_waitcnt vmcnt({min(W-1, 31-j)})")
            if j + W < 32: load(j + W, SRD_B)
            if j == 20:
                L = self.lab("mx")
                a("v_mov_b32 v27, 0")
                a.label(L)
                a(f"""ds_read_b128 v[28:31], v27 offset:{MBUF}
ds_read_b128 v[32:35], v27 offset:{MBUF+16}
s_waitcnt lgkmcnt(0)
v_max3_u32 v36, v28, v29, v30
v_max3_u32 v36, v36, v31, v32
v_max3_u32 v36, v36, v33, v34
v_max_u32 v36, v36, v35
v_cmp_eq_u32 vcc, -1, v36
s_cbranch_vccz {L}_ok
s_cmp_eq_u32 {SPIN}, 0
s_cbranch_scc1 {L}_ok
s_sub_u32 {SPIN}, {SPIN}, 1
s_branch {L}""")
                a.label(L + "_ok")
                a(f"""v_max3_f32 v36, v28, v29, v30
v_max3_f32 v36, v36, v31, v32
v_max3_f32 v36, v36, v33, v34
v_max_f32 v36, v36, v35
v_sub_f32 v37, s55, v36
v_mul_f32 v37, {LOG2E}, v37
v_exp_f32 v37, v37""")
            r = ring(j)
            a(f"v_mov_b32_dpp v{pb}, v{8 + (j >> 4)} row_newbcast:{lane_of(j)} row_mask:0xf bank_mask:0xf")
            for e in range(4):
                a(f"v_lshlrev_b32 v{un[2*e]}, 16, v{r+e}\nv_and_b32 v{un[2*e+1]}, {S_HI}, v{r+e}")
            for e in range(8):
                a(f"v_fmac_f32 v{acc[e]}, v{pb}, v{un[e]}")
        self.stamp(4)
        for e in range(4): a(f"v_permlane32_swap_b32 v{acc[e]}, v{acc[e+4]}")
        for e in range(4): a(f"v_add_f32 v{acc[e]}, v{acc[e]}, v{acc[e+4]}")
        for e in range(2): a(f"v_permlane16_swap_b32 v{acc[e]}, v{acc[e+2]}")
        for e in range(2): a(f"v_add_f32 v{acc[e]}, v{acc[e]}, v{acc[e+2]}")
        a(f"""v_mul_f32 v10, v10, v37
v_mul_f32 v11, v11, v37
v_mul_f32 v12, s56, v37
v_and_b32 v13, 15, v0
v_lshrrev_b32 v14, 4, v0
v_lshl_add_u32 v13, v13, 2, v14
v_lshlrev_b32 v13, 3, v13
s_lshl_b32 s57, s3, 9
v_add_u32 v13, s57, v13
s_lshl_b32 s57, s3, 2
v_mov_b32 v14, s57
ds_write_b64 v13, v[10:11] offset:{OBUF}
ds_write_b32 v14, v12 offset:{LBUF}
s_waitcnt lgkmcnt(0)
s_barrier""")
        self.stamp(5)
        a("s_cmp_lg_u32 s3, 0\ns_cbranch_scc1 L_s_pub_done")
        a(f"v_lshlrev_b32 v13, 3, v0")
        for w in range(8): a(f"ds_read_b64 v[{40+2*w}:{41+2*w}], v13 offset:{OBUF+512*w}")
        a(f"ds_read_b128 v[56:59], v27 offset:{LBUF}\nds_read_b128 v[60:63], v27 offset:{LBUF+16}")
        a(f"s_lshl_b32 s57, s2, 10\ns_add_u32 s57, s57, {O_OFF}\ns_lshl_b32 s58, s2, 4\ns_add_u32 s58, s58, {ML_OFF}")
        a(f"v_mov_b32 v66, {T0}\nv_mov_b32 v67, {T1}\nv_mov_b32 v70, {T0}\nv_mov_b32 v71, {T1}\nv_mov_b32 v68, v36")
        a("s_waitcnt lgkmcnt(0)")
        a("""v_add_f32 v64, v40, v42
v_add_f32 v65, v41, v43
v_add_f32 v72, v44, v46
v_add_f32 v73, v45, v47
v_add_f32 v74, v48, v50
v_add_f32 v75, v49, v51
v_add_f32 v76, v52, v54
v_add_f32 v77, v53, v55
v_add_f32 v64, v64, v72
v_add_f32 v65, v65, v73
v_add_f32 v74, v74, v76
v_add_f32 v75, v75, v77
v_add_f32 v64, v64, v74
v_add_f32 v65, v65, v75""")
        a(f"buffer_store_dwordx4 v[64:67], v1, {SRD_WS}, s57 offen sc1")
        a("""v_add_f32 v56, v56, v57
v_add_f32 v58, v58, v59
v_add_f32 v60, v60, v61
v_add_f32 v62, v62, v63
v_add_f32 v56, v56, v58
v_add_f32 v60, v60, v62
v_add_f32 v69, v56, v60
s_mov_b64 exec, 1""")
        a(f"buffer_store_dwordx4 v[68:71], v27, {SRD_WS}, s58 offen sc1\ns_mov_b64 exec, -1")
        self.stamp(6)
        a.label("L_s_pub_done")
        a(f"s_cmp_lt_u32 s2, {G_FFN}\ns_cbranch_scc1 L_s_exit\ns_cmp_ge_u32 s2, {G_FFN_END}\ns_cbranch_scc1 L_s_exit")
        self.ffn_wave()
        a.label("L_s_exit")
        self.finish()

    def ffn_wave(self):
        a = self.a
        FST = "s59"
        a(f"s_sub_u32 s60, s2, {G_FFN}")
        a(f"s_lshl_b32 s59, s3, 13\ns_add_u32 s59, s59, {STG}")
        self.srd(SRD_A, S_W1, 512 * 2752)
        self.srd(SRD_B, S_W2, 1376 * 1024)
        a("""v_lshrrev_b32 v2, 2, v0
s_lshl_b32 s61, s3, 6
v_add_u32 v2, s61, v2
s_movk_i32 s61, 2752
v_mul_lo_u32 v2, v2, s61
v_and_b32 v3, 3, v0
v_lshl_add_u32 v2, v3, 4, v2
s_lshl_b32 s61, s60, 6
v_add_u32 v2, s61, v2""")
        a(f"s_mov_b32 s53, 0\ns_mov_b32 m0, s59")
        for i in range(4):
            a(f"buffer_load_dwordx4 v2, {SRD_A}, s53 offen {self.wflag} lds")
            a(f"s_add_u32 s53, s53, {16*2752}\ns_add_u32 m0, m0, 1024")
        a("""v_lshrrev_b32 v3, 3, v0
s_lshl_b32 s61, s60, 5
v_add_u32 v3, s61, v3
v_lshlrev_b32 v3, 10, v3
v_and_b32 v4, 7, v0
v_lshl_add_u32 v3, v4, 4, v3
s_lshl_b32 s61, s3, 7
v_add_u32 v3, s61, v3
s_mov_b32 s53, 0""")
        for i in range(4):
            a(f"buffer_load_dwordx4 v3, {SRD_B}, s53 offen {self.wflag} lds")
            if i < 3: a(f"s_add_u32 s53, s53, 8192\ns_add_u32 m0, m0, 1024")
        a(f"""v_and_b32 v4, 31, v0
v_lshlrev_b32 v5, 3, v4
s_lshl_b32 s61, s3, 8
v_add_u32 v5, s61, v5
ds_read_b64 v[40:41], v5 offset:{XP}
ds_read_b64 v[42:43], v5 offset:{GA}
ds_read_b64 v[44:45], v5 offset:{SB}
ds_read_b64 v[46:47], v5 offset:{CB1}""")
        self.tr_addr("v6", 64, "v8", "v9"); a("v_add_u32 v6, s59, v6")
        self.tr_addr("v7", 128, "v8", "v9"); a("v_add_u32 v7, s59, v7")
        a(f"""v_lshrrev_b32 v8, 5, v0
v_lshlrev_b32 v8, 12, v8
v_lshl_add_u32 v8, v4, 4, v8
s_lshl_b32 s61, s3, 9
v_add_u32 v8, s61, v8
s_waitcnt vmcnt(0)""")
        self.stamp(7)
        B1f, B2f = 64, 80
        self.tr_frags(B1f, "v6", 0, 64, 2, 2)
        for t in range(4):
            for h in range(2):
                a(f"ds_read_b64_tr_b16 v[{B2f+4*t+2*h}:{B2f+4*t+2*h+1}], v7 offset:{4096 + 4*h*128 + t*32}")
        a("s_waitcnt lgkmcnt(0)")
        G = [96, 100, 104, 108]
        def issue():
            for i in range(4):
                a(f"s_mov_b32 s53, {Y_OFF + i*8192}\nbuffer_load_dwordx4 v[{G[i]}:{G[i]+3}], v8, {SRD_WS}, s53 offen sc1")
        self.poll(issue, G)
        self.stamp(8)
        a("""v_add_f32 v10, v96, v100
v_add_f32 v11, v97, v101
v_add_f32 v12, v104, v108
v_add_f32 v13, v105, v109
v_add_f32 v10, v10, v12
v_add_f32 v11, v11, v13""")
        a("v_mov_b32 v12, v10\nv_mov_b32 v13, v11\nv_permlane32_swap_b32 v10, v12\nv_permlane32_swap_b32 v11, v13\nv_add_f32 v10, v10, v12\nv_add_f32 v11, v11, v13")
        self.rbf2("v10", "v11", "v10", "v11", "v14")
        a("v_mul_f32 v10, v42, v10\nv_mul_f32 v11, v43, v11")
        self.rbf2("v10", "v11", "v10", "v11", "v14")
        a("v_add_f32 v10, v40, v10\nv_add_f32 v11, v41, v11")
        self.rbf2("v10", "v11", "v10", "v11", "v14")
        a("v_add_f32 v12, v10, v11")
        self.row_reduce("v_add_f32", "v12"); self.xor16_add("v12", "v13")
        a("v_mul_f32 v12, 0x3c800000, v12")
        a("v_sub_f32 v13, v10, v12\nv_sub_f32 v14, v11, v12\nv_mul_f32 v13, v13, v13\nv_fmac_f32 v13, v14, v14")
        self.row_reduce("v_add_f32", "v13"); self.xor16_add("v13", "v14")
        a(f"""v_bfe_u32 v14, v0, 4, 1
v_lshlrev_b32 v14, 5, v14
v_and_b32 v15, 15, v0
v_add_u32 v14, v14, v15
s_lshl_b32 s61, s3, 6
v_add_u32 v16, s61, v14
v_lshlrev_b32 v16, 2, v16
s_lshl_b32 s61, s3, 3
v_mov_b32 v17, s61
ds_write_b32 v16, v10 offset:{X1N}
ds_write_b32 v16, v11 offset:{X1N+64}
ds_write_b64 v17, v[12:13] offset:{STAT}
s_waitcnt lgkmcnt(0)
s_barrier""")
        a(f"""v_and_b32 v15, 7, v0
v_lshlrev_b32 v15, 3, v15
ds_read_b64 v[18:19], v15 offset:{STAT}
s_waitcnt lgkmcnt(0)
v_mov_b32 v20, v18""")
        for ctl in ("row_half_mirror", "quad_perm:[2,3,0,1]", "quad_perm:[1,0,3,2]"): self.dpp("v_add_f32", "v20", "v20", "v20", ctl)
        a("""v_mul_f32 v20, 0x3e000000, v20
v_sub_f32 v21, v18, v20
v_mul_f32 v21, v21, v21
v_fmac_f32 v19, 0x42800000, v21""")
        for ctl in ("row_half_mirror", "quad_perm:[2,3,0,1]", "quad_perm:[1,0,3,2]"): self.dpp("v_add_f32", "v19", "v19", "v19", ctl)
        a("v_mul_f32 v19, 0x3b000000, v19")
        self.layernorm_tail("v20", "v19", ["v10", "v11"], ["v22", "v23"], "v21", "v24", "v25")
        a("v_mul_f32 v22, v22, v46\nv_mul_f32 v23, v23, v47")
        self.rbf2("v22", "v23", "v22", "v23", "v24")
        a("v_add_f32 v22, v22, v44\nv_add_f32 v23, v23, v45\nv_cvt_pk_bf16_f32 v24, v22, v23")
        a(f"""s_lshl_b32 s61, s3, 8
s_add_u32 s61, s61, {ABUF}
v_lshl_add_u32 v25, v14, 1, s61
ds_write_b16 v25, v24
ds_write_b16_d16_hi v25, v24 offset:32
v_lshrrev_b32 v26, 4, v0
v_lshl_add_u32 v26, v26, 4, s61
s_waitcnt lgkmcnt(0)
ds_read_b128 v[112:115], v26
ds_read_b128 v[116:119], v26 offset:64
s_waitcnt lgkmcnt(0)""")
        self.mfma_tiles(120, 112, B1f, 2, 2)
        a(f"""v_and_b32 v27, 31, v0
v_lshlrev_b32 v27, 2, v27
s_lshl_b32 s62, s3, 7
v_add_u32 v28, s62, v27
v_cndmask_b32 v29, v120, v124, {M_G1}
s_mov_b32 exec_hi, 0
ds_write_b32 v28, v29 offset:{FP}
s_mov_b64 exec, -1
s_waitcnt lgkmcnt(0)
s_barrier""")
        for w in range(8): a(f"ds_read_b32 v{30+w}, v27 offset:{FP+128*w}")
        a("""s_waitcnt lgkmcnt(0)
v_add_f32 v30, v30, v31
v_add_f32 v32, v32, v33
v_add_f32 v34, v34, v35
v_add_f32 v36, v36, v37
v_add_f32 v30, v30, v32
v_add_f32 v34, v34, v36
v_add_f32 v30, v30, v34
v_cvt_pk_bf16_f32 v30, v30, v30""")
        a(f"""v_and_b32 v30, {S_HI}, v30
v_max_f32 v30, 0, v30
v_and_b32 v31, 31, v0
v_lshl_add_u32 v31, v31, 1, s61
ds_write_b16_d16_hi v31, v30 offset:128
s_waitcnt lgkmcnt(0)
ds_read_b128 v[112:115], v26 offset:128
s_waitcnt lgkmcnt(0)""")
        self.mfma_tiles(120, 112, B2f, 1, 4)
        a(f"""v_and_b32 v16, 15, v0
v_lshrrev_b32 v17, 4, v0
s_lshl_b32 s61, s3, 2
v_add_u32 v17, s61, v17
s_movk_i32 s61, {F_TILE}
v_mul_lo_u32 v17, v17, s61
v_lshl_add_u32 v17, v16, 3, v17
s_lshl_b32 s61, s60, 7
s_add_u32 s61, s61, {F_OFF}
v_cndmask_b32 v40, v120, v124, {M_G1}
v_cndmask_b32 v40, v40, v128, {M_G2}
v_cndmask_b32 v40, v40, v132, {M_G3}
v_mov_b32 v42, {T0}
v_mov_b32 v43, {T1}
v_mov_b32_dpp v41, v40 quad_perm:[1,1,3,3] row_mask:0xf bank_mask:0xf
s_mov_b32 s62, 0x55555555
s_mov_b32 s63, 0x55555555
s_mov_b64 exec, s[62:63]
buffer_store_dwordx4 v[40:43], v17, {SRD_WS}, s61 offen sc1
s_mov_b64 exec, -1""")
        self.stamp(9)
        a("s_cmp_lg_u32 s3, 0\ns_cbranch_scc1 L_s_exit\ns_cmp_ge_u32 s60, 32\ns_cbranch_scc1 L_s_exit")
        a(f"""v_lshlrev_b32 v8, 4, v0
s_mul_i32 s61, s60, {F_TILE}
s_add_u32 s61, s61, {F_OFF}
v_and_b32 v9, 7, v0
s_lshl_b32 s62, s60, 6
v_lshl_add_u32 v9, v9, 3, s62
ds_read_b64 v[10:11], v9 offset:{X1N}
ds_read_b64 v[12:13], v9 offset:{GBN}
v_mov_b32 v68, 0
v_mov_b32 v69, 0
v_mov_b32 v70, {T0}
v_mov_b32 v71, {T1}""")
        G = [48, 52, 56, 60, 64, 68]
        def issue():
            for i in range(5):
                a(f"buffer_load_dwordx4 v[{G[i]}:{G[i]+3}], v8, {SRD_WS}, s61 offen offset:{(i*1024) if i < 4 else 0} sc1" if i < 4 else
                  f"s_add_u32 s62, s61, 4096\nbuffer_load_dwordx4 v[{G[i]}:{G[i]+3}], v8, {SRD_WS}, s62 offen sc1")
            a(f"s_mov_b64 exec, 0xffffff\nbuffer_load_dwordx4 v[68:71], v8, {SRD_WS}, s62 offen offset:1024 sc1\ns_mov_b64 exec, -1")
        self.poll(issue, G)
        self.stamp(10)
        a("""v_add_f32 v48, v48, v52
v_add_f32 v49, v49, v53
v_add_f32 v56, v56, v60
v_add_f32 v57, v57, v61
v_add_f32 v64, v64, v68
v_add_f32 v65, v65, v69
v_add_f32 v48, v48, v56
v_add_f32 v49, v49, v57
v_add_f32 v48, v48, v64
v_add_f32 v49, v49, v65""")
        self.dpp("v_add_f32", "v48", "v48", "v48", "row_ror:8"); self.dpp("v_add_f32", "v49", "v49", "v49", "row_ror:8")
        self.xor16_add("v48", "v50"); self.xor16_add("v49", "v51")
        self.xor32_add("v48", "v50"); self.xor32_add("v49", "v51")
        a("s_waitcnt lgkmcnt(0)")
        self.rbf2("v48", "v49", "v48", "v49", "v50")
        a("v_mul_f32 v48, v12, v48\nv_mul_f32 v49, v13, v49")
        self.rbf2("v48", "v49", "v48", "v49", "v50")
        a(f"""v_add_f32 v48, v10, v48
v_add_f32 v49, v11, v49
v_cvt_pk_bf16_f32 v50, v48, v49
v_and_b32 v9, 7, v0
v_lshlrev_b32 v9, 2, v9
s_lshl_b32 s62, s60, 5
s_mov_b32 s44, s{S_OUT}
s_mov_b32 s45, s{S_OUT+1}
s_mov_b32 s46, 1024
s_mov_b32 s47, 0x20000
s_mov_b64 exec, 0xff
buffer_store_dword v50, v9, {SRD_A}, s62 offen""")
        a(f"""s_cmp_lg_u32 s60, 0
s_cbranch_scc1 L_s_exit
s_mov_b64 exec, 1
v_mov_b32 v52, s34
v_mov_b32 v53, s35
v_mov_b32 v54, 0
buffer_store_dwordx2 v[52:53], v54, {SRD_WS}, 0 offen sc1""")

    def layernorm_tail(self, mean, var, xs, outs, t0, sd, rs):
        a = self.a
        self.rbf2(mean, var, mean, var, t0)
        a(f"v_add_f32 {var}, 0x3727c5ac, {var}")
        self.rbf(var, var)
        a(f"v_sqrt_f32 {sd}, {var}")
        self.rbf(sd, sd)
        a(f"v_rcp_f32 {rs}, {sd}")
        for x, o in zip(xs, outs): a(f"v_sub_f32 {o}, {x}, {mean}")
        self.rbf2(outs[0], outs[1], outs[0], outs[1], t0)
        for o in outs:
            a(f"v_mul_f32 {t0}, {o}, {rs}\nv_fma_f32 {o}, -{t0}, {sd}, {o}\nv_fma_f32 {o}, {o}, {rs}, {t0}")
        self.rbf2(outs[0], outs[1], outs[0], outs[1], t0)

    def tile128x64_load(self, srd, voff, rowstride, lds_base, soff0):
        self.dma_tile(srd, voff, 16, 8 * rowstride, lds_base, soff0)

    def ctl_waves(self):
        a = self.a
        a("v_lshlrev_b32 v1, 4, v0\ns_sub_u32 s3, s3, 8\ns_waitcnt lgkmcnt(0)")
        a(f"s_load_dwordx2 s[34:35], s[{S_WS}:{S_WS+1}], 0")
        self.srd(SRD_WS, S_WS, 0x200000 if self.stamps else 0x100000)
        self.consts()
        a("s_mov_b32 s75, 0")
        a(f"s_lshl_b32 s59, s3, 14\ns_add_u32 s59, s59, {STG}")
        a(f"s_lshl_b32 s58, s3, 8\ns_add_u32 s58, s58, {ABUF + 8*256}")
        a("s_cmp_eq_u32 s3, 0\ns_cbranch_scc1 L_c0\ns_cmp_eq_u32 s3, 1\ns_cbranch_scc1 L_c1")
        a("s_cmp_eq_u32 s3, 2\ns_cbranch_scc0 L_c3")
        a(f"v_mov_b32 v2, -1\nv_lshlrev_b32 v3, 2, v0\ns_mov_b64 exec, 0xff\nds_write_b32 v3, v2 offset:{MBUF}\ns_mov_b64 exec, -1")
        a("s_branch L_c_b1")
        a.label("L_c3")
        if self.prefetch:
            a("s_cmp_ge_u32 s2, 64\ns_cbranch_scc1 L_c_b1")
            a("s_getpc_b64 s[52:53]")
            a.label("L_pc")
            a(f"s_sub_u32 s52, s52, L_pc-{NAME}\ns_subb_u32 s53, s53, 0")
            a(f"v_lshlrev_b32 v2, 7, v0\ns_mov_b32 s54, L_code_end-{NAME}")
            for i in range(3):
                L = self.lab("pf")
                a(f"v_cmp_gt_u32 vcc, s54, v2\ns_mov_b64 exec, vcc\ns_cbranch_execz {L}\nglobal_load_dword v{4+i}, v2, s[52:53]")
                a.label(L)
                a("s_mov_b64 exec, -1\nv_add_u32 v2, 0x2000, v2")
        a("s_branch L_c_b1")
        a.label("L_c1")
        self.c1()
        a("s_branch L_c_b1")
        a.label("L_c0")
        self.c0()
        a.label("L_c_b1")
        a("s_waitcnt vmcnt(0) lgkmcnt(0)")
        self.epoch_once()
        self.stamp(7)
        a("s_barrier")
        a(f"s_cmp_lt_u32 s2, {G_WO}\ns_cbranch_scc1 L_c_b2\ns_cmp_lt_u32 s2, {G_FFN}\ns_cbranch_scc1 L_c_wo")
        a(f"s_cmp_ge_u32 s2, {G_FFN_END}\ns_cbranch_scc1 L_c_b2\ns_cmp_lg_u32 s3, 0\ns_cbranch_scc1 L_c_b2")
        self.ffn_vectors()
        a.label("L_c_b2")
        a("s_waitcnt vmcnt(0) lgkmcnt(0)\ns_barrier")
        a("s_add_u32 s3, s3, 8")
        self.finish()
        a.label("L_c_wo")
        self.wo_wave()

    def epoch_once(self):
        a = self.a
        L = self.lab("ep")
        a(f"s_cmp_eq_u32 s75, 1\ns_cbranch_scc1 {L}")
        self.epoch()
        a.label(L)

    def c1(self):
        a = self.a
        a(f"s_cmp_ge_u32 s2, {G_WO}\ns_cbranch_scc1 L_c1_done")
        if "noc1" in self.exp: a("s_branch L_c1_done")
        a(f"s_cmp_ge_u32 s2, {G_A2}\ns_cbranch_scc1 L_c1_a2")
        a(f"""s_and_b32 s60, s2, 3
s_lshl_b32 s60, s60, 7
s_lshr_b32 s61, s2, 2
s_lshl_b32 s61, s61, 7
s_mov_b32 s62, 1
s_lshl_b32 s63, s2, 9
s_add_u32 s63, s63, {A1_OFF}
s_branch L_c1_go""")
        a.label("L_c1_a2")
        a(f"""s_sub_u32 s63, s2, {G_A2}
s_mov_b32 s60, 0
s_lshl_b32 s61, s63, 7
s_add_u32 s61, s61, 2048
s_mov_b32 s62, 4
s_lshl_b32 s63, s63, 9
s_add_u32 s63, s63, {A2_OFF}""")
        a.label("L_c1_go")
        self.srd(SRD_A, S_WM, 512 * 6144)
        self.srd(SRD_B, S_C, 1024)
        a("""v_lshrrev_b32 v4, 3, v0
s_movk_i32 s56, 6144
v_mul_lo_u32 v4, v4, s56
v_and_b32 v5, 7, v0
v_lshl_add_u32 v4, v5, 4, v4
v_add_u32 v4, s61, v4
v_lshlrev_b32 v5, 2, v0""")
        self.tr_addr("v6", 128, "v8", "v9"); a("v_add_u32 v6, s59, v6")
        a("v_lshrrev_b32 v7, 4, v0\nv_lshl_add_u32 v7, v7, 4, s58\nv_lshl_add_u32 v12, v0, 2, s58")
        for r in range(124, 140): a(f"v_mov_b32 v{r}, 0")
        a.label("L_c1_loop")
        a("s_lshl_b32 s56, s60, 1")
        a(f"buffer_load_dword v10, v5, {SRD_B}, s56 offen")
        a("s_mul_i32 s57, s60, 6144")
        self.dma_tile(SRD_A, "v4", 16, 8 * 6144, "s59", "s57")
        a("s_waitcnt vmcnt(16)")
        a(f"v_lshlrev_b32 v8, 16, v10\nv_and_b32 v9, {S_HI}, v10")
        a(f"""v_mul_f32 v10, 0xbfb8aa3b, v8
v_mul_f32 v11, 0xbfb8aa3b, v9
v_exp_f32 v10, v10
v_exp_f32 v11, v11
v_add_f32 v10, 1.0, v10
v_add_f32 v11, 1.0, v11
v_min_f32 v10, 0x7f7fffff, v10
v_min_f32 v11, 0x7f7fffff, v11
v_rcp_f32 v13, v10
v_rcp_f32 v14, v11""")
        a("""v_mul_f32 v15, v8, v13
v_mul_f32 v16, v9, v14
v_fma_f32 v17, -v15, v10, v8
v_fma_f32 v18, -v16, v11, v9
v_fma_f32 v17, v17, v13, v15
v_fma_f32 v18, v18, v14, v16
v_cvt_pk_bf16_f32 v10, v17, v18
ds_write_b32 v12, v10
s_waitcnt lgkmcnt(0)""")
        for s in range(4): a(f"ds_read_b128 v[{108+4*s}:{111+4*s}], v7 offset:{64*s}")
        a("s_waitcnt vmcnt(0)")
        self.tr_frags(40, "v6", 0, 128, 4, 4)
        a("s_waitcnt lgkmcnt(0)")
        self.mfma_tiles(124, 108, 40, 4, 4, zero_first=False)
        a("s_add_u32 s60, s60, 128\ns_sub_u32 s62, s62, 1\ns_cmp_lg_u32 s62, 0\ns_cbranch_scc1 L_c1_loop")
        a("s_waitcnt lgkmcnt(0)")
        self.epoch(); a("s_mov_b32 s75, 1")
        a(f"""v_cndmask_b32 v140, v124, v132, {M_G1}
v_cndmask_b32 v141, v128, v136, {M_G1}
v_mov_b32 v142, {T0}
v_mov_b32 v143, {T1}
s_mov_b32 exec_hi, 0
buffer_store_dwordx4 v[140:143], v1, {SRD_WS}, s63 offen sc1
s_mov_b64 exec, -1""")
        self.stamp(1)
        a.label("L_c1_done")

    def c0(self):
        a = self.a
        if "noc0" in self.exp: a("s_branch L_c_b1")
        a("s_lshr_b32 s60, s2, 3\ns_and_b32 s61, s2, 7")
        self.srd(SRD_A, S_WQ, 512 * 8192)
        self.srd(SRD_B, S_X, 1024)
        a("""v_lshrrev_b32 v4, 4, v0
s_lshl_b32 s56, s61, 6
v_add_u32 v4, s56, v4
v_lshlrev_b32 v4, 13, v4
v_and_b32 v5, 15, v0
v_lshl_add_u32 v4, v5, 4, v4
s_lshl_b32 s56, s60, 8
v_add_u32 v4, s56, v4""")
        a(f"buffer_load_dwordx4 v[24:27], v1, {SRD_B}, 0 offen")
        a("""v_bfe_u32 v6, v0, 4, 1
v_lshlrev_b32 v6, 5, v6
v_add_u32 v6, v6, v5
s_lshl_b32 s56, s61, 7
v_lshl_add_u32 v7, v6, 1, s56""")
        a(f"buffer_load_ushort v28, v7, {SRD_B}, 0 offen\nbuffer_load_ushort v29, v7, {SRD_B}, 0 offen offset:32")
        self.dma_tile(SRD_A, "v4", 16, 4 * 8192, "s59")
        a("s_waitcnt vmcnt(16)")
        self.stamp(1)
        for e in range(4): a(f"v_lshlrev_b32 v{8+2*e}, 16, v{24+e}\nv_and_b32 v{9+2*e}, {S_HI}, v{24+e}")
        a("""v_add_f32 v16, v8, v9
v_add_f32 v17, v10, v11
v_add_f32 v18, v12, v13
v_add_f32 v19, v14, v15
v_add_f32 v16, v16, v17
v_add_f32 v18, v18, v19
v_add_f32 v16, v16, v18""")
        self.wave_reduce_to_s("v_add_f32", "v16", "s56")
        a("v_mov_b32 v20, s56\nv_mul_f32 v20, 0x3b000000, v20")
        for e in range(8): a(f"v_sub_f32 v{8+e}, v{8+e}, v20")
        a("v_mul_f32 v16, v8, v8")
        for e in range(1, 8): a(f"v_fmac_f32 v16, v{8+e}, v{8+e}")
        self.wave_reduce_to_s("v_add_f32", "v16", "s56")
        a("v_mov_b32 v19, s56\nv_mul_f32 v19, 0x3b000000, v19")
        a("v_lshlrev_b32 v28, 16, v28\nv_lshlrev_b32 v29, 16, v29")
        self.layernorm_tail("v20", "v19", ["v28", "v29"], ["v30", "v31"], "v21", "v22", "v23")
        a("s_waitcnt lgkmcnt(0)")
        self.epoch(); a("s_mov_b32 s75, 1")
        self.tr_addr("v144", 256, "v8", "v9"); a("v_add_u32 v144, s59, v144")
        a("s_waitcnt vmcnt(0)")
        self.tr_frags(40, "v144", 0, 256, 2, 8)
        a(f"""v_lshrrev_b32 v8, 5, v0
v_lshlrev_b32 v8, 14, v8
v_and_b32 v9, 31, v0
v_lshl_add_u32 v8, v9, 4, v8
s_lshl_b32 s56, s61, 11
s_add_u32 s56, s56, {A1_OFF}
v_add_u32 v8, s56, v8
s_waitcnt lgkmcnt(0)""")
        self.stamp(2)
        G = [104, 108, 112, 116]
        if self.hintA:
            self.poll(lambda: a(f"buffer_load_dwordx4 v[116:119], v8, {SRD_WS}, 0 offen offset:1536 sc1"), [116], sleep=self.slA, pre=True)
        def issueA():
            for i in range(4): a(f"buffer_load_dwordx4 v[{G[i]}:{G[i]+3}], v8, {SRD_WS}, 0 offen offset:{512*i} sc1")
        self.poll(issueA, G, sleep=self.slA, pre=True)
        self.stamp(3)
        a("""v_add_f32 v8, v104, v108
v_add_f32 v9, v105, v109
v_add_f32 v10, v112, v116
v_add_f32 v11, v113, v117
v_add_f32 v8, v8, v10
v_add_f32 v9, v9, v11""")
        self.rbf2("v8", "v9", "v8", "v9", "v10")
        a("v_mov_b32 v10, v8\nv_mov_b32 v11, v9\nv_permlane32_swap_b32 v8, v10\nv_permlane32_swap_b32 v9, v11")
        a("v_add_f32 v10, 1.0, v10\nv_add_f32 v11, 1.0, v11")
        self.rbf2("v10", "v11", "v10", "v11", "v12")
        a("v_mul_f32 v10, v30, v10\nv_mul_f32 v11, v31, v11")
        self.rbf2("v10", "v11", "v10", "v11", "v12")
        a("v_add_f32 v10, v10, v8\nv_add_f32 v11, v11, v9\nv_cvt_pk_bf16_f32 v12, v10, v11")
        a("""v_lshl_add_u32 v13, v6, 1, s58
ds_write_b16 v13, v12
ds_write_b16_d16_hi v13, v12 offset:32
v_lshrrev_b32 v14, 4, v0
v_lshl_add_u32 v14, v14, 4, s58
s_waitcnt lgkmcnt(0)
ds_read_b128 v[136:139], v14
ds_read_b128 v[140:143], v14 offset:64
s_waitcnt lgkmcnt(0)""")
        self.mfma_tiles(104, 136, 40, 2, 8)
        a(f"""v_cndmask_b32 v8, v104, v112, {M_G1}
v_cndmask_b32 v9, v108, v116, {M_G1}
v_cndmask_b32 v8, v8, v120, {M_G2}
v_cndmask_b32 v9, v9, v124, {M_G2}
v_cndmask_b32 v8, v8, v128, {M_G3}
v_cndmask_b32 v9, v9, v132, {M_G3}
v_mov_b32 v10, {T0}
v_mov_b32 v11, {T1}
s_lshl_b32 s56, s2, 10
s_add_u32 s56, s56, {B_OFF}
buffer_store_dwordx4 v[8:11], v1, {SRD_WS}, s56 offen sc1""")
        self.stamp(4)
        a(f"s_lshl_b32 s56, s60, 13\ns_add_u32 s56, s56, {B_OFF}\ns_add_u32 s57, s56, 4096")
        G = [104 + 4 * i for i in range(8)]
        if self.hintB:
            a("v_and_b32 v15, 7, v0\nv_lshlrev_b32 v15, 10, v15\nv_add_u32 v15, 1008, v15")
            self.poll(lambda: a(f"buffer_load_dwordx4 v[104:107], v15, {SRD_WS}, s56 offen sc1"), [104], sleep=self.slB, pre=True)
        def issueB():
            for i in range(8):
                a(f"buffer_load_dwordx4 v[{G[i]}:{G[i]+3}], v1, {SRD_WS}, {'s56' if i < 4 else 's57'} offen offset:{1024*(i&3)} sc1")
        self.poll(issueB, G, sleep=self.slB, pre=True)
        self.stamp(5)
        a("""v_add_f32 v8, v104, v108
v_add_f32 v9, v105, v109
v_add_f32 v10, v112, v116
v_add_f32 v11, v113, v117
v_add_f32 v12, v120, v124
v_add_f32 v13, v121, v125
v_add_f32 v14, v128, v132
v_add_f32 v15, v129, v133
v_add_f32 v8, v8, v10
v_add_f32 v9, v9, v11
v_add_f32 v12, v12, v14
v_add_f32 v13, v13, v15
v_add_f32 v8, v8, v12
v_add_f32 v9, v9, v13
v_cvt_pk_bf16_f32 v8, v8, v9""")
        a(f"""v_lshrrev_b32 v9, 4, v0
v_lshlrev_b32 v9, 5, v9
v_add_u32 v9, v9, v5
v_lshlrev_b32 v9, 1, v9
ds_write_b16 v9, v8 offset:{QBUF}
ds_write_b16_d16_hi v9, v8 offset:{QBUF+32}""")
        self.stamp(6)

    def ffn_vectors(self):
        a = self.a
        self.srd(SRD_B, S_X, 1024)
        a(f"""v_and_b32 v5, 15, v0
v_bfe_u32 v6, v0, 4, 1
v_lshlrev_b32 v6, 5, v6
v_add_u32 v6, v6, v5
v_lshrrev_b32 v7, 5, v0
v_lshl_add_u32 v7, v7, 6, v6
v_lshlrev_b32 v8, 1, v7
v_lshlrev_b32 v9, 3, v0
v_lshlrev_b32 v3, 2, v7""")
        for i in range(4):
            a(f"buffer_load_ushort v{8*i+104}, v8, {SRD_B}, 0 offen offset:{256*i}\nbuffer_load_ushort v{8*i+105}, v8, {SRD_B}, 0 offen offset:{256*i+32}")
        a("s_waitcnt vmcnt(0)")
        for i in range(4):
            a(f"v_lshlrev_b32 v{8*i+104}, 16, v{8*i+104}\nv_lshlrev_b32 v{8*i+105}, 16, v{8*i+105}")
            a(f"ds_write_b64 v9, v[{8*i+104}:{8*i+105}] offset:{XP+512*i}")
        for half in range(2):
            G = [40 + 4 * i for i in range(8)]
            def issue():
                for i in range(8):
                    k = half * 8 + i
                    a(f"s_mov_b32 s56, {A2_OFF + (k & ~3) * 1024}\nbuffer_load_dwordx4 v[{G[i]}:{G[i]+3}], v1, {SRD_WS}, s56 offen offset:{1024*(k&3)} sc1")
            self.poll(issue, G, sleep=8)
            for i in range(8):
                k = half * 8 + i; r = G[i]
                self.rbf2(f"v{r}", f"v{r+1}", f"v{r}", f"v{r+1}", "v10")
                if k < 4: a(f"ds_write_b64 v9, v[{r}:{r+1}] offset:{GA + 512*k}")
                elif k < 8: a(f"ds_write_b64 v9, v[{r}:{r+1}] offset:{SB + 512*(k-4)}")
                elif k < 12:
                    a(f"v_add_f32 v{r}, 1.0, v{r}\nv_add_f32 v{r+1}, 1.0, v{r+1}")
                    self.rbf2(f"v{r}", f"v{r+1}", f"v{r}", f"v{r+1}", "v10")
                    a(f"ds_write_b64 v9, v[{r}:{r+1}] offset:{CB1 + 512*(k-8)}")
                else:
                    a(f"ds_write_b32 v3, v{r} offset:{GBN + 512*(k-12)}\nds_write_b32 v3, v{r+1} offset:{GBN + 512*(k-12) + 64}")

    def wo_wave(self):
        a = self.a
        a(f"s_sub_u32 s60, s2, {G_WO}\ns_lshr_b32 s61, s60, 3\ns_and_b32 s62, s60, 7")
        a("s_lshl_b32 s63, s61, 2\ns_add_u32 s63, s63, s3")
        self.srd(SRD_A, S_WO, 4096 * 1024)
        a("""v_lshrrev_b32 v4, 3, v0
v_lshlrev_b32 v4, 10, v4
v_and_b32 v5, 7, v0
v_lshl_add_u32 v4, v5, 4, v4
s_lshl_b32 s56, s62, 7
v_add_u32 v4, s56, v4
s_lshl_b32 s57, s63, 17""")
        self.dma_tile(SRD_A, "v4", 16, 8192, "s59", "s57")
        self.tr_addr("v6", 128, "v8", "v9"); a("v_add_u32 v6, s59, v6")
        a("s_waitcnt vmcnt(0)")
        self.tr_frags(40, "v6", 0, 128, 4, 4)
        a(f"""v_and_b32 v7, 7, v0
v_lshlrev_b32 v7, 4, v7
s_lshl_b32 s56, s63, 7
s_add_u32 s56, s56, {ML_OFF}
s_lshl_b32 s57, s63, 13
s_add_u32 s57, s57, {O_OFF}
s_add_u32 s55, s57, 4096
v_lshl_add_u32 v3, v0, 2, s58
v_lshrrev_b32 v149, 4, v0
v_lshl_add_u32 v149, v149, 4, s58
s_waitcnt lgkmcnt(0)""")
        self.stamp(8)
        a("s_barrier")
        self.stamp(9)
        G = [8 + 4 * i for i in range(8)]
        def issue():
            a(f"buffer_load_dwordx4 v[104:107], v7, {SRD_WS}, s56 offen sc1")
            for i in range(8):
                a(f"buffer_load_dwordx4 v[{G[i]}:{G[i]+3}], v1, {SRD_WS}, {'s57' if i < 4 else 's55'} offen offset:{1024*(i&3)} sc1")
        self.poll(issue, [104] + G)
        self.stamp(10)
        a("v_mov_b32 v140, v104")
        for ctl in ("row_half_mirror", "quad_perm:[2,3,0,1]", "quad_perm:[1,0,3,2]"): self.dpp("v_max_f32", "v140", "v140", "v140", ctl)
        a(f"v_sub_f32 v141, v104, v140\nv_mul_f32 v141, {LOG2E}, v141\nv_exp_f32 v141, v141\nv_mul_f32 v142, v141, v105")
        for ctl in ("row_half_mirror", "quad_perm:[2,3,0,1]", "quad_perm:[1,0,3,2]"): self.dpp("v_add_f32", "v142", "v142", "v142", ctl)
        a("v_rcp_f32 v143, v142")
        a("v_mul_f32 v144, v141, v143\nv_fma_f32 v145, -v144, v142, v141\nv_fma_f32 v144, v145, v143, v144")
        a("v_mov_b32 v146, 0\nv_mov_b32 v147, 0")
        for s in range(8):
            a(f"v_fmac_f32_dpp v146, v144, v{G[s]} row_newbcast:{s} row_mask:0xf bank_mask:0xf")
            a(f"v_fmac_f32_dpp v147, v144, v{G[s]+1} row_newbcast:{s} row_mask:0xf bank_mask:0xf")
        a("v_cvt_pk_bf16_f32 v148, v146, v147\nds_write_b32 v3, v148\ns_waitcnt lgkmcnt(0)")
        for s in range(4): a(f"ds_read_b128 v[{108+4*s}:{111+4*s}], v149 offset:{64*s}")
        a("s_waitcnt lgkmcnt(0)")
        self.mfma_tiles(124, 108, 40, 4, 4)
        a(f"""v_lshlrev_b32 v10, 2, v0
s_lshl_b32 s56, s3, 8
v_add_u32 v10, s56, v10
v_cndmask_b32 v11, v124, v128, {M_G1}
v_cndmask_b32 v11, v11, v132, {M_G2}
v_cndmask_b32 v11, v11, v136, {M_G3}
ds_write_b32 v10, v11 offset:{YP}
s_waitcnt lgkmcnt(0)
s_barrier""")
        a("s_cmp_lg_u32 s3, 0\ns_cbranch_scc1 L_wo_done")
        a(f"""v_bfe_u32 v12, v0, 4, 1
v_lshlrev_b32 v12, 5, v12
v_and_b32 v13, 15, v0
v_add_u32 v12, v12, v13
v_lshlrev_b32 v12, 2, v12
v_add_u32 v12, {YP}, v12""")
        for w in range(4): a(f"ds_read2_b32 v[{16+2*w}:{17+2*w}], v12 offset0:{64*w} offset1:{64*w+16}")
        a(f"""s_lshl_b32 s56, s60, 9
s_add_u32 s56, s56, {Y_OFF}
v_mov_b32 v26, {T0}
v_mov_b32 v27, {T1}
s_waitcnt lgkmcnt(0)
v_add_f32 v16, v16, v18
v_add_f32 v17, v17, v19
v_add_f32 v20, v20, v22
v_add_f32 v21, v21, v23
v_add_f32 v24, v16, v20
v_add_f32 v25, v17, v21
s_mov_b32 exec_hi, 0
buffer_store_dwordx4 v[24:27], v1, {SRD_WS}, s56 offen sc1""")
        self.stamp(11)
        a.label("L_wo_done")
        a("s_add_u32 s3, s3, 8")
        self.finish()

def generate(**kw):
    g = Gen(**kw)
    return g.build()

if __name__ == "__main__":
    import argparse
    p = argparse.ArgumentParser()
    p.add_argument("-o", default="k.s"); p.add_argument("-W", type=int, default=3); p.add_argument("--stamps", action="store_true")
    p.add_argument("--nohintA", action="store_true"); p.add_argument("--nohintB", action="store_true"); p.add_argument("--noprefetch", action="store_true")
    p.add_argument("--exp", default=""); p.add_argument("--slA", type=int, default=4); p.add_argument("--slB", type=int, default=2); p.add_argument("--kv", default="nt"); p.add_argument("--wflag", default="nt")
    x = p.parse_args()
    open(x.o, "w").write(generate(W=x.W, stamps=x.stamps, hintA=not x.nohintA, hintB=not x.nohintB, prefetch=not x.noprefetch, kvflag=x.kv, wflag=x.wflag, exp=x.exp, slA=x.slA, slB=x.slB))
```

```python
import sys
from asmlib import Asm

NAME = "adaLN_cond__gqa_block_cached__dense_activation_relu__decode_kernel"

A1_OFF = 0x1000; A2_OFF = 0x9000; ML_OFF = 0xD000; Y_OFF = 0x10000; AP_OFF = 0xD0000
B_OFF = 0x20000; O_OFF = 0x60000; F_OFF = 0xA0000; STAMP_OFF = 0x100000
F_TILE = 48 * 128
G_A2 = 64; G_COL_END = 96; G_FFN = 96; G_FFN_END = 139; G_WO = 192
CODE_PAD = 24576
QBUF = 0
MBUF = 256
LBUF = 288
STAT = 320
ABUF = 512
OBUF = 4096
YP = 8192
FP = 9216
XP = 10240; GA = XP + 2048; SB = GA + 2048; CB1 = SB + 2048; GBN = CB1 + 2048; X1N = GBN + 2048
STG = 24576
LDS_BYTES = STG + 65536
S_X, S_K, S_V, S_WQ, S_WO, S_W1, S_W2 = 8, 10, 12, 14, 16, 20, 22
S_C, S_WM, S_OUT, S_DBG, S_WS = 24, 26, 28, 30, 32
S_E = 34; T0, T1 = "s36", "s37"; SPIN = "s38"
SRD_WS = "s[40:43]"; SRD_A = "s[44:47]"; SRD_B = "s[48:51]"
M_B1 = "s[64:65]"; M_B0 = "s[66:67]"; M_G1 = "s[68:69]"; M_G2 = "s[70:71]"; M_G3 = "s[72:73]"
S_HI = "s74"
STAMP0 = 76
RING = 40
LOG2E = "0x3fb8aa3b"; SCALE = "0x3db504f3"

class Gen:
    def __init__(self, W=3, stamps=False, hintA=True, hintB=True, kvflag="nt", prefetch=True, wflag="nt", dbg=False, exp="", slA=4, slB=2, pfmax=256, b0=True, touch=True):
        self.a = Asm(); self.W = W; self.stamps = stamps; self.hintA = hintA; self.hintB = hintB
        self.kv = kvflag; self.prefetch = prefetch; self.wflag = wflag; self.uid = 0; self.dbg = dbg; self.exp = exp.split(','); self.slA = slA; self.slB = slB; self.pfmax = pfmax; self.b0 = b0; self.touch = touch
    def lab(self, p):
        self.uid += 1; return f"L_{p}_{self.uid}"
    def stamp(self, i):
        if self.stamps: self.a(f"s_memrealtime s[{STAMP0+2*i}:{STAMP0+2*i+1}]")
    def finish(self):
        a = self.a
        if self.stamps:
            a("s_waitcnt lgkmcnt(0)\ns_mov_b64 exec, -1")
            a("v_mov_b32 v2, 0")
            for i in range(24): a(f"v_writelane_b32 v2, s{STAMP0+i}, {i}")
            a(f"s_mul_i32 s52, s2, 12\ns_add_u32 s52, s52, s3\ns_lshl_b32 s52, s52, 7\ns_add_u32 s52, s52, {STAMP_OFF}")
            a("v_lshlrev_b32 v3, 2, v0\ns_mov_b32 exec_hi, 0")
            a(f"buffer_store_dword v2, v3, {SRD_WS}, s52 offen")
        a("s_endpgm")
    def rbf(self, dst, src):
        self.a(f"v_cvt_pk_bf16_f32 {dst}, {src}, {src}\nv_and_b32 {dst}, {S_HI}, {dst}")
    def rbf2(self, d0, d1, s0, s1, tmp):
        self.a(f"v_cvt_pk_bf16_f32 {tmp}, {s0}, {s1}\nv_lshlrev_b32 {d0}, 16, {tmp}\nv_and_b32 {d1}, {S_HI}, {tmp}")
    def dpp(self, op, d, s0, s1, ctl, rm="0xf", bm="0xf"):
        self.a(f"{op}_dpp {d}, {s0}, {s1} {ctl} row_mask:{rm} bank_mask:{bm}")
    def row_reduce(self, op, v, steps=(8, 4, 2, 1)):
        for k in steps: self.dpp(op, v, v, v, f"row_ror:{k}")
    def wave_reduce_to_s(self, op, v, s):
        self.row_reduce(op, v)
        self.dpp(op, v, v, v, "row_bcast:15", rm="0xa")
        self.dpp(op, v, v, v, "row_bcast:31", rm="0xc")
        self.a(f"v_readlane_b32 {s}, {v}, 63")
    def xor32_add(self, v, t):
        self.a(f"v_mov_b32 {t}, {v}\nv_permlane32_swap_b32 {v}, {t}\nv_add_f32 {v}, {v}, {t}")
    def xor16_add(self, v, t):
        self.a(f"v_mov_b32 {t}, {v}\nv_permlane16_swap_b32 {v}, {t}\nv_add_f32 {v}, {v}, {t}")
    def tagcheck(self, regs, acc, first=True):
        a = self.a
        for r in regs:
            if first:
                a(f"v_xor_b32 {acc}, {T0}, v{r+2}"); first = False
            else:
                a(f"v_bitop3_b32 {acc}, {acc}, {T0}, v{r+2} bitop3:0xf6")
            a(f"v_bitop3_b32 {acc}, {acc}, {T1}, v{r+3} bitop3:0xf6")
    def poll(self, issue, regs, acc="v2", sleep=0, pre=False):
        a = self.a
        L = self.lab("poll"); D = self.lab("pok")
        a.label(L)
        issue()
        a("s_waitcnt vmcnt(0)")
        self.tagcheck(regs, acc)
        a(f"v_cmp_ne_u32 vcc, 0, {acc}")
        if "nopoll" in self.exp and pre: a(f"s_branch {D}")
        a(f"s_cbranch_vccz {D}")
        a(f"s_cmp_eq_u32 {SPIN}, 0")
        a(f"s_cbranch_scc1 {D}")
        a(f"s_sub_u32 {SPIN}, {SPIN}, 1")
        if sleep: a(f"s_sleep {sleep}")
        a(f"s_branch {L}")
        a.label(D)
    def srd(self, srd, base, size, add=None):
        n = int(srd[2:srd.index(':')])
        if add is None: self.a(f"s_mov_b32 s{n}, s{base}\ns_mov_b32 s{n+1}, s{base+1}")
        else: self.a(f"s_add_u32 s{n}, s{base}, {add}\ns_addc_u32 s{n+1}, s{base+1}, 0")
        self.a(f"s_mov_b32 s{n+2}, {size}\ns_mov_b32 s{n+3}, 0x20000")
    def consts(self):
        a = self.a
        a(f"s_mov_b32 {S_HI}, 0xffff0000\ns_mov_b32 {SPIN}, 0x40000")
        a("s_mov_b32 s64, 0xcccccccc\ns_mov_b32 s65, 0xcccccccc\ns_mov_b32 s66, 0xaaaaaaaa\ns_mov_b32 s67, 0xaaaaaaaa")
        a("s_mov_b32 s68, 0xffff0000\ns_mov_b32 s69, 0\ns_mov_b32 s70, 0\ns_mov_b32 s71, 0xffff\ns_mov_b32 s72, 0\ns_mov_b32 s73, 0xffff0000")
    def epoch(self):
        self.a(f"s_add_u32 s34, s34, 1\ns_addc_u32 s35, s35, 0\ns_xor_b32 {T0}, s34, 0x5bd1e995\ns_xor_b32 {T1}, s35, 0x9e3779b9")
    def dma_tile(self, srd, voff, n, step, lds_base, soff0="0"):
        a = self.a
        a(f"s_mov_b32 s53, {soff0}\ns_mov_b32 m0, {lds_base}")
        for i in range(n):
            a(f"buffer_load_dwordx4 {voff}, {srd}, s53 offen {self.wflag} lds")
            if i < n - 1: a(f"s_add_u32 s53, s53, {step}\ns_add_u32 m0, m0, 1024")
    def tr_addr(self, dst, rowbytes, t0, t1):
        sh = rowbytes.bit_length() - 1
        self.a(f"""v_lshrrev_b32 {t0}, 4, v0
v_bfe_u32 {t1}, v0, 2, 2
v_lshl_add_u32 {t0}, {t0}, 3, {t1}
v_lshlrev_b32 {t0}, {sh}, {t0}
v_and_b32 {t1}, 3, v0
v_lshl_add_u32 {dst}, {t1}, 3, {t0}""")
    def tr_frags(self, base_reg, vaddr, lds_base, rowbytes, nsteps, ntiles):
        for s in range(nsteps):
            for t in range(ntiles):
                r = base_reg + 4 * (s * ntiles + t)
                for h in range(2):
                    off = lds_base + (32 * s + 4 * h) * rowbytes + t * 32
                    self.a(f"ds_read_b64_tr_b16 v[{r+2*h}:{r+2*h+1}], {vaddr} offset:{off}")
    def mfma_tiles(self, dbase, abase, bbase, nsteps, ntiles, zero_first=True):
        for s in range(nsteps):
            for t in range(ntiles):
                d = f"v[{dbase+4*t}:{dbase+4*t+3}]"
                c = "0" if (s == 0 and zero_first) else d
                b = bbase + 4 * (s * ntiles + t)
                self.a(f"v_mfma_f32_16x16x32_bf16 {d}, v[{abase+4*s}:{abase+4*s+3}], v[{b}:{b+3}], {c}")

    def build(self):
        a = self.a; W = self.W
        a.raw(f"; @launch grid=(256,1,1) block=(768,1,1) lds={LDS_BYTES}")
        a.raw('.amdgcn_target "amdgcn-amd-amdhsa--gfx950"')
        a.raw(".text"); a.raw(f".globl {NAME}"); a.raw(".p2align 8"); a.raw(f".type {NAME},@function"); a.raw(f"{NAME}:")
        a("s_cmp_ge_u32 s2, 256\ns_cbranch_scc1 L_exit")
        self.stamp(0)
        a("""s_load_dwordx16 s[8:23], s[0:1], 0
s_load_dwordx8 s[24:31], s[0:1], 64
s_load_dwordx2 s[32:33], s[0:1], 96
v_lshrrev_b32 v1, 6, v0
v_and_b32 v0, 63, v0
v_readfirstlane_b32 s3, v1""")
        if self.prefetch:
            a(f"s_cmp_lg_u32 s3, 11\ns_cbranch_scc1 L_nopf")
            if self.pfmax < 256: a(f"s_cmp_ge_u32 s2, {self.pfmax}\ns_cbranch_scc1 L_nopf")
            a("s_getpc_b64 s[52:53]")
            a.label("L_pc")
            a(f"s_sub_u32 s52, s52, L_pc-{NAME}\ns_subb_u32 s53, s53, 0\nv_lshlrev_b32 v2, 7, v0")
            for i in range(CODE_PAD // 8192):
                a(f"global_load_dword v{4+i}, v2, s[52:53]")
                if i < CODE_PAD // 8192 - 1: a("v_add_u32 v2, 0x2000, v2")
            a.label("L_nopf")
        a("s_cmp_ge_u32 s3, 8\ns_cbranch_scc1 L_ctl")
        self.stream_wave()
        a.label("L_ctl")
        self.ctl_waves()
        a.label("L_exit")
        a("s_endpgm")
        a.raw(f".fill ({CODE_PAD} - (. - {NAME})) / 4, 4, 0xbf800000")
        a.raw("L_code_end:")
        a.raw('.section .rodata,"a"'); a.raw(".p2align 6"); a.raw(f".amdhsa_kernel {NAME}")
        for l in ["  .amdhsa_next_free_vgpr 168", "  .amdhsa_next_free_sgpr 102", "  .amdhsa_accum_offset 168",
                  "  .amdhsa_group_segment_fixed_size 0", "  .amdhsa_kernarg_size 104", "  .amdhsa_user_sgpr_count 2",
                  "  .amdhsa_user_sgpr_kernarg_segment_ptr 1", "  .amdhsa_system_sgpr_workgroup_id_x 1", ".end_amdhsa_kernel"]:
            a.raw(l)
        return a.text()

    def stream_wave(self):
        a = self.a; W = self.W; kv = self.kv
        ring = lambda j: RING + 4 * j
        a("""s_lshl_b32 s52, s2, 3
s_add_u32 s52, s52, s3
s_lshl_b32 s52, s52, 15
v_lshlrev_b32 v1, 4, v0
s_lshl_b32 s54, s3, 2
s_add_u32 s54, s54, s2
s_and_b32 s54, s54, 31
s_lshl_b32 s54, s54, 10
s_waitcnt lgkmcnt(0)""")
        self.srd(SRD_A, S_K, 32768, "s52")
        if self.b0: a("s_barrier")
        def load(j, srd):
            r = ring(j)
            a(f"buffer_load_dwordx4 v[{r}:{r+3}], v1, {srd}, s54 offen {kv}")
            a("s_add_u32 s54, s54, 1024\ns_and_b32 s54, s54, 0x7fff")
        for j in range(W): load(j, SRD_A)
        a(f"s_load_dwordx2 s[34:35], s[{S_WS}:{S_WS+1}], 0")
        self.srd(SRD_B, S_V, 32768, "s52")
        self.srd(SRD_WS, S_WS, 0x200000 if self.stamps else 0x100000)
        self.consts()
        for j in range(W, 32):
            a(f"s_waitcnt vmcnt({W-1})")
            load(j, SRD_A)
            if j == W: self.stamp(11)
            if j == W + 1:
                a("s_waitcnt lgkmcnt(0)"); self.epoch()
        self.stamp(1)
        a("v_and_b32 v2, 15, v0\nv_lshlrev_b32 v2, 4, v2")
        a("s_barrier")
        self.stamp(2)
        a(f"ds_read_b128 v[4:7], v2 offset:{QBUF}\ns_waitcnt lgkmcnt(0)")
        t = [10, 11, 12, 13]; ra, rb = 14, 15; u = [16, 17, 18, 19]; x, y = 20, 21; S = [8, 9]
        def group(k):
            js = [4 * k + b for b in range(4)]
            for e in range(4):
                for b in range(4):
                    c = "0" if e == 0 else f"v{t[b]}"
                    a(f"v_dot2_f32_bf16 v{t[b]}, v{ring(js[b])+e}, v{4+e}, {c}")
            self.dpp("v_add_f32", f"v{ra}", f"v{t[0]}", f"v{t[0]}", "row_ror:8", bm="0x3")
            self.dpp("v_add_f32", f"v{rb}", f"v{t[2]}", f"v{t[2]}", "row_ror:8", bm="0x3")
            self.dpp("v_add_f32", f"v{ra}", f"v{t[1]}", f"v{t[1]}", "row_ror:8", bm="0xc")
            self.dpp("v_add_f32", f"v{rb}", f"v{t[3]}", f"v{t[3]}", "row_ror:8", bm="0xc")
            uk = u[k & 3]
            self.dpp("v_add_f32", f"v{uk}", f"v{ra}", f"v{ra}", "row_half_mirror", bm="0x5")
            self.dpp("v_add_f32", f"v{uk}", f"v{rb}", f"v{rb}", "row_half_mirror", bm="0xa")
            if (k & 3) == 3:
                def merge(dst, p, q, ctl, mask):
                    self.dpp("v_add_f32", f"v{x}", f"v{p}", f"v{p}", ctl)
                    self.dpp("v_add_f32", f"v{y}", f"v{q}", f"v{q}", ctl)
                    a(f"v_cndmask_b32 v{dst}, v{x}, v{y}, {mask}")
                merge(u[0], u[0], u[1], "quad_perm:[2,3,0,1]", M_B1)
                merge(u[2], u[2], u[3], "quad_perm:[2,3,0,1]", M_B1)
                merge(S[k >> 2], u[0], u[2], "quad_perm:[1,0,3,2]", M_B0)
        safe = (32 - W) // 4
        g = 0
        for i in range(W):
            upto = min(safe, max(g + 1, (i + 1) * safe // W)) if i < W - 1 else safe
            if i == 0: upto = min(safe, 1)
            while g < upto: group(g); g += 1
            a(f"s_waitcnt vmcnt({W-1})")
            load(i, SRD_B)
        while g < 8: group(g); g += 1
        self.stamp(3)
        self.rbf2("v8", "v9", "v8", "v9", "v10")
        a(f"v_mul_f32 v8, {SCALE}, v8\nv_mul_f32 v9, {SCALE}, v9")
        self.rbf2("v8", "v9", "v8", "v9", "v10")
        a("v_max_f32 v10, v8, v9")
        self.wave_reduce_to_s("v_max_f32", "v10", "s55")
        a(f"""v_subrev_f32 v8, s55, v8
v_subrev_f32 v9, s55, v9
v_mul_f32 v8, {LOG2E}, v8
v_mul_f32 v9, {LOG2E}, v9
v_exp_f32 v8, v8
v_exp_f32 v9, v9
v_mov_b32 v11, s55
s_lshl_b32 s56, s3, 2
v_mov_b32 v12, s56
s_mov_b64 exec, 1
ds_write_b32 v12, v11 offset:{MBUF}
s_mov_b64 exec, -1
v_add_f32 v10, v8, v9""")
        self.wave_reduce_to_s("v_add_f32", "v10", "s56")
        acc = list(range(10, 18)); un = list(range(18, 26)); pb = 26
        for e in acc: a(f"v_mov_b32 v{e}, 0")
        def lane_of(j):
            jj = j & 15; ga_, b = jj >> 2, jj & 3
            return ((b & 1) << 3) | ((b >> 1) << 2) | ((ga_ & 1) << 1) | (ga_ >> 1)
        for j in range(32):
            a(f"s_waitcnt vmcnt({min(W-1, 31-j)})")
            if j + W < 32: load(j + W, SRD_B)
            if j + W == 31:
                Lb = self.lab("b1b")
                a(f"s_cmp_lt_u32 s2, {G_WO}\ns_cbranch_scc1 {Lb}\ns_barrier")
                a.label(Lb)
            if j == 20:
                L = self.lab("mx")
                a("v_mov_b32 v27, 0")
                a.label(L)
                a(f"""ds_read_b128 v[28:31], v27 offset:{MBUF}
ds_read_b128 v[32:35], v27 offset:{MBUF+16}
s_waitcnt lgkmcnt(0)
v_max3_u32 v36, v28, v29, v30
v_max3_u32 v36, v36, v31, v32
v_max3_u32 v36, v36, v33, v34
v_max_u32 v36, v36, v35
v_cmp_eq_u32 vcc, -1, v36
s_cbranch_vccz {L}_ok
s_cmp_eq_u32 {SPIN}, 0
s_cbranch_scc1 {L}_ok
s_sub_u32 {SPIN}, {SPIN}, 1
s_branch {L}""")
                a.label(L + "_ok")
                a(f"""v_max3_f32 v36, v28, v29, v30
v_max3_f32 v36, v36, v31, v32
v_max3_f32 v36, v36, v33, v34
v_max_f32 v36, v36, v35
v_sub_f32 v37, s55, v36
v_mul_f32 v37, {LOG2E}, v37
v_exp_f32 v37, v37""")
            r = ring(j)
            a(f"v_mov_b32_dpp v{pb}, v{8 + (j >> 4)} row_newbcast:{lane_of(j)} row_mask:0xf bank_mask:0xf")
            for e in range(4):
                a(f"v_lshlrev_b32 v{un[2*e]}, 16, v{r+e}\nv_and_b32 v{un[2*e+1]}, {S_HI}, v{r+e}")
            for e in range(8):
                a(f"v_fmac_f32 v{acc[e]}, v{pb}, v{un[e]}")
        self.stamp(4)
        for e in range(4): a(f"v_permlane32_swap_b32 v{acc[e]}, v{acc[e+4]}")
        for e in range(4): a(f"v_add_f32 v{acc[e]}, v{acc[e]}, v{acc[e+4]}")
        for e in range(2): a(f"v_permlane16_swap_b32 v{acc[e]}, v{acc[e+2]}")
        for e in range(2): a(f"v_add_f32 v{acc[e]}, v{acc[e]}, v{acc[e+2]}")
        a(f"""v_mul_f32 v10, v10, v37
v_mul_f32 v11, v11, v37
v_mul_f32 v12, s56, v37
v_and_b32 v13, 15, v0
v_lshrrev_b32 v14, 4, v0
v_lshl_add_u32 v13, v13, 2, v14
v_lshlrev_b32 v13, 3, v13
s_lshl_b32 s57, s3, 9
v_add_u32 v13, s57, v13
s_lshl_b32 s57, s3, 2
v_mov_b32 v14, s57
ds_write_b64 v13, v[10:11] offset:{OBUF}
ds_write_b32 v14, v12 offset:{LBUF}
s_waitcnt lgkmcnt(0)
s_barrier""")
        self.stamp(5)
        a("s_cmp_lg_u32 s3, 0\ns_cbranch_scc1 L_s_pub_done")
        a(f"v_lshlrev_b32 v13, 3, v0")
        for w in range(8): a(f"ds_read_b64 v[{40+2*w}:{41+2*w}], v13 offset:{OBUF+512*w}")
        a(f"ds_read_b128 v[56:59], v27 offset:{LBUF}\nds_read_b128 v[60:63], v27 offset:{LBUF+16}")
        a(f"s_lshl_b32 s57, s2, 10\ns_add_u32 s57, s57, {O_OFF}\ns_lshl_b32 s58, s2, 4\ns_add_u32 s58, s58, {ML_OFF}")
        a(f"v_mov_b32 v66, {T0}\nv_mov_b32 v67, {T1}\nv_mov_b32 v70, {T0}\nv_mov_b32 v71, {T1}\nv_mov_b32 v68, v36")
        a("s_waitcnt lgkmcnt(0)")
        a("""v_add_f32 v64, v40, v42
v_add_f32 v65, v41, v43
v_add_f32 v72, v44, v46
v_add_f32 v73, v45, v47
v_add_f32 v74, v48, v50
v_add_f32 v75, v49, v51
v_add_f32 v76, v52, v54
v_add_f32 v77, v53, v55
v_add_f32 v64, v64, v72
v_add_f32 v65, v65, v73
v_add_f32 v74, v74, v76
v_add_f32 v75, v75, v77
v_add_f32 v64, v64, v74
v_add_f32 v65, v65, v75""")
        a(f"buffer_store_dwordx4 v[64:67], v1, {SRD_WS}, s57 offen sc1")
        a("""v_add_f32 v56, v56, v57
v_add_f32 v58, v58, v59
v_add_f32 v60, v60, v61
v_add_f32 v62, v62, v63
v_add_f32 v56, v56, v58
v_add_f32 v60, v60, v62
v_add_f32 v69, v56, v60
s_mov_b64 exec, 1""")
        a(f"buffer_store_dwordx4 v[68:71], v27, {SRD_WS}, s58 offen sc1\ns_mov_b64 exec, -1")
        self.stamp(6)
        a.label("L_s_pub_done")
        a(f"s_cmp_lt_u32 s2, {G_FFN}\ns_cbranch_scc1 L_s_exit\ns_cmp_ge_u32 s2, {G_FFN_END}\ns_cbranch_scc1 L_s_exit")
        self.ffn_wave()
        a.label("L_s_exit")
        self.finish()

    def ffn_wave(self):
        a = self.a
        FST = "s59"
        a(f"s_sub_u32 s60, s2, {G_FFN}")
        a(f"s_lshl_b32 s59, s3, 13\ns_add_u32 s59, s59, {STG}")
        self.srd(SRD_A, S_W1, 512 * 2752)
        self.srd(SRD_B, S_W2, 1376 * 1024)
        a("""v_lshrrev_b32 v2, 2, v0
s_lshl_b32 s61, s3, 6
v_add_u32 v2, s61, v2
s_movk_i32 s61, 2752
v_mul_lo_u32 v2, v2, s61
v_and_b32 v3, 3, v0
v_lshl_add_u32 v2, v3, 4, v2
s_lshl_b32 s61, s60, 6
v_add_u32 v2, s61, v2""")
        a(f"s_mov_b32 s53, 0\ns_mov_b32 m0, s59")
        for i in range(4):
            a(f"buffer_load_dwordx4 v2, {SRD_A}, s53 offen {self.wflag} lds")
            a(f"s_add_u32 s53, s53, {16*2752}\ns_add_u32 m0, m0, 1024")
        a("""v_lshrrev_b32 v3, 3, v0
s_lshl_b32 s61, s60, 5
v_add_u32 v3, s61, v3
v_lshlrev_b32 v3, 10, v3
v_and_b32 v4, 7, v0
v_lshl_add_u32 v3, v4, 4, v3
s_lshl_b32 s61, s3, 7
v_add_u32 v3, s61, v3
s_mov_b32 s53, 0""")
        for i in range(4):
            a(f"buffer_load_dwordx4 v3, {SRD_B}, s53 offen {self.wflag} lds")
            if i < 3: a(f"s_add_u32 s53, s53, 8192\ns_add_u32 m0, m0, 1024")
        a(f"""v_and_b32 v4, 31, v0
v_lshlrev_b32 v5, 3, v4
s_lshl_b32 s61, s3, 8
v_add_u32 v5, s61, v5
ds_read_b64 v[40:41], v5 offset:{XP}
ds_read_b64 v[42:43], v5 offset:{GA}
ds_read_b64 v[44:45], v5 offset:{SB}
ds_read_b64 v[46:47], v5 offset:{CB1}""")
        self.tr_addr("v6", 64, "v8", "v9"); a("v_add_u32 v6, s59, v6")
        self.tr_addr("v7", 128, "v8", "v9"); a("v_add_u32 v7, s59, v7")
        a(f"""v_lshrrev_b32 v8, 5, v0
v_lshlrev_b32 v8, 12, v8
v_lshl_add_u32 v8, v4, 4, v8
s_lshl_b32 s61, s3, 9
v_add_u32 v8, s61, v8
s_waitcnt vmcnt(0)""")
        self.stamp(7)
        B1f, B2f = 64, 80
        self.tr_frags(B1f, "v6", 0, 64, 2, 2)
        for t in range(4):
            for h in range(2):
                a(f"ds_read_b64_tr_b16 v[{B2f+4*t+2*h}:{B2f+4*t+2*h+1}], v7 offset:{4096 + 4*h*128 + t*32}")
        a("s_waitcnt lgkmcnt(0)")
        G = [96, 100, 104, 108]
        def issue():
            for i in range(4):
                a(f"s_mov_b32 s53, {Y_OFF + i*8192}\nbuffer_load_dwordx4 v[{G[i]}:{G[i]+3}], v8, {SRD_WS}, s53 offen sc1")
        self.poll(issue, G)
        self.stamp(8)
        a("""v_add_f32 v10, v96, v100
v_add_f32 v11, v97, v101
v_add_f32 v12, v104, v108
v_add_f32 v13, v105, v109
v_add_f32 v10, v10, v12
v_add_f32 v11, v11, v13""")
        a("v_mov_b32 v12, v10\nv_mov_b32 v13, v11\nv_permlane32_swap_b32 v10, v12\nv_permlane32_swap_b32 v11, v13\nv_add_f32 v10, v10, v12\nv_add_f32 v11, v11, v13")
        self.rbf2("v10", "v11", "v10", "v11", "v14")
        a("v_mul_f32 v10, v42, v10\nv_mul_f32 v11, v43, v11")
        self.rbf2("v10", "v11", "v10", "v11", "v14")
        a("v_add_f32 v10, v40, v10\nv_add_f32 v11, v41, v11")
        self.rbf2("v10", "v11", "v10", "v11", "v14")
        a("v_add_f32 v12, v10, v11")
        self.row_reduce("v_add_f32", "v12"); self.xor16_add("v12", "v13")
        a("v_mul_f32 v12, 0x3c800000, v12")
        a("v_sub_f32 v13, v10, v12\nv_sub_f32 v14, v11, v12\nv_mul_f32 v13, v13, v13\nv_fmac_f32 v13, v14, v14")
        self.row_reduce("v_add_f32", "v13"); self.xor16_add("v13", "v14")
        a(f"""v_bfe_u32 v14, v0, 4, 1
v_lshlrev_b32 v14, 5, v14
v_and_b32 v15, 15, v0
v_add_u32 v14, v14, v15
s_lshl_b32 s61, s3, 6
v_add_u32 v16, s61, v14
v_lshlrev_b32 v16, 2, v16
s_lshl_b32 s61, s3, 3
v_mov_b32 v17, s61
ds_write_b32 v16, v10 offset:{X1N}
ds_write_b32 v16, v11 offset:{X1N+64}
ds_write_b64 v17, v[12:13] offset:{STAT}
s_waitcnt lgkmcnt(0)
s_barrier""")
        a(f"""v_and_b32 v15, 7, v0
v_lshlrev_b32 v15, 3, v15
ds_read_b64 v[18:19], v15 offset:{STAT}
s_waitcnt lgkmcnt(0)
v_mov_b32 v20, v18""")
        for ctl in ("row_half_mirror", "quad_perm:[2,3,0,1]", "quad_perm:[1,0,3,2]"): self.dpp("v_add_f32", "v20", "v20", "v20", ctl)
        a("""v_mul_f32 v20, 0x3e000000, v20
v_sub_f32 v21, v18, v20
v_mul_f32 v21, v21, v21
v_fmac_f32 v19, 0x42800000, v21""")
        for ctl in ("row_half_mirror", "quad_perm:[2,3,0,1]", "quad_perm:[1,0,3,2]"): self.dpp("v_add_f32", "v19", "v19", "v19", ctl)
        a("v_mul_f32 v19, 0x3b000000, v19")
        self.layernorm_tail("v20", "v19", ["v10", "v11"], ["v22", "v23"], "v21", "v24", "v25")
        a("v_mul_f32 v22, v22, v46\nv_mul_f32 v23, v23, v47")
        self.rbf2("v22", "v23", "v22", "v23", "v24")
        a("v_add_f32 v22, v22, v44\nv_add_f32 v23, v23, v45\nv_cvt_pk_bf16_f32 v24, v22, v23")
        a(f"""s_lshl_b32 s61, s3, 8
s_add_u32 s61, s61, {ABUF}
v_lshl_add_u32 v25, v14, 1, s61
ds_write_b16 v25, v24
ds_write_b16_d16_hi v25, v24 offset:32
v_lshrrev_b32 v26, 4, v0
v_lshl_add_u32 v26, v26, 4, s61
s_waitcnt lgkmcnt(0)
ds_read_b128 v[112:115], v26
ds_read_b128 v[116:119], v26 offset:64
s_waitcnt lgkmcnt(0)""")
        self.mfma_tiles(120, 112, B1f, 2, 2)
        a(f"""v_and_b32 v27, 31, v0
v_lshlrev_b32 v27, 2, v27
s_lshl_b32 s62, s3, 7
v_add_u32 v28, s62, v27
v_cndmask_b32 v29, v120, v124, {M_G1}
s_mov_b32 exec_hi, 0
ds_write_b32 v28, v29 offset:{FP}
s_mov_b64 exec, -1
s_waitcnt lgkmcnt(0)
s_barrier""")
        for w in range(8): a(f"ds_read_b32 v{30+w}, v27 offset:{FP+128*w}")
        a("""s_waitcnt lgkmcnt(0)
v_add_f32 v30, v30, v31
v_add_f32 v32, v32, v33
v_add_f32 v34, v34, v35
v_add_f32 v36, v36, v37
v_add_f32 v30, v30, v32
v_add_f32 v34, v34, v36
v_add_f32 v30, v30, v34
v_cvt_pk_bf16_f32 v30, v30, v30""")
        a(f"""v_and_b32 v30, {S_HI}, v30
v_max_f32 v30, 0, v30
v_and_b32 v31, 31, v0
v_lshl_add_u32 v31, v31, 1, s61
ds_write_b16_d16_hi v31, v30 offset:128
s_waitcnt lgkmcnt(0)
ds_read_b128 v[112:115], v26 offset:128
s_waitcnt lgkmcnt(0)""")
        self.mfma_tiles(120, 112, B2f, 1, 4)
        a(f"""v_and_b32 v16, 15, v0
v_lshrrev_b32 v17, 4, v0
s_lshl_b32 s61, s3, 2
v_add_u32 v17, s61, v17
s_movk_i32 s61, {F_TILE}
v_mul_lo_u32 v17, v17, s61
v_lshl_add_u32 v17, v16, 3, v17
s_lshl_b32 s61, s60, 7
s_add_u32 s61, s61, {F_OFF}
v_cndmask_b32 v40, v120, v124, {M_G1}
v_cndmask_b32 v40, v40, v128, {M_G2}
v_cndmask_b32 v40, v40, v132, {M_G3}
v_mov_b32 v42, {T0}
v_mov_b32 v43, {T1}
v_mov_b32_dpp v41, v40 quad_perm:[1,1,3,3] row_mask:0xf bank_mask:0xf
s_mov_b32 s62, 0x55555555
s_mov_b32 s63, 0x55555555
s_mov_b64 exec, s[62:63]
buffer_store_dwordx4 v[40:43], v17, {SRD_WS}, s61 offen sc1
s_mov_b64 exec, -1""")
        self.stamp(9)
        a("s_cmp_lg_u32 s3, 0\ns_cbranch_scc1 L_s_exit\ns_cmp_ge_u32 s60, 32\ns_cbranch_scc1 L_s_exit")
        a(f"""v_lshlrev_b32 v8, 4, v0
s_mul_i32 s61, s60, {F_TILE}
s_add_u32 s61, s61, {F_OFF}
v_and_b32 v9, 7, v0
s_lshl_b32 s62, s60, 6
v_lshl_add_u32 v9, v9, 3, s62
ds_read_b64 v[10:11], v9 offset:{X1N}
ds_read_b64 v[12:13], v9 offset:{GBN}
v_mov_b32 v68, 0
v_mov_b32 v69, 0
v_mov_b32 v70, {T0}
v_mov_b32 v71, {T1}""")
        G = [48, 52, 56, 60, 64, 68]
        def issue():
            for i in range(5):
                a(f"buffer_load_dwordx4 v[{G[i]}:{G[i]+3}], v8, {SRD_WS}, s61 offen offset:{(i*1024) if i < 4 else 0} sc1" if i < 4 else
                  f"s_add_u32 s62, s61, 4096\nbuffer_load_dwordx4 v[{G[i]}:{G[i]+3}], v8, {SRD_WS}, s62 offen sc1")
            a(f"s_mov_b64 exec, 0xffffff\nbuffer_load_dwordx4 v[68:71], v8, {SRD_WS}, s62 offen offset:1024 sc1\ns_mov_b64 exec, -1")
        self.poll(issue, G)
        self.stamp(10)
        a("""v_add_f32 v48, v48, v52
v_add_f32 v49, v49, v53
v_add_f32 v56, v56, v60
v_add_f32 v57, v57, v61
v_add_f32 v64, v64, v68
v_add_f32 v65, v65, v69
v_add_f32 v48, v48, v56
v_add_f32 v49, v49, v57
v_add_f32 v48, v48, v64
v_add_f32 v49, v49, v65""")
        self.dpp("v_add_f32", "v48", "v48", "v48", "row_ror:8"); self.dpp("v_add_f32", "v49", "v49", "v49", "row_ror:8")
        self.xor16_add("v48", "v50"); self.xor16_add("v49", "v51")
        self.xor32_add("v48", "v50"); self.xor32_add("v49", "v51")
        a("s_waitcnt lgkmcnt(0)")
        self.rbf2("v48", "v49", "v48", "v49", "v50")
        a("v_mul_f32 v48, v12, v48\nv_mul_f32 v49, v13, v49")
        self.rbf2("v48", "v49", "v48", "v49", "v50")
        a(f"""v_add_f32 v48, v10, v48
v_add_f32 v49, v11, v49
v_cvt_pk_bf16_f32 v50, v48, v49
v_and_b32 v9, 7, v0
v_lshlrev_b32 v9, 2, v9
s_lshl_b32 s62, s60, 5
s_mov_b32 s44, s{S_OUT}
s_mov_b32 s45, s{S_OUT+1}
s_mov_b32 s46, 1024
s_mov_b32 s47, 0x20000
s_mov_b64 exec, 0xff
buffer_store_dword v50, v9, {SRD_A}, s62 offen""")
        a(f"""s_cmp_lg_u32 s60, 0
s_cbranch_scc1 L_s_exit
s_mov_b64 exec, 1
v_mov_b32 v52, s34
v_mov_b32 v53, s35
v_mov_b32 v54, 0
buffer_store_dwordx2 v[52:53], v54, {SRD_WS}, 0 offen sc1""")

    def layernorm_tail(self, mean, var, xs, outs, t0, sd, rs):
        a = self.a
        self.rbf2(mean, var, mean, var, t0)
        a(f"v_add_f32 {var}, 0x3727c5ac, {var}")
        self.rbf(var, var)
        a(f"v_sqrt_f32 {sd}, {var}")
        self.rbf(sd, sd)
        a(f"v_rcp_f32 {rs}, {sd}")
        for x, o in zip(xs, outs): a(f"v_sub_f32 {o}, {x}, {mean}")
        self.rbf2(outs[0], outs[1], outs[0], outs[1], t0)
        for o in outs:
            a(f"v_mul_f32 {t0}, {o}, {rs}\nv_fma_f32 {o}, -{t0}, {sd}, {o}\nv_fma_f32 {o}, {o}, {rs}, {t0}")
        self.rbf2(outs[0], outs[1], outs[0], outs[1], t0)

    def tile128x64_load(self, srd, voff, rowstride, lds_base, soff0):
        self.dma_tile(srd, voff, 16, 8 * rowstride, lds_base, soff0)

    def ctl_waves(self):
        a = self.a
        b0 = (lambda: a("s_barrier")) if self.b0 else (lambda: None)
        a("v_lshlrev_b32 v1, 4, v0\ns_sub_u32 s3, s3, 8")
        a(f"s_lshl_b32 s59, s3, 14\ns_add_u32 s59, s59, {STG}")
        a(f"s_lshl_b32 s58, s3, 8\ns_add_u32 s58, s58, {ABUF + 8*256}")
        a("s_cmp_eq_u32 s3, 1\ns_cbranch_scc1 L_c1")
        self.ctl_common()
        b0()
        a("s_cmp_eq_u32 s3, 0\ns_cbranch_scc1 L_c0")
        a("s_cmp_eq_u32 s3, 2\ns_cbranch_scc0 L_c3")
        a(f"v_mov_b32 v2, -1\nv_lshlrev_b32 v3, 2, v0\ns_mov_b64 exec, 0xff\nds_write_b32 v3, v2 offset:{MBUF}\ns_mov_b64 exec, -1")
        a("s_branch L_c_b1")
        a.label("L_c3")
        if self.touch:
            a(f"""v_and_b32 v2, 7, v0
s_lshl_b32 s52, s2, 3
v_add_u32 v2, s52, v2
v_lshlrev_b32 v2, 15, v2
global_load_dword v8, v2, s[{S_V}:{S_V+1}]""")
        a("s_branch L_c_b1")
        a.label("L_c1")
        self.c1()
        a.label("L_c0")
        self.c0()
        a.label("L_c_b1")
        a("s_waitcnt vmcnt(0) lgkmcnt(0)")
        self.epoch_once()
        self.stamp(7)
        a("s_barrier")
        a(f"s_cmp_ge_u32 s2, {G_WO}\ns_cbranch_scc1 L_c_wo")
        a(f"s_cmp_lt_u32 s2, {G_A2}\ns_cbranch_scc1 L_c_b2")
        a("s_cmp_eq_u32 s3, 1\ns_cbranch_scc1 L_unit_late")
        a("s_cmp_eq_u32 s3, 2\ns_cbranch_scc1 L_collect")
        a(f"s_cmp_lg_u32 s3, 0\ns_cbranch_scc1 L_c_b2\ns_cmp_lt_u32 s2, {G_FFN}\ns_cbranch_scc1 L_c_b2\ns_cmp_ge_u32 s2, {G_FFN_END}\ns_cbranch_scc1 L_c_b2")
        self.ffn_vectors()
        a("s_branch L_c_b2")
        a.label("L_collect")
        a(f"s_cmp_ge_u32 s2, {G_COL_END}\ns_cbranch_scc1 L_c_b2")
        self.collect()
        a.label("L_c_b2")
        a("s_waitcnt vmcnt(0) lgkmcnt(0)\ns_barrier")
        a("s_add_u32 s3, s3, 8")
        self.finish()
        a.label("L_c_wo")
        self.wo_wave()

    def ctl_common(self):
        a = self.a
        a("s_waitcnt lgkmcnt(0)")
        a(f"s_load_dwordx2 s[34:35], s[{S_WS}:{S_WS+1}], 0")
        self.srd(SRD_WS, S_WS, 0x200000 if self.stamps else 0x100000)
        self.consts()
        a("s_mov_b32 s75, 0")

    def collect(self):
        a = self.a
        a(f"s_sub_u32 s60, s2, {G_A2}\ns_lshl_b32 s56, s60, 11\ns_add_u32 s56, s56, {AP_OFF + G_A2 * 512}")
        a(f"s_lshl_b32 s57, s60, 9\ns_add_u32 s57, s57, {A2_OFF}")
        def issue():
            a(f"buffer_load_dwordx4 v[8:11], v1, {SRD_WS}, s56 offen sc1\nbuffer_load_dwordx4 v[12:15], v1, {SRD_WS}, s56 offen offset:1024 sc1")
        self.poll(issue, [8, 12], sleep=16)
        a("v_add_f32 v16, v8, v12\nv_add_f32 v17, v9, v13")
        self.xor32_add("v16", "v20"); self.xor32_add("v17", "v21")
        a(f"""v_mov_b32 v18, {T0}
v_mov_b32 v19, {T1}
s_mov_b32 exec_hi, 0
buffer_store_dwordx4 v[16:19], v1, {SRD_WS}, s57 offen sc1
s_mov_b64 exec, -1""")
        self.stamp(2)

    def epoch_once(self):
        a = self.a
        L = self.lab("ep")
        a(f"s_cmp_eq_u32 s75, 1\ns_cbranch_scc1 {L}")
        self.epoch()
        a("s_mov_b32 s75, 1")
        a.label(L)

    def c1(self):
        a = self.a
        a(f"s_mov_b32 s39, 0\ns_cmp_lt_u32 s2, {G_A2}\ns_cbranch_scc1 L_unit")
        self.ctl_common()
        if self.b0: a("s_barrier")
        a("s_branch L_c_b1")
        a.label("L_unit_late")
        a("s_mov_b32 s39, 1")
        a.label("L_unit")
        a("""s_lshr_b32 s61, s2, 2
s_lshl_b32 s61, s61, 7
s_and_b32 s60, s2, 3
s_lshl_b32 s60, s60, 7
v_lshrrev_b32 v4, 3, v0
v_mul_u32_u24 v4, 6144, v4
v_and_b32 v5, 7, v0
v_lshl_add_u32 v4, v5, 4, v4
v_add_u32 v4, s61, v4
v_lshlrev_b32 v5, 2, v0
s_lshl_b32 s56, s60, 1
s_mul_i32 s57, s60, 6144
s_waitcnt lgkmcnt(0)""")
        self.srd(SRD_A, S_WM, 512 * 6144)
        self.srd(SRD_B, S_C, 1024)
        a(f"buffer_load_dword v10, v5, {SRD_B}, s56 offen")
        self.dma_tile(SRD_A, "v4", 16, 8 * 6144, "s59", "s57")
        a("s_cmp_eq_u32 s39, 1\ns_cbranch_scc1 L_unit_go")
        if self.b0: a("s_barrier")
        self.ctl_common()
        a.label("L_unit_go")
        self.tr_addr("v6", 128, "v8", "v9"); a("v_add_u32 v6, s59, v6")
        a("v_lshrrev_b32 v7, 4, v0\nv_lshl_add_u32 v7, v7, 4, s58\nv_lshl_add_u32 v12, v0, 2, s58")
        a("s_waitcnt vmcnt(16)")
        a(f"v_lshlrev_b32 v8, 16, v10\nv_and_b32 v9, {S_HI}, v10")
        a(f"""v_mul_f32 v10, 0xbfb8aa3b, v8
v_mul_f32 v11, 0xbfb8aa3b, v9
v_exp_f32 v10, v10
v_exp_f32 v11, v11
v_add_f32 v10, 1.0, v10
v_add_f32 v11, 1.0, v11
v_min_f32 v10, 0x7f7fffff, v10
v_min_f32 v11, 0x7f7fffff, v11
v_rcp_f32 v13, v10
v_rcp_f32 v14, v11""")
        a("""v_mul_f32 v15, v8, v13
v_mul_f32 v16, v9, v14
v_fma_f32 v17, -v15, v10, v8
v_fma_f32 v18, -v16, v11, v9
v_fma_f32 v17, v17, v13, v15
v_fma_f32 v18, v18, v14, v16
v_cvt_pk_bf16_f32 v10, v17, v18
ds_write_b32 v12, v10
s_waitcnt lgkmcnt(0)""")
        for k in range(4): a(f"ds_read_b128 v[{108+4*k}:{111+4*k}], v7 offset:{64*k}")
        a("s_waitcnt vmcnt(0)")
        self.tr_frags(40, "v6", 0, 128, 4, 4)
        a("s_waitcnt lgkmcnt(0)")
        self.mfma_tiles(124, 108, 40, 4, 4)
        self.epoch_once()
        a(f"""s_lshl_b32 s63, s2, 9
s_add_u32 s63, s63, {AP_OFF}
v_cndmask_b32 v140, v124, v132, {M_G1}
v_cndmask_b32 v141, v128, v136, {M_G1}
v_mov_b32 v142, {T0}
v_mov_b32 v143, {T1}
s_mov_b32 exec_hi, 0
buffer_store_dwordx4 v[140:143], v1, {SRD_WS}, s63 offen sc1
s_mov_b64 exec, -1""")
        self.stamp(1)
        a("s_cmp_eq_u32 s39, 1\ns_cbranch_scc1 L_c_b2\ns_branch L_c_b1")

    def c0(self):
        a = self.a
        if "noc0" in self.exp: a("s_branch L_c_b1")
        a("s_lshr_b32 s60, s2, 3\ns_and_b32 s61, s2, 7")
        self.srd(SRD_A, S_WQ, 512 * 8192)
        self.srd(SRD_B, S_X, 1024)
        a("""v_lshrrev_b32 v4, 4, v0
s_lshl_b32 s56, s61, 6
v_add_u32 v4, s56, v4
v_lshlrev_b32 v4, 13, v4
v_and_b32 v5, 15, v0
v_lshl_add_u32 v4, v5, 4, v4
s_lshl_b32 s56, s60, 8
v_add_u32 v4, s56, v4""")
        a(f"buffer_load_dwordx4 v[24:27], v1, {SRD_B}, 0 offen")
        a("""v_bfe_u32 v6, v0, 4, 1
v_lshlrev_b32 v6, 5, v6
v_add_u32 v6, v6, v5
s_lshl_b32 s56, s61, 7
v_lshl_add_u32 v7, v6, 1, s56""")
        a(f"buffer_load_ushort v28, v7, {SRD_B}, 0 offen\nbuffer_load_ushort v29, v7, {SRD_B}, 0 offen offset:32")
        self.dma_tile(SRD_A, "v4", 16, 4 * 8192, "s59")
        a("s_waitcnt vmcnt(16)")
        self.stamp(1)
        for e in range(4): a(f"v_lshlrev_b32 v{8+2*e}, 16, v{24+e}\nv_and_b32 v{9+2*e}, {S_HI}, v{24+e}")
        a("""v_add_f32 v16, v8, v9
v_add_f32 v17, v10, v11
v_add_f32 v18, v12, v13
v_add_f32 v19, v14, v15
v_add_f32 v16, v16, v17
v_add_f32 v18, v18, v19
v_add_f32 v16, v16, v18""")
        self.wave_reduce_to_s("v_add_f32", "v16", "s56")
        a("v_mov_b32 v20, s56\nv_mul_f32 v20, 0x3b000000, v20")
        for e in range(8): a(f"v_sub_f32 v{8+e}, v{8+e}, v20")
        a("v_mul_f32 v16, v8, v8")
        for e in range(1, 8): a(f"v_fmac_f32 v16, v{8+e}, v{8+e}")
        self.wave_reduce_to_s("v_add_f32", "v16", "s56")
        a("v_mov_b32 v19, s56\nv_mul_f32 v19, 0x3b000000, v19")
        a("v_lshlrev_b32 v28, 16, v28\nv_lshlrev_b32 v29, 16, v29")
        self.layernorm_tail("v20", "v19", ["v28", "v29"], ["v30", "v31"], "v21", "v22", "v23")
        a("s_waitcnt lgkmcnt(0)")
        self.epoch(); a("s_mov_b32 s75, 1")
        self.tr_addr("v144", 256, "v8", "v9"); a("v_add_u32 v144, s59, v144")
        a("s_waitcnt vmcnt(0)")
        self.tr_frags(40, "v144", 0, 256, 2, 8)
        a(f"""v_lshrrev_b32 v8, 5, v0
v_lshlrev_b32 v8, 14, v8
v_and_b32 v9, 31, v0
v_lshl_add_u32 v8, v9, 4, v8
s_lshl_b32 s56, s61, 11
s_add_u32 s56, s56, {AP_OFF}
v_add_u32 v8, s56, v8
s_waitcnt lgkmcnt(0)""")
        self.stamp(2)
        G = [104, 108, 112, 116]
        if self.hintA:
            self.poll(lambda: a(f"buffer_load_dwordx4 v[116:119], v8, {SRD_WS}, 0 offen offset:1536 sc1"), [116], sleep=self.slA, pre=True)
        def issueA():
            for i in range(4): a(f"buffer_load_dwordx4 v[{G[i]}:{G[i]+3}], v8, {SRD_WS}, 0 offen offset:{512*i} sc1")
        self.poll(issueA, G, sleep=self.slA, pre=True)
        self.stamp(3)
        a("""v_add_f32 v8, v104, v108
v_add_f32 v9, v105, v109
v_add_f32 v10, v112, v116
v_add_f32 v11, v113, v117
v_add_f32 v8, v8, v10
v_add_f32 v9, v9, v11""")
        self.rbf2("v8", "v9", "v8", "v9", "v10")
        a("v_mov_b32 v10, v8\nv_mov_b32 v11, v9\nv_permlane32_swap_b32 v8, v10\nv_permlane32_swap_b32 v9, v11")
        a("v_add_f32 v10, 1.0, v10\nv_add_f32 v11, 1.0, v11")
        self.rbf2("v10", "v11", "v10", "v11", "v12")
        a("v_mul_f32 v10, v30, v10\nv_mul_f32 v11, v31, v11")
        self.rbf2("v10", "v11", "v10", "v11", "v12")
        a("v_add_f32 v10, v10, v8\nv_add_f32 v11, v11, v9\nv_cvt_pk_bf16_f32 v12, v10, v11")
        a("""v_lshl_add_u32 v13, v6, 1, s58
ds_write_b16 v13, v12
ds_write_b16_d16_hi v13, v12 offset:32
v_lshrrev_b32 v14, 4, v0
v_lshl_add_u32 v14, v14, 4, s58
s_waitcnt lgkmcnt(0)
ds_read_b128 v[136:139], v14
ds_read_b128 v[140:143], v14 offset:64
s_waitcnt lgkmcnt(0)""")
        self.mfma_tiles(104, 136, 40, 2, 8)
        a(f"""v_cndmask_b32 v8, v104, v112, {M_G1}
v_cndmask_b32 v9, v108, v116, {M_G1}
v_cndmask_b32 v8, v8, v120, {M_G2}
v_cndmask_b32 v9, v9, v124, {M_G2}
v_cndmask_b32 v8, v8, v128, {M_G3}
v_cndmask_b32 v9, v9, v132, {M_G3}
v_mov_b32 v10, {T0}
v_mov_b32 v11, {T1}
s_lshl_b32 s56, s2, 10
s_add_u32 s56, s56, {B_OFF}
buffer_store_dwordx4 v[8:11], v1, {SRD_WS}, s56 offen sc1""")
        self.stamp(4)
        a(f"s_lshl_b32 s56, s60, 13\ns_add_u32 s56, s56, {B_OFF}\ns_add_u32 s57, s56, 4096")
        G = [104 + 4 * i for i in range(8)]
        if self.hintB:
            a("v_and_b32 v15, 7, v0\nv_lshlrev_b32 v15, 10, v15\nv_add_u32 v15, 1008, v15")
            self.poll(lambda: a(f"buffer_load_dwordx4 v[104:107], v15, {SRD_WS}, s56 offen sc1"), [104], sleep=self.slB, pre=True)
        def issueB():
            for i in range(8):
                a(f"buffer_load_dwordx4 v[{G[i]}:{G[i]+3}], v1, {SRD_WS}, {'s56' if i < 4 else 's57'} offen offset:{1024*(i&3)} sc1")
        self.poll(issueB, G, sleep=self.slB, pre=True)
        self.stamp(5)
        a("""v_add_f32 v8, v104, v108
v_add_f32 v9, v105, v109
v_add_f32 v10, v112, v116
v_add_f32 v11, v113, v117
v_add_f32 v12, v120, v124
v_add_f32 v13, v121, v125
v_add_f32 v14, v128, v132
v_add_f32 v15, v129, v133
v_add_f32 v8, v8, v10
v_add_f32 v9, v9, v11
v_add_f32 v12, v12, v14
v_add_f32 v13, v13, v15
v_add_f32 v8, v8, v12
v_add_f32 v9, v9, v13
v_cvt_pk_bf16_f32 v8, v8, v9""")
        a(f"""v_lshrrev_b32 v9, 4, v0
v_lshlrev_b32 v9, 5, v9
v_add_u32 v9, v9, v5
v_lshlrev_b32 v9, 1, v9
ds_write_b16 v9, v8 offset:{QBUF}
ds_write_b16_d16_hi v9, v8 offset:{QBUF+32}""")
        self.stamp(6)

    def ffn_vectors(self):
        a = self.a
        self.srd(SRD_B, S_X, 1024)
        a(f"""v_and_b32 v5, 15, v0
v_bfe_u32 v6, v0, 4, 1
v_lshlrev_b32 v6, 5, v6
v_add_u32 v6, v6, v5
v_lshrrev_b32 v7, 5, v0
v_lshl_add_u32 v7, v7, 6, v6
v_lshlrev_b32 v8, 1, v7
v_lshlrev_b32 v9, 3, v0
v_lshlrev_b32 v3, 2, v7""")
        for i in range(4):
            a(f"buffer_load_ushort v{8*i+104}, v8, {SRD_B}, 0 offen offset:{256*i}\nbuffer_load_ushort v{8*i+105}, v8, {SRD_B}, 0 offen offset:{256*i+32}")
        a("s_waitcnt vmcnt(0)")
        for i in range(4):
            a(f"v_lshlrev_b32 v{8*i+104}, 16, v{8*i+104}\nv_lshlrev_b32 v{8*i+105}, 16, v{8*i+105}")
            a(f"ds_write_b64 v9, v[{8*i+104}:{8*i+105}] offset:{XP+512*i}")
        for half in range(2):
            G = [40 + 4 * i for i in range(8)]
            def issue():
                for i in range(8):
                    k = half * 8 + i
                    a(f"s_mov_b32 s56, {A2_OFF + (k & ~3) * 1024}\nbuffer_load_dwordx4 v[{G[i]}:{G[i]+3}], v1, {SRD_WS}, s56 offen offset:{1024*(k&3)} sc1")
            self.poll(issue, G, sleep=8)
            for i in range(8):
                k = half * 8 + i; r = G[i]
                self.rbf2(f"v{r}", f"v{r+1}", f"v{r}", f"v{r+1}", "v10")
                if k < 4: a(f"ds_write_b64 v9, v[{r}:{r+1}] offset:{GA + 512*k}")
                elif k < 8: a(f"ds_write_b64 v9, v[{r}:{r+1}] offset:{SB + 512*(k-4)}")
                elif k < 12:
                    a(f"v_add_f32 v{r}, 1.0, v{r}\nv_add_f32 v{r+1}, 1.0, v{r+1}")
                    self.rbf2(f"v{r}", f"v{r+1}", f"v{r}", f"v{r+1}", "v10")
                    a(f"ds_write_b64 v9, v[{r}:{r+1}] offset:{CB1 + 512*(k-8)}")
                else:
                    a(f"ds_write_b32 v3, v{r} offset:{GBN + 512*(k-12)}\nds_write_b32 v3, v{r+1} offset:{GBN + 512*(k-12) + 64}")

    def wo_wave(self):
        a = self.a
        a(f"s_sub_u32 s60, s2, {G_WO}\ns_lshr_b32 s61, s60, 3\ns_and_b32 s62, s60, 7")
        a("s_lshl_b32 s63, s61, 2\ns_add_u32 s63, s63, s3")
        self.srd(SRD_A, S_WO, 4096 * 1024)
        a("""v_lshrrev_b32 v4, 3, v0
v_lshlrev_b32 v4, 10, v4
v_and_b32 v5, 7, v0
v_lshl_add_u32 v4, v5, 4, v4
s_lshl_b32 s56, s62, 7
v_add_u32 v4, s56, v4
s_lshl_b32 s57, s63, 17""")
        self.tr_addr("v6", 128, "v8", "v9"); a("v_add_u32 v6, s59, v6")
        a("s_barrier")
        self.dma_tile(SRD_A, "v4", 16, 8192, "s59", "s57")
        a(f"""v_and_b32 v7, 7, v0
v_lshlrev_b32 v7, 4, v7
s_lshl_b32 s56, s63, 7
s_add_u32 s56, s56, {ML_OFF}
s_lshl_b32 s57, s63, 13
s_add_u32 s57, s57, {O_OFF}
s_add_u32 s55, s57, 4096
v_lshl_add_u32 v3, v0, 2, s58
v_lshrrev_b32 v149, 4, v0
v_lshl_add_u32 v149, v149, 4, s58""")
        self.stamp(8)
        a("s_barrier")
        a("s_waitcnt vmcnt(0)")
        self.stamp(9)
        self.tr_frags(40, "v6", 0, 128, 4, 4)
        a("s_waitcnt lgkmcnt(0)")
        self.stamp(6)
        G = [8 + 4 * i for i in range(8)]
        def issue():
            a(f"buffer_load_dwordx4 v[104:107], v7, {SRD_WS}, s56 offen sc1")
            for i in range(8):
                a(f"buffer_load_dwordx4 v[{G[i]}:{G[i]+3}], v1, {SRD_WS}, {'s57' if i < 4 else 's55'} offen offset:{1024*(i&3)} sc1")
        self.poll(issue, [104] + G)
        self.stamp(10)
        a("v_mov_b32 v140, v104")
        for ctl in ("row_half_mirror", "quad_perm:[2,3,0,1]", "quad_perm:[1,0,3,2]"): self.dpp("v_max_f32", "v140", "v140", "v140", ctl)
        a(f"v_sub_f32 v141, v104, v140\nv_mul_f32 v141, {LOG2E}, v141\nv_exp_f32 v141, v141\nv_mul_f32 v142, v141, v105")
        for ctl in ("row_half_mirror", "quad_perm:[2,3,0,1]", "quad_perm:[1,0,3,2]"): self.dpp("v_add_f32", "v142", "v142", "v142", ctl)
        a("v_rcp_f32 v143, v142")
        a("v_mul_f32 v144, v141, v143\nv_fma_f32 v145, -v144, v142, v141\nv_fma_f32 v144, v145, v143, v144")
        a("v_mov_b32 v146, 0\nv_mov_b32 v147, 0")
        for s in range(8):
            a(f"v_fmac_f32_dpp v146, v144, v{G[s]} row_newbcast:{s} row_mask:0xf bank_mask:0xf")
            a(f"v_fmac_f32_dpp v147, v144, v{G[s]+1} row_newbcast:{s} row_mask:0xf bank_mask:0xf")
        a("v_cvt_pk_bf16_f32 v148, v146, v147\nds_write_b32 v3, v148\ns_waitcnt lgkmcnt(0)")
        for s in range(4): a(f"ds_read_b128 v[{108+4*s}:{111+4*s}], v149 offset:{64*s}")
        a("s_waitcnt lgkmcnt(0)")
        self.mfma_tiles(124, 108, 40, 4, 4)
        a(f"""v_lshlrev_b32 v10, 2, v0
s_lshl_b32 s56, s3, 8
v_add_u32 v10, s56, v10
v_cndmask_b32 v11, v124, v128, {M_G1}
v_cndmask_b32 v11, v11, v132, {M_G2}
v_cndmask_b32 v11, v11, v136, {M_G3}
ds_write_b32 v10, v11 offset:{YP}
s_waitcnt lgkmcnt(0)
s_barrier""")
        a("s_cmp_lg_u32 s3, 0\ns_cbranch_scc1 L_wo_done")
        a(f"""v_bfe_u32 v12, v0, 4, 1
v_lshlrev_b32 v12, 5, v12
v_and_b32 v13, 15, v0
v_add_u32 v12, v12, v13
v_lshlrev_b32 v12, 2, v12
v_add_u32 v12, {YP}, v12""")
        for w in range(4): a(f"ds_read2_b32 v[{16+2*w}:{17+2*w}], v12 offset0:{64*w} offset1:{64*w+16}")
        a(f"""s_lshl_b32 s56, s60, 9
s_add_u32 s56, s56, {Y_OFF}
v_mov_b32 v26, {T0}
v_mov_b32 v27, {T1}
s_waitcnt lgkmcnt(0)
v_add_f32 v16, v16, v18
v_add_f32 v17, v17, v19
v_add_f32 v20, v20, v22
v_add_f32 v21, v21, v23
v_add_f32 v24, v16, v20
v_add_f32 v25, v17, v21
s_mov_b32 exec_hi, 0
buffer_store_dwordx4 v[24:27], v1, {SRD_WS}, s56 offen sc1""")
        self.stamp(11)
        a.label("L_wo_done")
        a("s_add_u32 s3, s3, 8")
        self.finish()

def generate(**kw):
    g = Gen(**kw)
    return g.build()

if __name__ == "__main__":
    import argparse
    p = argparse.ArgumentParser()
    p.add_argument("-o", default="k.s"); p.add_argument("-W", type=int, default=3); p.add_argument("--stamps", action="store_true")
    p.add_argument("--nohintA", action="store_true"); p.add_argument("--nohintB", action="store_true"); p.add_argument("--noprefetch", action="store_true")
    p.add_argument("--pfmax", type=int, default=256); p.add_argument("--nob0", action="store_true"); p.add_argument("--notouch", action="store_true"); p.add_argument("--exp", default=""); p.add_argument("--slA", type=int, default=4); p.add_argument("--slB", type=int, default=2); p.add_argument("--kv", default="nt"); p.add_argument("--wflag", default="nt")
    x = p.parse_args()
    open(x.o, "w").write(generate(W=x.W, stamps=x.stamps, hintA=not x.nohintA, hintB=not x.nohintB, prefetch=not x.noprefetch, kvflag=x.kv, wflag=x.wflag, exp=x.exp, slA=x.slA, slB=x.slB, pfmax=x.pfmax, b0=not x.nob0, touch=not x.notouch))
```

```python
import sys
from asmlib import Asm

NAME = "adaLN_cond__gqa_block_cached__dense_activation_relu__decode_kernel"

A1_OFF = 0x1000; A2_OFF = 0x9000; ML_OFF = 0xD000; Y_OFF = 0x10000; AP_OFF = 0xD0000
B_OFF = 0x20000; O_OFF = 0x60000; F_OFF = 0xA0000; STAMP_OFF = 0x100000
F_TILE = 48 * 128
G_A2 = 64; G_COL_END = 96; G_FFN = 96; G_FFN_END = 139; G_WO = 192
CODE_PAD = 24576
QBUF = 0
MBUF = 256
LBUF = 288
STAT = 320
ABUF = 512
OBUF = 4096
YP = 8192
FP = 9216
XP = 10240; GA = XP + 2048; SB = GA + 2048; CB1 = SB + 2048; GBN = CB1 + 2048; X1N = GBN + 2048
STG = 24576
LDS_BYTES = STG + 65536
S_X, S_K, S_V, S_WQ, S_WO, S_W1, S_W2 = 8, 10, 12, 14, 16, 20, 22
S_C, S_WM, S_OUT, S_DBG, S_WS = 24, 26, 28, 30, 32
S_E = 34; T0, T1 = "s36", "s37"; SPIN = "s38"
SRD_WS = "s[40:43]"; SRD_A = "s[44:47]"; SRD_B = "s[48:51]"
M_B1 = "s[64:65]"; M_B0 = "s[66:67]"; M_G1 = "s[68:69]"; M_G2 = "s[70:71]"; M_G3 = "s[72:73]"
S_HI = "s74"
STAMP0 = 76
RING = 40
LOG2E = "0x3fb8aa3b"; SCALE = "0x3db504f3"

class Gen:
    def __init__(self, W=3, stamps=False, hintA=True, hintB=True, kvflag="nt", prefetch=True, wflag="nt", dbg=False, exp="", slA=4, slB=2, pfmax=256, b0=True, touch=True):
        self.a = Asm(); self.W = W; self.stamps = stamps; self.hintA = hintA; self.hintB = hintB
        self.kv = kvflag; self.prefetch = prefetch; self.wflag = wflag; self.uid = 0; self.dbg = dbg; self.exp = exp.split(','); self.slA = slA; self.slB = slB; self.pfmax = pfmax; self.b0 = b0; self.touch = touch
    def lab(self, p):
        self.uid += 1; return f"L_{p}_{self.uid}"
    def stamp(self, i):
        if self.stamps: self.a(f"s_memrealtime s[{STAMP0+2*i}:{STAMP0+2*i+1}]")
    def finish(self):
        a = self.a
        if self.stamps:
            a("s_waitcnt lgkmcnt(0)\ns_mov_b64 exec, -1")
            a("v_mov_b32 v2, 0")
            for i in range(24): a(f"v_writelane_b32 v2, s{STAMP0+i}, {i}")
            a(f"s_mul_i32 s52, s2, 12\ns_add_u32 s52, s52, s3\ns_lshl_b32 s52, s52, 7\ns_add_u32 s52, s52, {STAMP_OFF}")
            a("v_lshlrev_b32 v3, 2, v0\ns_mov_b32 exec_hi, 0")
            a(f"buffer_store_dword v2, v3, {SRD_WS}, s52 offen")
        a("s_endpgm")
    def rbf(self, dst, src):
        self.a(f"v_cvt_pk_bf16_f32 {dst}, {src}, {src}\nv_and_b32 {dst}, {S_HI}, {dst}")
    def rbf2(self, d0, d1, s0, s1, tmp):
        self.a(f"v_cvt_pk_bf16_f32 {tmp}, {s0}, {s1}\nv_lshlrev_b32 {d0}, 16, {tmp}\nv_and_b32 {d1}, {S_HI}, {tmp}")
    def dpp(self, op, d, s0, s1, ctl, rm="0xf", bm="0xf"):
        self.a(f"{op}_dpp {d}, {s0}, {s1} {ctl} row_mask:{rm} bank_mask:{bm}")
    def row_reduce(self, op, v, steps=(8, 4, 2, 1)):
        for k in steps: self.dpp(op, v, v, v, f"row_ror:{k}")
    def wave_reduce_to_s(self, op, v, s):
        self.row_reduce(op, v)
        self.dpp(op, v, v, v, "row_bcast:15", rm="0xa")
        self.dpp(op, v, v, v, "row_bcast:31", rm="0xc")
        self.a(f"v_readlane_b32 {s}, {v}, 63")
    def xor32_add(self, v, t):
        self.a(f"v_mov_b32 {t}, {v}\nv_permlane32_swap_b32 {v}, {t}\nv_add_f32 {v}, {v}, {t}")
    def xor16_add(self, v, t):
        self.a(f"v_mov_b32 {t}, {v}\nv_permlane16_swap_b32 {v}, {t}\nv_add_f32 {v}, {v}, {t}")
    def tagcheck(self, regs, acc, first=True):
        a = self.a
        for r in regs:
            if first:
                a(f"v_xor_b32 {acc}, {T0}, v{r+2}"); first = False
            else:
                a(f"v_bitop3_b32 {acc}, {acc}, {T0}, v{r+2} bitop3:0xf6")
            a(f"v_bitop3_b32 {acc}, {acc}, {T1}, v{r+3} bitop3:0xf6")
    def poll(self, issue, regs, acc="v2", sleep=0, pre=False):
        a = self.a
        L = self.lab("poll"); D = self.lab("pok")
        a.label(L)
        issue()
        a("s_waitcnt vmcnt(0)")
        self.tagcheck(regs, acc)
        a(f"v_cmp_ne_u32 vcc, 0, {acc}")
        if "nopoll" in self.exp and pre: a(f"s_branch {D}")
        a(f"s_cbranch_vccz {D}")
        a(f"s_cmp_eq_u32 {SPIN}, 0")
        a(f"s_cbranch_scc1 {D}")
        a(f"s_sub_u32 {SPIN}, {SPIN}, 1")
        if sleep: a(f"s_sleep {sleep}")
        a(f"s_branch {L}")
        a.label(D)
    def srd(self, srd, base, size, add=None):
        n = int(srd[2:srd.index(':')])
        if add is None: self.a(f"s_mov_b32 s{n}, s{base}\ns_mov_b32 s{n+1}, s{base+1}")
        else: self.a(f"s_add_u32 s{n}, s{base}, {add}\ns_addc_u32 s{n+1}, s{base+1}, 0")
        self.a(f"s_mov_b32 s{n+2}, {size}\ns_mov_b32 s{n+3}, 0x20000")
    def consts(self):
        a = self.a
        a(f"s_mov_b32 {S_HI}, 0xffff0000\ns_mov_b32 {SPIN}, 0x40000")
        a("s_mov_b32 s64, 0xcccccccc\ns_mov_b32 s65, 0xcccccccc\ns_mov_b32 s66, 0xaaaaaaaa\ns_mov_b32 s67, 0xaaaaaaaa")
        a("s_mov_b32 s68, 0xffff0000\ns_mov_b32 s69, 0\ns_mov_b32 s70, 0\ns_mov_b32 s71, 0xffff\ns_mov_b32 s72, 0\ns_mov_b32 s73, 0xffff0000")
    def epoch(self):
        self.a(f"s_add_u32 s34, s34, 1\ns_addc_u32 s35, s35, 0\ns_xor_b32 {T0}, s34, 0x5bd1e995\ns_xor_b32 {T1}, s35, 0x9e3779b9")
    def dma_tile(self, srd, voff, n, step, lds_base, soff0="0"):
        a = self.a
        a(f"s_mov_b32 s53, {soff0}\ns_mov_b32 m0, {lds_base}")
        for i in range(n):
            a(f"buffer_load_dwordx4 {voff}, {srd}, s53 offen {self.wflag} lds")
            if i < n - 1: a(f"s_add_u32 s53, s53, {step}\ns_add_u32 m0, m0, 1024")
    def tr_addr(self, dst, rowbytes, t0, t1):
        sh = rowbytes.bit_length() - 1
        self.a(f"""v_lshrrev_b32 {t0}, 4, v0
v_bfe_u32 {t1}, v0, 2, 2
v_lshl_add_u32 {t0}, {t0}, 3, {t1}
v_lshlrev_b32 {t0}, {sh}, {t0}
v_and_b32 {t1}, 3, v0
v_lshl_add_u32 {dst}, {t1}, 3, {t0}""")
    def tr_frags(self, base_reg, vaddr, lds_base, rowbytes, nsteps, ntiles):
        for s in range(nsteps):
            for t in range(ntiles):
                r = base_reg + 4 * (s * ntiles + t)
                for h in range(2):
                    off = lds_base + (32 * s + 4 * h) * rowbytes + t * 32
                    self.a(f"ds_read_b64_tr_b16 v[{r+2*h}:{r+2*h+1}], {vaddr} offset:{off}")
    def mfma_tiles(self, dbase, abase, bbase, nsteps, ntiles, zero_first=True):
        for s in range(nsteps):
            for t in range(ntiles):
                d = f"v[{dbase+4*t}:{dbase+4*t+3}]"
                c = "0" if (s == 0 and zero_first) else d
                b = bbase + 4 * (s * ntiles + t)
                self.a(f"v_mfma_f32_16x16x32_bf16 {d}, v[{abase+4*s}:{abase+4*s+3}], v[{b}:{b+3}], {c}")

    def build(self):
        a = self.a; W = self.W
        a.raw(f"; @launch grid=(256,1,1) block=(768,1,1) lds={LDS_BYTES}")
        a.raw('.amdgcn_target "amdgcn-amd-amdhsa--gfx950"')
        a.raw(".text"); a.raw(f".globl {NAME}"); a.raw(".p2align 8"); a.raw(f".type {NAME},@function"); a.raw(f"{NAME}:")
        a("s_cmp_ge_u32 s2, 256\ns_cbranch_scc1 L_exit")
        self.stamp(0)
        a("""s_load_dwordx16 s[8:23], s[0:1], 0
s_load_dwordx8 s[24:31], s[0:1], 64
s_load_dwordx2 s[32:33], s[0:1], 96
v_lshrrev_b32 v1, 6, v0
v_and_b32 v0, 63, v0
v_readfirstlane_b32 s3, v1""")
        if self.prefetch:
            a(f"s_cmp_lg_u32 s3, 11\ns_cbranch_scc1 L_nopf")
            if self.pfmax < 256: a(f"s_cmp_ge_u32 s2, {self.pfmax}\ns_cbranch_scc1 L_nopf")
            a("s_getpc_b64 s[52:53]")
            a.label("L_pc")
            a(f"s_sub_u32 s52, s52, L_pc-{NAME}\ns_subb_u32 s53, s53, 0\nv_lshlrev_b32 v2, 7, v0")
            for i in range(CODE_PAD // 8192):
                a(f"global_load_dword v{4+i}, v2, s[52:53]")
                if i < CODE_PAD // 8192 - 1: a("v_add_u32 v2, 0x2000, v2")
            a.label("L_nopf")
        a("s_cmp_ge_u32 s3, 8\ns_cbranch_scc1 L_ctl")
        self.stream_wave()
        a.label("L_ctl")
        self.ctl_waves()
        a.label("L_exit")
        a("s_endpgm")
        a.raw(f".fill ({CODE_PAD} - (. - {NAME})) / 4, 4, 0xbf800000")
        a.raw("L_code_end:")
        a.raw('.section .rodata,"a"'); a.raw(".p2align 6"); a.raw(f".amdhsa_kernel {NAME}")
        for l in ["  .amdhsa_next_free_vgpr 168", "  .amdhsa_next_free_sgpr 102", "  .amdhsa_accum_offset 168",
                  "  .amdhsa_group_segment_fixed_size 0", "  .amdhsa_kernarg_size 104", "  .amdhsa_user_sgpr_count 2",
                  "  .amdhsa_user_sgpr_kernarg_segment_ptr 1", "  .amdhsa_system_sgpr_workgroup_id_x 1", ".end_amdhsa_kernel"]:
            a.raw(l)
        return a.text()

    def stream_wave(self):
        a = self.a; W = self.W; kv = self.kv
        ring = lambda j: RING + 4 * j
        a("""s_lshl_b32 s52, s2, 3
s_add_u32 s52, s52, s3
s_lshl_b32 s52, s52, 15
v_lshlrev_b32 v1, 4, v0
s_lshl_b32 s54, s3, 2
s_add_u32 s54, s54, s2
s_and_b32 s54, s54, 31
s_lshl_b32 s54, s54, 10
s_waitcnt lgkmcnt(0)""")
        self.srd(SRD_A, S_K, 32768, "s52")
        if self.b0: a("s_barrier")
        def load(j, srd):
            r = ring(j)
            a(f"buffer_load_dwordx4 v[{r}:{r+3}], v1, {srd}, s54 offen {kv}")
            a("s_add_u32 s54, s54, 1024\ns_and_b32 s54, s54, 0x7fff")
        for j in range(W): load(j, SRD_A)
        a(f"s_load_dwordx2 s[34:35], s[{S_WS}:{S_WS+1}], 0")
        self.srd(SRD_B, S_V, 32768, "s52")
        self.srd(SRD_WS, S_WS, 0x200000 if self.stamps else 0x100000)
        self.consts()
        for j in range(W, 32):
            a(f"s_waitcnt vmcnt({W-1})")
            load(j, SRD_A)
            if j == W: self.stamp(11)
            if j == W + 1:
                a("s_waitcnt lgkmcnt(0)"); self.epoch()
        self.stamp(1)
        a("v_and_b32 v2, 15, v0\nv_lshlrev_b32 v2, 4, v2")
        a("s_barrier")
        self.stamp(2)
        a(f"ds_read_b128 v[4:7], v2 offset:{QBUF}\ns_waitcnt lgkmcnt(0)")
        t = [10, 11, 12, 13]; ra, rb = 14, 15; u = [16, 17, 18, 19]; x, y = 20, 21; S = [8, 9]
        def group(k):
            js = [4 * k + b for b in range(4)]
            for e in range(4):
                for b in range(4):
                    c = "0" if e == 0 else f"v{t[b]}"
                    a(f"v_dot2_f32_bf16 v{t[b]}, v{ring(js[b])+e}, v{4+e}, {c}")
            self.dpp("v_add_f32", f"v{ra}", f"v{t[0]}", f"v{t[0]}", "row_ror:8", bm="0x3")
            self.dpp("v_add_f32", f"v{rb}", f"v{t[2]}", f"v{t[2]}", "row_ror:8", bm="0x3")
            self.dpp("v_add_f32", f"v{ra}", f"v{t[1]}", f"v{t[1]}", "row_ror:8", bm="0xc")
            self.dpp("v_add_f32", f"v{rb}", f"v{t[3]}", f"v{t[3]}", "row_ror:8", bm="0xc")
            uk = u[k & 3]
            self.dpp("v_add_f32", f"v{uk}", f"v{ra}", f"v{ra}", "row_half_mirror", bm="0x5")
            self.dpp("v_add_f32", f"v{uk}", f"v{rb}", f"v{rb}", "row_half_mirror", bm="0xa")
            if (k & 3) == 3:
                def merge(dst, p, q, ctl, mask):
                    self.dpp("v_add_f32", f"v{x}", f"v{p}", f"v{p}", ctl)
                    self.dpp("v_add_f32", f"v{y}", f"v{q}", f"v{q}", ctl)
                    a(f"v_cndmask_b32 v{dst}, v{x}, v{y}, {mask}")
                merge(u[0], u[0], u[1], "quad_perm:[2,3,0,1]", M_B1)
                merge(u[2], u[2], u[3], "quad_perm:[2,3,0,1]", M_B1)
                merge(S[k >> 2], u[0], u[2], "quad_perm:[1,0,3,2]", M_B0)
        safe = (32 - W) // 4
        g = 0
        for i in range(W):
            upto = min(safe, max(g + 1, (i + 1) * safe // W)) if i < W - 1 else safe
            if i == 0: upto = min(safe, 1)
            while g < upto: group(g); g += 1
            a(f"s_waitcnt vmcnt({W-1})")
            load(i, SRD_B)
        while g < 8: group(g); g += 1
        self.stamp(3)
        self.rbf2("v8", "v9", "v8", "v9", "v10")
        a(f"v_mul_f32 v8, {SCALE}, v8\nv_mul_f32 v9, {SCALE}, v9")
        self.rbf2("v8", "v9", "v8", "v9", "v10")
        a("v_max_f32 v10, v8, v9")
        self.wave_reduce_to_s("v_max_f32", "v10", "s55")
        a(f"""v_subrev_f32 v8, s55, v8
v_subrev_f32 v9, s55, v9
v_mul_f32 v8, {LOG2E}, v8
v_mul_f32 v9, {LOG2E}, v9
v_exp_f32 v8, v8
v_exp_f32 v9, v9
v_mov_b32 v11, s55
s_lshl_b32 s56, s3, 2
v_mov_b32 v12, s56
s_mov_b64 exec, 1
ds_write_b32 v12, v11 offset:{MBUF}
s_mov_b64 exec, -1
v_add_f32 v10, v8, v9""")
        self.wave_reduce_to_s("v_add_f32", "v10", "s56")
        acc = list(range(10, 18)); un = list(range(18, 26)); pb = 26
        for e in acc: a(f"v_mov_b32 v{e}, 0")
        def lane_of(j):
            jj = j & 15; ga_, b = jj >> 2, jj & 3
            return ((b & 1) << 3) | ((b >> 1) << 2) | ((ga_ & 1) << 1) | (ga_ >> 1)
        for j in range(32):
            a(f"s_waitcnt vmcnt({min(W-1, 31-j)})")
            if j + W < 32: load(j + W, SRD_B)
            if j + W == 31:
                Lb = self.lab("b1b")
                a(f"s_cmp_lt_u32 s2, {G_WO}\ns_cbranch_scc1 {Lb}\ns_barrier")
                a.label(Lb)
            if j == 20:
                L = self.lab("mx")
                a("v_mov_b32 v27, 0")
                a.label(L)
                a(f"""ds_read_b128 v[28:31], v27 offset:{MBUF}
ds_read_b128 v[32:35], v27 offset:{MBUF+16}
s_waitcnt lgkmcnt(0)
v_max3_u32 v36, v28, v29, v30
v_max3_u32 v36, v36, v31, v32
v_max3_u32 v36, v36, v33, v34
v_max_u32 v36, v36, v35
v_cmp_eq_u32 vcc, -1, v36
s_cbranch_vccz {L}_ok
s_cmp_eq_u32 {SPIN}, 0
s_cbranch_scc1 {L}_ok
s_sub_u32 {SPIN}, {SPIN}, 1
s_branch {L}""")
                a.label(L + "_ok")
                a(f"""v_max3_f32 v36, v28, v29, v30
v_max3_f32 v36, v36, v31, v32
v_max3_f32 v36, v36, v33, v34
v_max_f32 v36, v36, v35
v_sub_f32 v37, s55, v36
v_mul_f32 v37, {LOG2E}, v37
v_exp_f32 v37, v37""")
            r = ring(j)
            a(f"v_mov_b32_dpp v{pb}, v{8 + (j >> 4)} row_newbcast:{lane_of(j)} row_mask:0xf bank_mask:0xf")
            for e in range(4):
                a(f"v_lshlrev_b32 v{un[2*e]}, 16, v{r+e}\nv_and_b32 v{un[2*e+1]}, {S_HI}, v{r+e}")
            for e in range(8):
                a(f"v_fmac_f32 v{acc[e]}, v{pb}, v{un[e]}")
        self.stamp(4)
        for e in range(4): a(f"v_permlane32_swap_b32 v{acc[e]}, v{acc[e+4]}")
        for e in range(4): a(f"v_add_f32 v{acc[e]}, v{acc[e]}, v{acc[e+4]}")
        for e in range(2): a(f"v_permlane16_swap_b32 v{acc[e]}, v{acc[e+2]}")
        for e in range(2): a(f"v_add_f32 v{acc[e]}, v{acc[e]}, v{acc[e+2]}")
        a(f"""v_mul_f32 v10, v10, v37
v_mul_f32 v11, v11, v37
v_mul_f32 v12, s56, v37
v_and_b32 v13, 15, v0
v_lshrrev_b32 v14, 4, v0
v_lshl_add_u32 v13, v13, 2, v14
v_lshlrev_b32 v13, 3, v13
s_lshl_b32 s57, s3, 9
v_add_u32 v13, s57, v13
s_lshl_b32 s57, s3, 2
v_mov_b32 v14, s57
ds_write_b64 v13, v[10:11] offset:{OBUF}
ds_write_b32 v14, v12 offset:{LBUF}
s_waitcnt lgkmcnt(0)
s_barrier""")
        self.stamp(5)
        a("s_cmp_lg_u32 s3, 0\ns_cbranch_scc1 L_s_pub_done")
        a(f"v_lshlrev_b32 v13, 3, v0")
        for w in range(8): a(f"ds_read_b64 v[{40+2*w}:{41+2*w}], v13 offset:{OBUF+512*w}")
        a(f"ds_read_b128 v[56:59], v27 offset:{LBUF}\nds_read_b128 v[60:63], v27 offset:{LBUF+16}")
        a(f"s_lshl_b32 s57, s2, 10\ns_add_u32 s57, s57, {O_OFF}\ns_lshl_b32 s58, s2, 4\ns_add_u32 s58, s58, {ML_OFF}")
        a(f"v_mov_b32 v66, {T0}\nv_mov_b32 v67, {T1}\nv_mov_b32 v70, {T0}\nv_mov_b32 v71, {T1}\nv_mov_b32 v68, v36")
        a("s_waitcnt lgkmcnt(0)")
        a("""v_add_f32 v64, v40, v42
v_add_f32 v65, v41, v43
v_add_f32 v72, v44, v46
v_add_f32 v73, v45, v47
v_add_f32 v74, v48, v50
v_add_f32 v75, v49, v51
v_add_f32 v76, v52, v54
v_add_f32 v77, v53, v55
v_add_f32 v64, v64, v72
v_add_f32 v65, v65, v73
v_add_f32 v74, v74, v76
v_add_f32 v75, v75, v77
v_add_f32 v64, v64, v74
v_add_f32 v65, v65, v75""")
        a(f"buffer_store_dwordx4 v[64:67], v1, {SRD_WS}, s57 offen sc1")
        a("""v_add_f32 v56, v56, v57
v_add_f32 v58, v58, v59
v_add_f32 v60, v60, v61
v_add_f32 v62, v62, v63
v_add_f32 v56, v56, v58
v_add_f32 v60, v60, v62
v_add_f32 v69, v56, v60
s_mov_b64 exec, 1""")
        a(f"buffer_store_dwordx4 v[68:71], v27, {SRD_WS}, s58 offen sc1\ns_mov_b64 exec, -1")
        self.stamp(6)
        a.label("L_s_pub_done")
        a(f"s_cmp_lt_u32 s2, {G_FFN}\ns_cbranch_scc1 L_s_exit\ns_cmp_ge_u32 s2, {G_FFN_END}\ns_cbranch_scc1 L_s_exit")
        self.ffn_wave()
        a.label("L_s_exit")
        self.finish()

    def ffn_wave(self):
        a = self.a
        FST = "s59"
        a(f"s_sub_u32 s60, s2, {G_FFN}")
        a(f"s_lshl_b32 s59, s3, 13\ns_add_u32 s59, s59, {STG}")
        self.srd(SRD_A, S_W1, 512 * 2752)
        self.srd(SRD_B, S_W2, 1376 * 1024)
        a("""v_lshrrev_b32 v2, 2, v0
s_lshl_b32 s61, s3, 6
v_add_u32 v2, s61, v2
s_movk_i32 s61, 2752
v_mul_lo_u32 v2, v2, s61
v_and_b32 v3, 3, v0
v_lshl_add_u32 v2, v3, 4, v2
s_lshl_b32 s61, s60, 6
v_add_u32 v2, s61, v2""")
        a(f"s_mov_b32 s53, 0\ns_mov_b32 m0, s59")
        for i in range(4):
            a(f"buffer_load_dwordx4 v2, {SRD_A}, s53 offen {self.wflag} lds")
            a(f"s_add_u32 s53, s53, {16*2752}\ns_add_u32 m0, m0, 1024")
        a("""v_lshrrev_b32 v3, 3, v0
s_lshl_b32 s61, s60, 5
v_add_u32 v3, s61, v3
v_lshlrev_b32 v3, 10, v3
v_and_b32 v4, 7, v0
v_lshl_add_u32 v3, v4, 4, v3
s_lshl_b32 s61, s3, 7
v_add_u32 v3, s61, v3
s_mov_b32 s53, 0""")
        for i in range(4):
            a(f"buffer_load_dwordx4 v3, {SRD_B}, s53 offen {self.wflag} lds")
            if i < 3: a(f"s_add_u32 s53, s53, 8192\ns_add_u32 m0, m0, 1024")
        a(f"""v_and_b32 v4, 31, v0
v_lshlrev_b32 v5, 3, v4
s_lshl_b32 s61, s3, 8
v_add_u32 v5, s61, v5
ds_read_b64 v[40:41], v5 offset:{XP}
ds_read_b64 v[42:43], v5 offset:{GA}
ds_read_b64 v[44:45], v5 offset:{SB}
ds_read_b64 v[46:47], v5 offset:{CB1}""")
        self.tr_addr("v6", 64, "v8", "v9"); a("v_add_u32 v6, s59, v6")
        self.tr_addr("v7", 128, "v8", "v9"); a("v_add_u32 v7, s59, v7")
        a(f"""v_lshrrev_b32 v8, 5, v0
v_lshlrev_b32 v8, 12, v8
v_lshl_add_u32 v8, v4, 4, v8
s_lshl_b32 s61, s3, 9
v_add_u32 v8, s61, v8
s_waitcnt vmcnt(0)""")
        self.stamp(7)
        B1f, B2f = 64, 80
        self.tr_frags(B1f, "v6", 0, 64, 2, 2)
        for t in range(4):
            for h in range(2):
                a(f"ds_read_b64_tr_b16 v[{B2f+4*t+2*h}:{B2f+4*t+2*h+1}], v7 offset:{4096 + 4*h*128 + t*32}")
        a("s_waitcnt lgkmcnt(0)")
        G = [96, 100, 104, 108]
        def issue():
            for i in range(4):
                a(f"s_mov_b32 s53, {Y_OFF + i*8192}\nbuffer_load_dwordx4 v[{G[i]}:{G[i]+3}], v8, {SRD_WS}, s53 offen sc1")
        self.poll(issue, G)
        self.stamp(8)
        a("""v_add_f32 v10, v96, v100
v_add_f32 v11, v97, v101
v_add_f32 v12, v104, v108
v_add_f32 v13, v105, v109
v_add_f32 v10, v10, v12
v_add_f32 v11, v11, v13""")
        a("v_mov_b32 v12, v10\nv_mov_b32 v13, v11\nv_permlane32_swap_b32 v10, v12\nv_permlane32_swap_b32 v11, v13\nv_add_f32 v10, v10, v12\nv_add_f32 v11, v11, v13")
        self.rbf2("v10", "v11", "v10", "v11", "v14")
        a("v_mul_f32 v10, v42, v10\nv_mul_f32 v11, v43, v11")
        self.rbf2("v10", "v11", "v10", "v11", "v14")
        a("v_add_f32 v10, v40, v10\nv_add_f32 v11, v41, v11")
        self.rbf2("v10", "v11", "v10", "v11", "v14")
        a("v_add_f32 v12, v10, v11")
        self.row_reduce("v_add_f32", "v12"); self.xor16_add("v12", "v13")
        a("v_mul_f32 v12, 0x3c800000, v12")
        a("v_sub_f32 v13, v10, v12\nv_sub_f32 v14, v11, v12\nv_mul_f32 v13, v13, v13\nv_fmac_f32 v13, v14, v14")
        self.row_reduce("v_add_f32", "v13"); self.xor16_add("v13", "v14")
        a(f"""v_bfe_u32 v14, v0, 4, 1
v_lshlrev_b32 v14, 5, v14
v_and_b32 v15, 15, v0
v_add_u32 v14, v14, v15
s_lshl_b32 s61, s3, 6
v_add_u32 v16, s61, v14
v_lshlrev_b32 v16, 2, v16
s_lshl_b32 s61, s3, 3
v_mov_b32 v17, s61
ds_write_b32 v16, v10 offset:{X1N}
ds_write_b32 v16, v11 offset:{X1N+64}
ds_write_b64 v17, v[12:13] offset:{STAT}
s_waitcnt lgkmcnt(0)
s_barrier""")
        a(f"""v_and_b32 v15, 7, v0
v_lshlrev_b32 v15, 3, v15
ds_read_b64 v[18:19], v15 offset:{STAT}
s_waitcnt lgkmcnt(0)
v_mov_b32 v20, v18""")
        for ctl in ("row_half_mirror", "quad_perm:[2,3,0,1]", "quad_perm:[1,0,3,2]"): self.dpp("v_add_f32", "v20", "v20", "v20", ctl)
        a("""v_mul_f32 v20, 0x3e000000, v20
v_sub_f32 v21, v18, v20
v_mul_f32 v21, v21, v21
v_fmac_f32 v19, 0x42800000, v21""")
        for ctl in ("row_half_mirror", "quad_perm:[2,3,0,1]", "quad_perm:[1,0,3,2]"): self.dpp("v_add_f32", "v19", "v19", "v19", ctl)
        a("v_mul_f32 v19, 0x3b000000, v19")
        self.layernorm_tail("v20", "v19", ["v10", "v11"], ["v22", "v23"], "v21", "v24", "v25")
        a("v_mul_f32 v22, v22, v46\nv_mul_f32 v23, v23, v47")
        self.rbf2("v22", "v23", "v22", "v23", "v24")
        a("v_add_f32 v22, v22, v44\nv_add_f32 v23, v23, v45\nv_cvt_pk_bf16_f32 v24, v22, v23")
        a(f"""s_lshl_b32 s61, s3, 8
s_add_u32 s61, s61, {ABUF}
v_lshl_add_u32 v25, v14, 1, s61
ds_write_b16 v25, v24
ds_write_b16_d16_hi v25, v24 offset:32
v_lshrrev_b32 v26, 4, v0
v_lshl_add_u32 v26, v26, 4, s61
s_waitcnt lgkmcnt(0)
ds_read_b128 v[112:115], v26
ds_read_b128 v[116:119], v26 offset:64
s_waitcnt lgkmcnt(0)""")
        self.mfma_tiles(120, 112, B1f, 2, 2)
        a(f"""v_and_b32 v27, 31, v0
v_lshlrev_b32 v27, 2, v27
s_lshl_b32 s62, s3, 7
v_add_u32 v28, s62, v27
v_cndmask_b32 v29, v120, v124, {M_G1}
s_mov_b32 exec_hi, 0
ds_write_b32 v28, v29 offset:{FP}
s_mov_b64 exec, -1
s_waitcnt lgkmcnt(0)
s_barrier""")
        for w in range(8): a(f"ds_read_b32 v{30+w}, v27 offset:{FP+128*w}")
        a("""s_waitcnt lgkmcnt(0)
v_add_f32 v30, v30, v31
v_add_f32 v32, v32, v33
v_add_f32 v34, v34, v35
v_add_f32 v36, v36, v37
v_add_f32 v30, v30, v32
v_add_f32 v34, v34, v36
v_add_f32 v30, v30, v34
v_cvt_pk_bf16_f32 v30, v30, v30""")
        a(f"""v_and_b32 v30, {S_HI}, v30
v_max_f32 v30, 0, v30
v_and_b32 v31, 31, v0
v_lshl_add_u32 v31, v31, 1, s61
ds_write_b16_d16_hi v31, v30 offset:128
s_waitcnt lgkmcnt(0)
ds_read_b128 v[112:115], v26 offset:128
s_waitcnt lgkmcnt(0)""")
        self.mfma_tiles(120, 112, B2f, 1, 4)
        a(f"""v_and_b32 v16, 15, v0
v_lshrrev_b32 v17, 4, v0
s_lshl_b32 s61, s3, 2
v_add_u32 v17, s61, v17
s_movk_i32 s61, {F_TILE}
v_mul_lo_u32 v17, v17, s61
v_lshl_add_u32 v17, v16, 3, v17
s_lshl_b32 s61, s60, 7
s_add_u32 s61, s61, {F_OFF}
v_cndmask_b32 v40, v120, v124, {M_G1}
v_cndmask_b32 v40, v40, v128, {M_G2}
v_cndmask_b32 v40, v40, v132, {M_G3}
v_mov_b32 v42, {T0}
v_mov_b32 v43, {T1}
v_mov_b32_dpp v41, v40 quad_perm:[1,1,3,3] row_mask:0xf bank_mask:0xf
s_mov_b32 s62, 0x55555555
s_mov_b32 s63, 0x55555555
s_mov_b64 exec, s[62:63]
buffer_store_dwordx4 v[40:43], v17, {SRD_WS}, s61 offen sc1
s_mov_b64 exec, -1""")
        self.stamp(9)
        a("s_cmp_lg_u32 s3, 0\ns_cbranch_scc1 L_s_exit\ns_cmp_ge_u32 s60, 32\ns_cbranch_scc1 L_s_exit")
        a(f"""v_lshlrev_b32 v8, 4, v0
s_mul_i32 s61, s60, {F_TILE}
s_add_u32 s61, s61, {F_OFF}
v_and_b32 v9, 7, v0
s_lshl_b32 s62, s60, 6
v_lshl_add_u32 v9, v9, 3, s62
ds_read_b64 v[10:11], v9 offset:{X1N}
ds_read_b64 v[12:13], v9 offset:{GBN}
v_mov_b32 v68, 0
v_mov_b32 v69, 0
v_mov_b32 v70, {T0}
v_mov_b32 v71, {T1}""")
        G = [48, 52, 56, 60, 64, 68]
        def issue():
            for i in range(5):
                a(f"buffer_load_dwordx4 v[{G[i]}:{G[i]+3}], v8, {SRD_WS}, s61 offen offset:{(i*1024) if i < 4 else 0} sc1" if i < 4 else
                  f"s_add_u32 s62, s61, 4096\nbuffer_load_dwordx4 v[{G[i]}:{G[i]+3}], v8, {SRD_WS}, s62 offen sc1")
            a(f"s_mov_b64 exec, 0xffffff\nbuffer_load_dwordx4 v[68:71], v8, {SRD_WS}, s62 offen offset:1024 sc1\ns_mov_b64 exec, -1")
        self.poll(issue, G)
        self.stamp(10)
        a("""v_add_f32 v48, v48, v52
v_add_f32 v49, v49, v53
v_add_f32 v56, v56, v60
v_add_f32 v57, v57, v61
v_add_f32 v64, v64, v68
v_add_f32 v65, v65, v69
v_add_f32 v48, v48, v56
v_add_f32 v49, v49, v57
v_add_f32 v48, v48, v64
v_add_f32 v49, v49, v65""")
        self.dpp("v_add_f32", "v48", "v48", "v48", "row_ror:8"); self.dpp("v_add_f32", "v49", "v49", "v49", "row_ror:8")
        self.xor16_add("v48", "v50"); self.xor16_add("v49", "v51")
        self.xor32_add("v48", "v50"); self.xor32_add("v49", "v51")
        a("s_waitcnt lgkmcnt(0)")
        self.rbf2("v48", "v49", "v48", "v49", "v50")
        a("v_mul_f32 v48, v12, v48\nv_mul_f32 v49, v13, v49")
        self.rbf2("v48", "v49", "v48", "v49", "v50")
        a(f"""v_add_f32 v48, v10, v48
v_add_f32 v49, v11, v49
v_cvt_pk_bf16_f32 v50, v48, v49
v_and_b32 v9, 7, v0
v_lshlrev_b32 v9, 2, v9
s_lshl_b32 s62, s60, 5
s_mov_b32 s44, s{S_OUT}
s_mov_b32 s45, s{S_OUT+1}
s_mov_b32 s46, 1024
s_mov_b32 s47, 0x20000
s_mov_b64 exec, 0xff
buffer_store_dword v50, v9, {SRD_A}, s62 offen""")
        a(f"""s_cmp_lg_u32 s60, 0
s_cbranch_scc1 L_s_exit""")
        if self.dbg:
            a("s_memrealtime s[100:101]\ns_waitcnt lgkmcnt(0)\ns_mov_b64 exec, -1\nv_mov_b32 v60, 0")
            for k, i in enumerate([11, 1, 2, 3, 4, 5, 6, 7, 8, 9, 10]):
                a(f"s_sub_u32 s62, s{STAMP0+2*i}, s{STAMP0}\nv_writelane_b32 v60, s62, {k}")
            a(f"s_sub_u32 s62, s100, s{STAMP0}\nv_writelane_b32 v60, s62, 11")
            a(f"v_lshlrev_b32 v61, 2, v0\ns_mov_b32 s44, s{S_DBG}\ns_mov_b32 s45, s{S_DBG+1}\ns_mov_b32 s46, 256\ns_mov_b32 s47, 0x20000")
            a(f"s_mov_b64 exec, 0xffff\nbuffer_store_dword v60, v61, {SRD_A}, 0 offen")
        a(f"""s_nop 0
s_mov_b64 exec, 1
v_mov_b32 v52, s34
v_mov_b32 v53, s35
v_mov_b32 v54, 0
buffer_store_dwordx2 v[52:53], v54, {SRD_WS}, 0 offen sc1""")

    def layernorm_tail(self, mean, var, xs, outs, t0, sd, rs):
        a = self.a
        self.rbf2(mean, var, mean, var, t0)
        a(f"v_add_f32 {var}, 0x3727c5ac, {var}")
        self.rbf(var, var)
        a(f"v_sqrt_f32 {sd}, {var}")
        self.rbf(sd, sd)
        a(f"v_rcp_f32 {rs}, {sd}")
        for x, o in zip(xs, outs): a(f"v_sub_f32 {o}, {x}, {mean}")
        self.rbf2(outs[0], outs[1], outs[0], outs[1], t0)
        for o in outs:
            a(f"v_mul_f32 {t0}, {o}, {rs}\nv_fma_f32 {o}, -{t0}, {sd}, {o}\nv_fma_f32 {o}, {o}, {rs}, {t0}")
        self.rbf2(outs[0], outs[1], outs[0], outs[1], t0)

    def tile128x64_load(self, srd, voff, rowstride, lds_base, soff0):
        self.dma_tile(srd, voff, 16, 8 * rowstride, lds_base, soff0)

    def ctl_waves(self):
        a = self.a
        b0 = (lambda: a("s_barrier")) if self.b0 else (lambda: None)
        a("v_lshlrev_b32 v1, 4, v0\ns_sub_u32 s3, s3, 8")
        a(f"s_lshl_b32 s59, s3, 14\ns_add_u32 s59, s59, {STG}")
        a(f"s_lshl_b32 s58, s3, 8\ns_add_u32 s58, s58, {ABUF + 8*256}")
        a("s_cmp_eq_u32 s3, 1\ns_cbranch_scc1 L_c1")
        self.ctl_common()
        b0()
        a("s_cmp_eq_u32 s3, 0\ns_cbranch_scc1 L_c0")
        a("s_cmp_eq_u32 s3, 2\ns_cbranch_scc0 L_c3")
        a(f"v_mov_b32 v2, -1\nv_lshlrev_b32 v3, 2, v0\ns_mov_b64 exec, 0xff\nds_write_b32 v3, v2 offset:{MBUF}\ns_mov_b64 exec, -1")
        a("s_branch L_c_b1")
        a.label("L_c3")
        if self.touch:
            a(f"""v_and_b32 v2, 7, v0
s_lshl_b32 s52, s2, 3
v_add_u32 v2, s52, v2
v_lshlrev_b32 v2, 15, v2
global_load_dword v8, v2, s[{S_V}:{S_V+1}]""")
        a("s_branch L_c_b1")
        a.label("L_c1")
        self.c1()
        a.label("L_c0")
        self.c0()
        a.label("L_c_b1")
        a("s_waitcnt vmcnt(0) lgkmcnt(0)")
        self.epoch_once()
        self.stamp(7)
        a("s_barrier")
        a(f"s_cmp_ge_u32 s2, {G_WO}\ns_cbranch_scc1 L_c_wo")
        a(f"s_cmp_lt_u32 s2, {G_A2}\ns_cbranch_scc1 L_c_b2")
        a("s_cmp_eq_u32 s3, 1\ns_cbranch_scc1 L_unit_late")
        a("s_cmp_eq_u32 s3, 2\ns_cbranch_scc1 L_collect")
        a(f"s_cmp_lg_u32 s3, 0\ns_cbranch_scc1 L_c_b2\ns_cmp_lt_u32 s2, {G_FFN}\ns_cbranch_scc1 L_c_b2\ns_cmp_ge_u32 s2, {G_FFN_END}\ns_cbranch_scc1 L_c_b2")
        self.ffn_vectors()
        a("s_branch L_c_b2")
        a.label("L_collect")
        a(f"s_cmp_ge_u32 s2, {G_COL_END}\ns_cbranch_scc1 L_c_b2")
        self.collect()
        a.label("L_c_b2")
        a("s_waitcnt vmcnt(0) lgkmcnt(0)\ns_barrier")
        a("s_add_u32 s3, s3, 8")
        self.finish()
        a.label("L_c_wo")
        self.wo_wave()

    def ctl_common(self):
        a = self.a
        a("s_waitcnt lgkmcnt(0)")
        a(f"s_load_dwordx2 s[34:35], s[{S_WS}:{S_WS+1}], 0")
        self.srd(SRD_WS, S_WS, 0x200000 if self.stamps else 0x100000)
        self.consts()
        a("s_mov_b32 s75, 0")

    def collect(self):
        a = self.a
        a(f"s_sub_u32 s60, s2, {G_A2}\ns_lshl_b32 s56, s60, 11\ns_add_u32 s56, s56, {AP_OFF + G_A2 * 512}")
        a(f"s_lshl_b32 s57, s60, 9\ns_add_u32 s57, s57, {A2_OFF}")
        def issue():
            a(f"buffer_load_dwordx4 v[8:11], v1, {SRD_WS}, s56 offen sc1\nbuffer_load_dwordx4 v[12:15], v1, {SRD_WS}, s56 offen offset:1024 sc1")
        self.poll(issue, [8, 12], sleep=16)
        a("v_add_f32 v16, v8, v12\nv_add_f32 v17, v9, v13")
        self.xor32_add("v16", "v20"); self.xor32_add("v17", "v21")
        a(f"""v_mov_b32 v18, {T0}
v_mov_b32 v19, {T1}
s_mov_b32 exec_hi, 0
buffer_store_dwordx4 v[16:19], v1, {SRD_WS}, s57 offen sc1
s_mov_b64 exec, -1""")
        self.stamp(2)

    def epoch_once(self):
        a = self.a
        L = self.lab("ep")
        a(f"s_cmp_eq_u32 s75, 1\ns_cbranch_scc1 {L}")
        self.epoch()
        a("s_mov_b32 s75, 1")
        a.label(L)

    def c1(self):
        a = self.a
        a(f"s_mov_b32 s39, 0\ns_cmp_lt_u32 s2, {G_A2}\ns_cbranch_scc1 L_unit")
        self.ctl_common()
        if self.b0: a("s_barrier")
        a("s_branch L_c_b1")
        a.label("L_unit_late")
        a("s_mov_b32 s39, 1")
        a.label("L_unit")
        a("""s_lshr_b32 s61, s2, 2
s_lshl_b32 s61, s61, 7
s_and_b32 s60, s2, 3
s_lshl_b32 s60, s60, 7
v_lshrrev_b32 v4, 3, v0
v_mul_u32_u24 v4, 6144, v4
v_and_b32 v5, 7, v0
v_lshl_add_u32 v4, v5, 4, v4
v_add_u32 v4, s61, v4
v_lshlrev_b32 v5, 2, v0
s_lshl_b32 s56, s60, 1
s_mul_i32 s57, s60, 6144
s_waitcnt lgkmcnt(0)""")
        self.srd(SRD_A, S_WM, 512 * 6144)
        self.srd(SRD_B, S_C, 1024)
        a(f"buffer_load_dword v10, v5, {SRD_B}, s56 offen")
        self.dma_tile(SRD_A, "v4", 16, 8 * 6144, "s59", "s57")
        a("s_cmp_eq_u32 s39, 1\ns_cbranch_scc1 L_unit_go")
        if self.b0: a("s_barrier")
        self.ctl_common()
        a.label("L_unit_go")
        self.tr_addr("v6", 128, "v8", "v9"); a("v_add_u32 v6, s59, v6")
        a("v_lshrrev_b32 v7, 4, v0\nv_lshl_add_u32 v7, v7, 4, s58\nv_lshl_add_u32 v12, v0, 2, s58")
        a("s_waitcnt vmcnt(16)")
        a(f"v_lshlrev_b32 v8, 16, v10\nv_and_b32 v9, {S_HI}, v10")
        a(f"""v_mul_f32 v10, 0xbfb8aa3b, v8
v_mul_f32 v11, 0xbfb8aa3b, v9
v_exp_f32 v10, v10
v_exp_f32 v11, v11
v_add_f32 v10, 1.0, v10
v_add_f32 v11, 1.0, v11
v_min_f32 v10, 0x7f7fffff, v10
v_min_f32 v11, 0x7f7fffff, v11
v_rcp_f32 v13, v10
v_rcp_f32 v14, v11""")
        a("""v_mul_f32 v15, v8, v13
v_mul_f32 v16, v9, v14
v_fma_f32 v17, -v15, v10, v8
v_fma_f32 v18, -v16, v11, v9
v_fma_f32 v17, v17, v13, v15
v_fma_f32 v18, v18, v14, v16
v_cvt_pk_bf16_f32 v10, v17, v18
ds_write_b32 v12, v10
s_waitcnt lgkmcnt(0)""")
        for k in range(4): a(f"ds_read_b128 v[{108+4*k}:{111+4*k}], v7 offset:{64*k}")
        a("s_waitcnt vmcnt(0)")
        self.tr_frags(40, "v6", 0, 128, 4, 4)
        a("s_waitcnt lgkmcnt(0)")
        self.mfma_tiles(124, 108, 40, 4, 4)
        self.epoch_once()
        a(f"""s_lshl_b32 s63, s2, 9
s_add_u32 s63, s63, {AP_OFF}
v_cndmask_b32 v140, v124, v132, {M_G1}
v_cndmask_b32 v141, v128, v136, {M_G1}
v_mov_b32 v142, {T0}
v_mov_b32 v143, {T1}
s_mov_b32 exec_hi, 0
buffer_store_dwordx4 v[140:143], v1, {SRD_WS}, s63 offen sc1
s_mov_b64 exec, -1""")
        self.stamp(1)
        a("s_cmp_eq_u32 s39, 1\ns_cbranch_scc1 L_c_b2\ns_branch L_c_b1")

    def c0(self):
        a = self.a
        if "noc0" in self.exp: a("s_branch L_c_b1")
        a("s_lshr_b32 s60, s2, 3\ns_and_b32 s61, s2, 7")
        self.srd(SRD_A, S_WQ, 512 * 8192)
        self.srd(SRD_B, S_X, 1024)
        a("""v_lshrrev_b32 v4, 4, v0
s_lshl_b32 s56, s61, 6
v_add_u32 v4, s56, v4
v_lshlrev_b32 v4, 13, v4
v_and_b32 v5, 15, v0
v_lshl_add_u32 v4, v5, 4, v4
s_lshl_b32 s56, s60, 8
v_add_u32 v4, s56, v4""")
        a(f"buffer_load_dwordx4 v[24:27], v1, {SRD_B}, 0 offen")
        a("""v_bfe_u32 v6, v0, 4, 1
v_lshlrev_b32 v6, 5, v6
v_add_u32 v6, v6, v5
s_lshl_b32 s56, s61, 7
v_lshl_add_u32 v7, v6, 1, s56""")
        a(f"buffer_load_ushort v28, v7, {SRD_B}, 0 offen\nbuffer_load_ushort v29, v7, {SRD_B}, 0 offen offset:32")
        self.dma_tile(SRD_A, "v4", 16, 4 * 8192, "s59")
        a("s_waitcnt vmcnt(16)")
        self.stamp(1)
        for e in range(4): a(f"v_lshlrev_b32 v{8+2*e}, 16, v{24+e}\nv_and_b32 v{9+2*e}, {S_HI}, v{24+e}")
        a("""v_add_f32 v16, v8, v9
v_add_f32 v17, v10, v11
v_add_f32 v18, v12, v13
v_add_f32 v19, v14, v15
v_add_f32 v16, v16, v17
v_add_f32 v18, v18, v19
v_add_f32 v16, v16, v18""")
        self.wave_reduce_to_s("v_add_f32", "v16", "s56")
        a("v_mov_b32 v20, s56\nv_mul_f32 v20, 0x3b000000, v20")
        for e in range(8): a(f"v_sub_f32 v{8+e}, v{8+e}, v20")
        a("v_mul_f32 v16, v8, v8")
        for e in range(1, 8): a(f"v_fmac_f32 v16, v{8+e}, v{8+e}")
        self.wave_reduce_to_s("v_add_f32", "v16", "s56")
        a("v_mov_b32 v19, s56\nv_mul_f32 v19, 0x3b000000, v19")
        a("v_lshlrev_b32 v28, 16, v28\nv_lshlrev_b32 v29, 16, v29")
        self.layernorm_tail("v20", "v19", ["v28", "v29"], ["v30", "v31"], "v21", "v22", "v23")
        a("s_waitcnt lgkmcnt(0)")
        self.epoch(); a("s_mov_b32 s75, 1")
        self.tr_addr("v144", 256, "v8", "v9"); a("v_add_u32 v144, s59, v144")
        a("s_waitcnt vmcnt(0)")
        self.tr_frags(40, "v144", 0, 256, 2, 8)
        a(f"""v_lshrrev_b32 v8, 5, v0
v_lshlrev_b32 v8, 14, v8
v_and_b32 v9, 31, v0
v_lshl_add_u32 v8, v9, 4, v8
s_lshl_b32 s56, s61, 11
s_add_u32 s56, s56, {AP_OFF}
v_add_u32 v8, s56, v8
s_waitcnt lgkmcnt(0)""")
        self.stamp(2)
        G = [104, 108, 112, 116]
        if self.hintA:
            self.poll(lambda: a(f"buffer_load_dwordx4 v[116:119], v8, {SRD_WS}, 0 offen offset:1536 sc1"), [116], sleep=self.slA, pre=True)
        def issueA():
            for i in range(4): a(f"buffer_load_dwordx4 v[{G[i]}:{G[i]+3}], v8, {SRD_WS}, 0 offen offset:{512*i} sc1")
        self.poll(issueA, G, sleep=self.slA, pre=True)
        self.stamp(3)
        a("""v_add_f32 v8, v104, v108
v_add_f32 v9, v105, v109
v_add_f32 v10, v112, v116
v_add_f32 v11, v113, v117
v_add_f32 v8, v8, v10
v_add_f32 v9, v9, v11""")
        self.rbf2("v8", "v9", "v8", "v9", "v10")
        a("v_mov_b32 v10, v8\nv_mov_b32 v11, v9\nv_permlane32_swap_b32 v8, v10\nv_permlane32_swap_b32 v9, v11")
        a("v_add_f32 v10, 1.0, v10\nv_add_f32 v11, 1.0, v11")
        self.rbf2("v10", "v11", "v10", "v11", "v12")
        a("v_mul_f32 v10, v30, v10\nv_mul_f32 v11, v31, v11")
        self.rbf2("v10", "v11", "v10", "v11", "v12")
        a("v_add_f32 v10, v10, v8\nv_add_f32 v11, v11, v9\nv_cvt_pk_bf16_f32 v12, v10, v11")
        a("""v_lshl_add_u32 v13, v6, 1, s58
ds_write_b16 v13, v12
ds_write_b16_d16_hi v13, v12 offset:32
v_lshrrev_b32 v14, 4, v0
v_lshl_add_u32 v14, v14, 4, s58
s_waitcnt lgkmcnt(0)
ds_read_b128 v[136:139], v14
ds_read_b128 v[140:143], v14 offset:64
s_waitcnt lgkmcnt(0)""")
        self.mfma_tiles(104, 136, 40, 2, 8)
        a(f"""v_cndmask_b32 v8, v104, v112, {M_G1}
v_cndmask_b32 v9, v108, v116, {M_G1}
v_cndmask_b32 v8, v8, v120, {M_G2}
v_cndmask_b32 v9, v9, v124, {M_G2}
v_cndmask_b32 v8, v8, v128, {M_G3}
v_cndmask_b32 v9, v9, v132, {M_G3}
v_mov_b32 v10, {T0}
v_mov_b32 v11, {T1}
s_lshl_b32 s56, s2, 10
s_add_u32 s56, s56, {B_OFF}
buffer_store_dwordx4 v[8:11], v1, {SRD_WS}, s56 offen sc1""")
        self.stamp(4)
        a(f"s_lshl_b32 s56, s60, 13\ns_add_u32 s56, s56, {B_OFF}\ns_add_u32 s57, s56, 4096")
        G = [104 + 4 * i for i in range(8)]
        if self.hintB:
            a("v_and_b32 v15, 7, v0\nv_lshlrev_b32 v15, 10, v15\nv_add_u32 v15, 1008, v15")
            self.poll(lambda: a(f"buffer_load_dwordx4 v[104:107], v15, {SRD_WS}, s56 offen sc1"), [104], sleep=self.slB, pre=True)
        def issueB():
            for i in range(8):
                a(f"buffer_load_dwordx4 v[{G[i]}:{G[i]+3}], v1, {SRD_WS}, {'s56' if i < 4 else 's57'} offen offset:{1024*(i&3)} sc1")
        self.poll(issueB, G, sleep=self.slB, pre=True)
        self.stamp(5)
        a("""v_add_f32 v8, v104, v108
v_add_f32 v9, v105, v109
v_add_f32 v10, v112, v116
v_add_f32 v11, v113, v117
v_add_f32 v12, v120, v124
v_add_f32 v13, v121, v125
v_add_f32 v14, v128, v132
v_add_f32 v15, v129, v133
v_add_f32 v8, v8, v10
v_add_f32 v9, v9, v11
v_add_f32 v12, v12, v14
v_add_f32 v13, v13, v15
v_add_f32 v8, v8, v12
v_add_f32 v9, v9, v13
v_cvt_pk_bf16_f32 v8, v8, v9""")
        a(f"""v_lshrrev_b32 v9, 4, v0
v_lshlrev_b32 v9, 5, v9
v_add_u32 v9, v9, v5
v_lshlrev_b32 v9, 1, v9
ds_write_b16 v9, v8 offset:{QBUF}
ds_write_b16_d16_hi v9, v8 offset:{QBUF+32}""")
        self.stamp(6)

    def ffn_vectors(self):
        a = self.a
        self.srd(SRD_B, S_X, 1024)
        a(f"""v_and_b32 v5, 15, v0
v_bfe_u32 v6, v0, 4, 1
v_lshlrev_b32 v6, 5, v6
v_add_u32 v6, v6, v5
v_lshrrev_b32 v7, 5, v0
v_lshl_add_u32 v7, v7, 6, v6
v_lshlrev_b32 v8, 1, v7
v_lshlrev_b32 v9, 3, v0
v_lshlrev_b32 v3, 2, v7""")
        for i in range(4):
            a(f"buffer_load_ushort v{8*i+104}, v8, {SRD_B}, 0 offen offset:{256*i}\nbuffer_load_ushort v{8*i+105}, v8, {SRD_B}, 0 offen offset:{256*i+32}")
        a("s_waitcnt vmcnt(0)")
        for i in range(4):
            a(f"v_lshlrev_b32 v{8*i+104}, 16, v{8*i+104}\nv_lshlrev_b32 v{8*i+105}, 16, v{8*i+105}")
            a(f"ds_write_b64 v9, v[{8*i+104}:{8*i+105}] offset:{XP+512*i}")
        for half in range(2):
            G = [40 + 4 * i for i in range(8)]
            def issue():
                for i in range(8):
                    k = half * 8 + i
                    a(f"s_mov_b32 s56, {A2_OFF + (k & ~3) * 1024}\nbuffer_load_dwordx4 v[{G[i]}:{G[i]+3}], v1, {SRD_WS}, s56 offen offset:{1024*(k&3)} sc1")
            self.poll(issue, G, sleep=8)
            for i in range(8):
                k = half * 8 + i; r = G[i]
                self.rbf2(f"v{r}", f"v{r+1}", f"v{r}", f"v{r+1}", "v10")
                if k < 4: a(f"ds_write_b64 v9, v[{r}:{r+1}] offset:{GA + 512*k}")
                elif k < 8: a(f"ds_write_b64 v9, v[{r}:{r+1}] offset:{SB + 512*(k-4)}")
                elif k < 12:
                    a(f"v_add_f32 v{r}, 1.0, v{r}\nv_add_f32 v{r+1}, 1.0, v{r+1}")
                    self.rbf2(f"v{r}", f"v{r+1}", f"v{r}", f"v{r+1}", "v10")
                    a(f"ds_write_b64 v9, v[{r}:{r+1}] offset:{CB1 + 512*(k-8)}")
                else:
                    a(f"ds_write_b32 v3, v{r} offset:{GBN + 512*(k-12)}\nds_write_b32 v3, v{r+1} offset:{GBN + 512*(k-12) + 64}")

    def wo_wave(self):
        a = self.a
        a(f"s_sub_u32 s60, s2, {G_WO}\ns_lshr_b32 s61, s60, 3\ns_and_b32 s62, s60, 7")
        a("s_lshl_b32 s63, s61, 2\ns_add_u32 s63, s63, s3")
        self.srd(SRD_A, S_WO, 4096 * 1024)
        a("""v_lshrrev_b32 v4, 3, v0
v_lshlrev_b32 v4, 10, v4
v_and_b32 v5, 7, v0
v_lshl_add_u32 v4, v5, 4, v4
s_lshl_b32 s56, s62, 7
v_add_u32 v4, s56, v4
s_lshl_b32 s57, s63, 17""")
        self.tr_addr("v6", 128, "v8", "v9"); a("v_add_u32 v6, s59, v6")
        a("s_barrier")
        self.dma_tile(SRD_A, "v4", 16, 8192, "s59", "s57")
        a(f"""v_and_b32 v7, 7, v0
v_lshlrev_b32 v7, 4, v7
s_lshl_b32 s56, s63, 7
s_add_u32 s56, s56, {ML_OFF}
s_lshl_b32 s57, s63, 13
s_add_u32 s57, s57, {O_OFF}
s_add_u32 s55, s57, 4096
v_lshl_add_u32 v3, v0, 2, s58
v_lshrrev_b32 v149, 4, v0
v_lshl_add_u32 v149, v149, 4, s58""")
        self.stamp(8)
        a("s_barrier")
        a("s_waitcnt vmcnt(0)")
        self.stamp(9)
        self.tr_frags(40, "v6", 0, 128, 4, 4)
        a("s_waitcnt lgkmcnt(0)")
        self.stamp(6)
        G = [8 + 4 * i for i in range(8)]
        def issue():
            a(f"buffer_load_dwordx4 v[104:107], v7, {SRD_WS}, s56 offen sc1")
            for i in range(8):
                a(f"buffer_load_dwordx4 v[{G[i]}:{G[i]+3}], v1, {SRD_WS}, {'s57' if i < 4 else 's55'} offen offset:{1024*(i&3)} sc1")
        self.poll(issue, [104] + G)
        self.stamp(10)
        a("v_mov_b32 v140, v104")
        for ctl in ("row_half_mirror", "quad_perm:[2,3,0,1]", "quad_perm:[1,0,3,2]"): self.dpp("v_max_f32", "v140", "v140", "v140", ctl)
        a(f"v_sub_f32 v141, v104, v140\nv_mul_f32 v141, {LOG2E}, v141\nv_exp_f32 v141, v141\nv_mul_f32 v142, v141, v105")
        for ctl in ("row_half_mirror", "quad_perm:[2,3,0,1]", "quad_perm:[1,0,3,2]"): self.dpp("v_add_f32", "v142", "v142", "v142", ctl)
        a("v_rcp_f32 v143, v142")
        a("v_mul_f32 v144, v141, v143\nv_fma_f32 v145, -v144, v142, v141\nv_fma_f32 v144, v145, v143, v144")
        a("v_mov_b32 v146, 0\nv_mov_b32 v147, 0")
        for s in range(8):
            a(f"v_fmac_f32_dpp v146, v144, v{G[s]} row_newbcast:{s} row_mask:0xf bank_mask:0xf")
            a(f"v_fmac_f32_dpp v147, v144, v{G[s]+1} row_newbcast:{s} row_mask:0xf bank_mask:0xf")
        a("v_cvt_pk_bf16_f32 v148, v146, v147\nds_write_b32 v3, v148\ns_waitcnt lgkmcnt(0)")
        for s in range(4): a(f"ds_read_b128 v[{108+4*s}:{111+4*s}], v149 offset:{64*s}")
        a("s_waitcnt lgkmcnt(0)")
        self.mfma_tiles(124, 108, 40, 4, 4)
        a(f"""v_lshlrev_b32 v10, 2, v0
s_lshl_b32 s56, s3, 8
v_add_u32 v10, s56, v10
v_cndmask_b32 v11, v124, v128, {M_G1}
v_cndmask_b32 v11, v11, v132, {M_G2}
v_cndmask_b32 v11, v11, v136, {M_G3}
ds_write_b32 v10, v11 offset:{YP}
s_waitcnt lgkmcnt(0)
s_barrier""")
        a("s_cmp_lg_u32 s3, 0\ns_cbranch_scc1 L_wo_done")
        a(f"""v_bfe_u32 v12, v0, 4, 1
v_lshlrev_b32 v12, 5, v12
v_and_b32 v13, 15, v0
v_add_u32 v12, v12, v13
v_lshlrev_b32 v12, 2, v12
v_add_u32 v12, {YP}, v12""")
        for w in range(4): a(f"ds_read2_b32 v[{16+2*w}:{17+2*w}], v12 offset0:{64*w} offset1:{64*w+16}")
        a(f"""s_lshl_b32 s56, s60, 9
s_add_u32 s56, s56, {Y_OFF}
v_mov_b32 v26, {T0}
v_mov_b32 v27, {T1}
s_waitcnt lgkmcnt(0)
v_add_f32 v16, v16, v18
v_add_f32 v17, v17, v19
v_add_f32 v20, v20, v22
v_add_f32 v21, v21, v23
v_add_f32 v24, v16, v20
v_add_f32 v25, v17, v21
s_mov_b32 exec_hi, 0
buffer_store_dwordx4 v[24:27], v1, {SRD_WS}, s56 offen sc1""")
        self.stamp(11)
        a.label("L_wo_done")
        a("s_add_u32 s3, s3, 8")
        self.finish()

def generate(**kw):
    g = Gen(**kw)
    return g.build()

if __name__ == "__main__":
    import argparse
    p = argparse.ArgumentParser()
    p.add_argument("-o", default="k.s"); p.add_argument("-W", type=int, default=3); p.add_argument("--stamps", action="store_true")
    p.add_argument("--nohintA", action="store_true"); p.add_argument("--nohintB", action="store_true"); p.add_argument("--noprefetch", action="store_true")
    p.add_argument("--dbg", action="store_true"); p.add_argument("--pfmax", type=int, default=256); p.add_argument("--nob0", action="store_true"); p.add_argument("--notouch", action="store_true"); p.add_argument("--exp", default=""); p.add_argument("--slA", type=int, default=4); p.add_argument("--slB", type=int, default=2); p.add_argument("--kv", default="nt"); p.add_argument("--wflag", default="nt")
    x = p.parse_args()
    open(x.o, "w").write(generate(W=x.W, stamps=x.stamps, hintA=not x.nohintA, hintB=not x.nohintB, prefetch=not x.noprefetch, kvflag=x.kv, wflag=x.wflag, exp=x.exp, slA=x.slA, slB=x.slB, pfmax=x.pfmax, b0=not x.nob0, touch=not x.notouch, dbg=x.dbg))
```

```python
import sys
from asmlib import Asm

NAME = "adaLN_cond__gqa_block_cached__dense_activation_relu__decode_kernel"

A1_OFF = 0x1000; A2_OFF = 0x9000; ML_OFF = 0xD000; Y_OFF = 0x10000; AP_OFF = 0xD0000
B_OFF = 0x20000; O_OFF = 0x60000; F_OFF = 0xA0000; STAMP_OFF = 0x100000
F_TILE = 48 * 128
G_A2 = 64; G_COL_END = 96; G_FFN = 96; G_FFN_END = 139; G_WO = 192
CODE_PAD = 24576
QBUF = 0
MBUF = 256
LBUF = 288
STAT = 320
ABUF = 512
OBUF = 4096
YP = 8192
FP = 9216
XP = 10240; GA = XP + 2048; SB = GA + 2048; CB1 = SB + 2048; GBN = CB1 + 2048; X1N = GBN + 2048
STG = 24576
LDS_BYTES = STG + 65536
S_X, S_K, S_V, S_WQ, S_WO, S_W1, S_W2 = 8, 10, 12, 14, 16, 20, 22
S_C, S_WM, S_OUT, S_DBG, S_WS = 24, 26, 28, 30, 32
S_E = 34; T0, T1 = "s36", "s37"; SPIN = "s38"
SRD_WS = "s[40:43]"; SRD_A = "s[44:47]"; SRD_B = "s[48:51]"
M_B1 = "s[64:65]"; M_B0 = "s[66:67]"; M_G1 = "s[68:69]"; M_G2 = "s[70:71]"; M_G3 = "s[72:73]"
S_HI = "s74"
STAMP0 = 76
RING = 40
LOG2E = "0x3fb8aa3b"; SCALE = "0x3db504f3"

class Gen:
    def __init__(self, W=3, stamps=False, hintA=True, hintB=True, kvflag="nt", prefetch=True, wflag="nt", dbg=False, exp="", slA=4, slB=2, pfmax=256, b0=True, touch=True):
        self.a = Asm(); self.W = W; self.stamps = stamps; self.hintA = hintA; self.hintB = hintB
        self.kv = kvflag; self.prefetch = prefetch; self.wflag = wflag; self.uid = 0; self.dbg = dbg; self.exp = exp.split(','); self.slA = slA; self.slB = slB; self.pfmax = pfmax; self.b0 = b0; self.touch = touch
    def lab(self, p):
        self.uid += 1; return f"L_{p}_{self.uid}"
    def stamp(self, i):
        if self.stamps: self.a(f"s_memrealtime s[{STAMP0+2*i}:{STAMP0+2*i+1}]")
    def finish(self):
        a = self.a
        if self.stamps:
            a("s_waitcnt lgkmcnt(0)\ns_mov_b64 exec, -1")
            a("v_mov_b32 v2, 0")
            for i in range(24): a(f"v_writelane_b32 v2, s{STAMP0+i}, {i}")
            a(f"s_mul_i32 s52, s2, 12\ns_add_u32 s52, s52, s3\ns_lshl_b32 s52, s52, 7\ns_add_u32 s52, s52, {STAMP_OFF}")
            a("v_lshlrev_b32 v3, 2, v0\ns_mov_b32 exec_hi, 0")
            a(f"buffer_store_dword v2, v3, {SRD_WS}, s52 offen")
        a("s_endpgm")
    def rbf(self, dst, src):
        self.a(f"v_cvt_pk_bf16_f32 {dst}, {src}, {src}\nv_and_b32 {dst}, {S_HI}, {dst}")
    def rbf2(self, d0, d1, s0, s1, tmp):
        self.a(f"v_cvt_pk_bf16_f32 {tmp}, {s0}, {s1}\nv_lshlrev_b32 {d0}, 16, {tmp}\nv_and_b32 {d1}, {S_HI}, {tmp}")
    def dpp(self, op, d, s0, s1, ctl, rm="0xf", bm="0xf"):
        self.a(f"{op}_dpp {d}, {s0}, {s1} {ctl} row_mask:{rm} bank_mask:{bm}")
    def row_reduce(self, op, v, steps=(8, 4, 2, 1)):
        for k in steps: self.dpp(op, v, v, v, f"row_ror:{k}")
    def wave_reduce_to_s(self, op, v, s):
        self.row_reduce(op, v)
        self.dpp(op, v, v, v, "row_bcast:15", rm="0xa")
        self.dpp(op, v, v, v, "row_bcast:31", rm="0xc")
        self.a(f"v_readlane_b32 {s}, {v}, 63")
    def xor32_add(self, v, t):
        self.a(f"v_mov_b32 {t}, {v}\nv_permlane32_swap_b32 {v}, {t}\nv_add_f32 {v}, {v}, {t}")
    def xor16_add(self, v, t):
        self.a(f"v_mov_b32 {t}, {v}\nv_permlane16_swap_b32 {v}, {t}\nv_add_f32 {v}, {v}, {t}")
    def tagcheck(self, regs, acc, first=True):
        a = self.a
        for r in regs:
            if first:
                a(f"v_xor_b32 {acc}, {T0}, v{r+2}"); first = False
            else:
                a(f"v_bitop3_b32 {acc}, {acc}, {T0}, v{r+2} bitop3:0xf6")
            a(f"v_bitop3_b32 {acc}, {acc}, {T1}, v{r+3} bitop3:0xf6")
    def poll(self, issue, regs, acc="v2", sleep=0, pre=False):
        a = self.a
        L = self.lab("poll"); D = self.lab("pok")
        a.label(L)
        issue()
        a("s_waitcnt vmcnt(0)")
        self.tagcheck(regs, acc)
        a(f"v_cmp_ne_u32 vcc, 0, {acc}")
        if "nopoll" in self.exp and pre: a(f"s_branch {D}")
        a(f"s_cbranch_vccz {D}")
        a(f"s_cmp_eq_u32 {SPIN}, 0")
        a(f"s_cbranch_scc1 {D}")
        a(f"s_sub_u32 {SPIN}, {SPIN}, 1")
        if sleep: a(f"s_sleep {sleep}")
        a(f"s_branch {L}")
        a.label(D)
    def srd(self, srd, base, size, add=None):
        n = int(srd[2:srd.index(':')])
        if add is None: self.a(f"s_mov_b32 s{n}, s{base}\ns_mov_b32 s{n+1}, s{base+1}")
        else: self.a(f"s_add_u32 s{n}, s{base}, {add}\ns_addc_u32 s{n+1}, s{base+1}, 0")
        self.a(f"s_mov_b32 s{n+2}, {size}\ns_mov_b32 s{n+3}, 0x20000")
    def consts(self):
        a = self.a
        a(f"s_mov_b32 {S_HI}, 0xffff0000\ns_mov_b32 {SPIN}, 0x40000")
        a("s_mov_b32 s64, 0xcccccccc\ns_mov_b32 s65, 0xcccccccc\ns_mov_b32 s66, 0xaaaaaaaa\ns_mov_b32 s67, 0xaaaaaaaa")
        a("s_mov_b32 s68, 0xffff0000\ns_mov_b32 s69, 0\ns_mov_b32 s70, 0\ns_mov_b32 s71, 0xffff\ns_mov_b32 s72, 0\ns_mov_b32 s73, 0xffff0000")
    def epoch(self):
        self.a(f"s_add_u32 s34, s34, 1\ns_addc_u32 s35, s35, 0\ns_xor_b32 {T0}, s34, 0x5bd1e995\ns_xor_b32 {T1}, s35, 0x9e3779b9")
    def dma_tile(self, srd, voff, n, step, lds_base, soff0="0"):
        a = self.a
        a(f"s_mov_b32 s53, {soff0}\ns_mov_b32 m0, {lds_base}")
        for i in range(n):
            a(f"buffer_load_dwordx4 {voff}, {srd}, s53 offen {self.wflag} lds")
            if i < n - 1: a(f"s_add_u32 s53, s53, {step}\ns_add_u32 m0, m0, 1024")
    def tr_addr(self, dst, rowbytes, t0, t1):
        sh = rowbytes.bit_length() - 1
        self.a(f"""v_lshrrev_b32 {t0}, 4, v0
v_bfe_u32 {t1}, v0, 2, 2
v_lshl_add_u32 {t0}, {t0}, 3, {t1}
v_lshlrev_b32 {t0}, {sh}, {t0}
v_and_b32 {t1}, 3, v0
v_lshl_add_u32 {dst}, {t1}, 3, {t0}""")
    def tr_frags(self, base_reg, vaddr, lds_base, rowbytes, nsteps, ntiles):
        for s in range(nsteps):
            for t in range(ntiles):
                r = base_reg + 4 * (s * ntiles + t)
                for h in range(2):
                    off = lds_base + (32 * s + 4 * h) * rowbytes + t * 32
                    self.a(f"ds_read_b64_tr_b16 v[{r+2*h}:{r+2*h+1}], {vaddr} offset:{off}")
    def mfma_tiles(self, dbase, abase, bbase, nsteps, ntiles, zero_first=True):
        for s in range(nsteps):
            for t in range(ntiles):
                d = f"v[{dbase+4*t}:{dbase+4*t+3}]"
                c = "0" if (s == 0 and zero_first) else d
                b = bbase + 4 * (s * ntiles + t)
                self.a(f"v_mfma_f32_16x16x32_bf16 {d}, v[{abase+4*s}:{abase+4*s+3}], v[{b}:{b+3}], {c}")

    def build(self):
        a = self.a; W = self.W
        a.raw(f"; @launch grid=(256,1,1) block=(768,1,1) lds={LDS_BYTES}")
        a.raw('.amdgcn_target "amdgcn-amd-amdhsa--gfx950"')
        a.raw(".text"); a.raw(f".globl {NAME}"); a.raw(".p2align 8"); a.raw(f".type {NAME},@function"); a.raw(f"{NAME}:")
        a("s_cmp_ge_u32 s2, 256\ns_cbranch_scc1 L_exit")
        self.stamp(0)
        a("""s_load_dwordx16 s[8:23], s[0:1], 0
s_load_dwordx8 s[24:31], s[0:1], 64
s_load_dwordx2 s[32:33], s[0:1], 96
v_lshrrev_b32 v1, 6, v0
v_and_b32 v0, 63, v0
v_readfirstlane_b32 s3, v1""")
        if self.prefetch:
            a(f"s_cmp_lg_u32 s3, 11\ns_cbranch_scc1 L_nopf")
            if self.pfmax < 256: a(f"s_cmp_ge_u32 s2, {self.pfmax}\ns_cbranch_scc1 L_nopf")
            a("s_getpc_b64 s[52:53]")
            a.label("L_pc")
            a(f"s_sub_u32 s52, s52, L_pc-{NAME}\ns_subb_u32 s53, s53, 0\nv_lshlrev_b32 v2, 7, v0")
            for i in range(CODE_PAD // 8192):
                a(f"global_load_dword v{4+i}, v2, s[52:53]")
                if i < CODE_PAD // 8192 - 1: a("v_add_u32 v2, 0x2000, v2")
            a.label("L_nopf")
        a("s_cmp_ge_u32 s3, 8\ns_cbranch_scc1 L_ctl")
        self.stream_wave()
        a.label("L_ctl")
        self.ctl_waves()
        a.label("L_exit")
        a("s_endpgm")
        a.raw(f".fill ({CODE_PAD} - (. - {NAME})) / 4, 4, 0xbf800000")
        a.raw("L_code_end:")
        a.raw('.section .rodata,"a"'); a.raw(".p2align 6"); a.raw(f".amdhsa_kernel {NAME}")
        for l in ["  .amdhsa_next_free_vgpr 168", "  .amdhsa_next_free_sgpr 102", "  .amdhsa_accum_offset 168",
                  "  .amdhsa_group_segment_fixed_size 0", "  .amdhsa_kernarg_size 104", "  .amdhsa_user_sgpr_count 2",
                  "  .amdhsa_user_sgpr_kernarg_segment_ptr 1", "  .amdhsa_system_sgpr_workgroup_id_x 1", ".end_amdhsa_kernel"]:
            a.raw(l)
        return a.text()

    def stream_wave(self):
        a = self.a; W = self.W; kv = self.kv
        ring = lambda j: RING + 4 * j
        a("""s_lshl_b32 s52, s2, 3
s_add_u32 s52, s52, s3
s_lshl_b32 s52, s52, 15
v_lshlrev_b32 v1, 4, v0
s_lshl_b32 s54, s3, 2
s_add_u32 s54, s54, s2
s_and_b32 s54, s54, 31
s_lshl_b32 s54, s54, 10
s_waitcnt lgkmcnt(0)""")
        self.srd(SRD_A, S_K, 32768, "s52")
        if self.b0: a("s_barrier")
        def load(j, srd):
            r = ring(j)
            a(f"buffer_load_dwordx4 v[{r}:{r+3}], v1, {srd}, s54 offen {kv}")
            a("s_add_u32 s54, s54, 1024\ns_and_b32 s54, s54, 0x7fff")
        for j in range(W): load(j, SRD_A)
        a(f"s_load_dwordx2 s[34:35], s[{S_WS}:{S_WS+1}], 0")
        self.srd(SRD_B, S_V, 32768, "s52")
        self.srd(SRD_WS, S_WS, 0x200000 if self.stamps else 0x100000)
        self.consts()
        for j in range(W, 32):
            a(f"s_waitcnt vmcnt({W-1})")
            load(j, SRD_A)
            if j == W: self.stamp(11)
            if j == W + 1:
                a("s_waitcnt lgkmcnt(0)"); self.epoch()
        self.stamp(1)
        a("v_and_b32 v2, 15, v0\nv_lshlrev_b32 v2, 4, v2")
        a("s_barrier")
        self.stamp(2)
        a(f"ds_read_b128 v[4:7], v2 offset:{QBUF}\ns_waitcnt lgkmcnt(0)")
        t = [10, 11, 12, 13]; ra, rb = 14, 15; u = [16, 17, 18, 19]; x, y = 20, 21; S = [8, 9]
        def group(k):
            js = [4 * k + b for b in range(4)]
            for e in range(4):
                for b in range(4):
                    c = "0" if e == 0 else f"v{t[b]}"
                    a(f"v_dot2_f32_bf16 v{t[b]}, v{ring(js[b])+e}, v{4+e}, {c}")
            self.dpp("v_add_f32", f"v{ra}", f"v{t[0]}", f"v{t[0]}", "row_ror:8", bm="0x3")
            self.dpp("v_add_f32", f"v{rb}", f"v{t[2]}", f"v{t[2]}", "row_ror:8", bm="0x3")
            self.dpp("v_add_f32", f"v{ra}", f"v{t[1]}", f"v{t[1]}", "row_ror:8", bm="0xc")
            self.dpp("v_add_f32", f"v{rb}", f"v{t[3]}", f"v{t[3]}", "row_ror:8", bm="0xc")
            uk = u[k & 3]
            self.dpp("v_add_f32", f"v{uk}", f"v{ra}", f"v{ra}", "row_half_mirror", bm="0x5")
            self.dpp("v_add_f32", f"v{uk}", f"v{rb}", f"v{rb}", "row_half_mirror", bm="0xa")
            if (k & 3) == 3:
                def merge(dst, p, q, ctl, mask):
                    self.dpp("v_add_f32", f"v{x}", f"v{p}", f"v{p}", ctl)
                    self.dpp("v_add_f32", f"v{y}", f"v{q}", f"v{q}", ctl)
                    a(f"v_cndmask_b32 v{dst}, v{x}, v{y}, {mask}")
                merge(u[0], u[0], u[1], "quad_perm:[2,3,0,1]", M_B1)
                merge(u[2], u[2], u[3], "quad_perm:[2,3,0,1]", M_B1)
                merge(S[k >> 2], u[0], u[2], "quad_perm:[1,0,3,2]", M_B0)
        safe = (32 - W) // 4
        g = 0
        for i in range(W):
            upto = min(safe, max(g + 1, (i + 1) * safe // W)) if i < W - 1 else safe
            if i == 0: upto = min(safe, 1)
            while g < upto: group(g); g += 1
            a(f"s_waitcnt vmcnt({W-1})")
            load(i, SRD_B)
        while g < 8: group(g); g += 1
        self.stamp(3)
        self.rbf2("v8", "v9", "v8", "v9", "v10")
        a(f"v_mul_f32 v8, {SCALE}, v8\nv_mul_f32 v9, {SCALE}, v9")
        self.rbf2("v8", "v9", "v8", "v9", "v10")
        a("v_max_f32 v10, v8, v9")
        self.wave_reduce_to_s("v_max_f32", "v10", "s55")
        a(f"""v_subrev_f32 v8, s55, v8
v_subrev_f32 v9, s55, v9
v_mul_f32 v8, {LOG2E}, v8
v_mul_f32 v9, {LOG2E}, v9
v_exp_f32 v8, v8
v_exp_f32 v9, v9
v_mov_b32 v11, s55
s_lshl_b32 s56, s3, 2
v_mov_b32 v12, s56
s_mov_b64 exec, 1
ds_write_b32 v12, v11 offset:{MBUF}
s_mov_b64 exec, -1
v_add_f32 v10, v8, v9""")
        self.wave_reduce_to_s("v_add_f32", "v10", "s56")
        acc = list(range(10, 18)); un = list(range(18, 26)); pb = 26
        for e in acc: a(f"v_mov_b32 v{e}, 0")
        def lane_of(j):
            jj = j & 15; ga_, b = jj >> 2, jj & 3
            return ((b & 1) << 3) | ((b >> 1) << 2) | ((ga_ & 1) << 1) | (ga_ >> 1)
        for j in range(32):
            a(f"s_waitcnt vmcnt({min(W-1, 31-j)})")
            if j + W < 32: load(j + W, SRD_B)
            if j + W == 31:
                Lb = self.lab("b1b")
                a(f"s_cmp_lt_u32 s2, {G_WO}\ns_cbranch_scc1 {Lb}\ns_barrier")
                a.label(Lb)
            if j == 20:
                L = self.lab("mx")
                a("v_mov_b32 v27, 0")
                a.label(L)
                a(f"""ds_read_b128 v[28:31], v27 offset:{MBUF}
ds_read_b128 v[32:35], v27 offset:{MBUF+16}
s_waitcnt lgkmcnt(0)
v_max3_u32 v36, v28, v29, v30
v_max3_u32 v36, v36, v31, v32
v_max3_u32 v36, v36, v33, v34
v_max_u32 v36, v36, v35
v_cmp_eq_u32 vcc, -1, v36
s_cbranch_vccz {L}_ok
s_cmp_eq_u32 {SPIN}, 0
s_cbranch_scc1 {L}_ok
s_sub_u32 {SPIN}, {SPIN}, 1
s_branch {L}""")
                a.label(L + "_ok")
                a(f"""v_max3_f32 v36, v28, v29, v30
v_max3_f32 v36, v36, v31, v32
v_max3_f32 v36, v36, v33, v34
v_max_f32 v36, v36, v35
v_sub_f32 v37, s55, v36
v_mul_f32 v37, {LOG2E}, v37
v_exp_f32 v37, v37""")
            r = ring(j)
            a(f"v_mov_b32_dpp v{pb}, v{8 + (j >> 4)} row_newbcast:{lane_of(j)} row_mask:0xf bank_mask:0xf")
            for e in range(4):
                a(f"v_lshlrev_b32 v{un[2*e]}, 16, v{r+e}\nv_and_b32 v{un[2*e+1]}, {S_HI}, v{r+e}")
            for e in range(8):
                a(f"v_fmac_f32 v{acc[e]}, v{pb}, v{un[e]}")
        self.stamp(4)
        for e in range(4): a(f"v_permlane32_swap_b32 v{acc[e]}, v{acc[e+4]}")
        for e in range(4): a(f"v_add_f32 v{acc[e]}, v{acc[e]}, v{acc[e+4]}")
        for e in range(2): a(f"v_permlane16_swap_b32 v{acc[e]}, v{acc[e+2]}")
        for e in range(2): a(f"v_add_f32 v{acc[e]}, v{acc[e]}, v{acc[e+2]}")
        a(f"""v_mul_f32 v10, v10, v37
v_mul_f32 v11, v11, v37
v_mul_f32 v12, s56, v37
v_and_b32 v13, 15, v0
v_lshrrev_b32 v14, 4, v0
v_lshl_add_u32 v13, v13, 2, v14
v_lshlrev_b32 v13, 3, v13
s_lshl_b32 s57, s3, 9
v_add_u32 v13, s57, v13
s_lshl_b32 s57, s3, 2
v_mov_b32 v14, s57
ds_write_b64 v13, v[10:11] offset:{OBUF}
ds_write_b32 v14, v12 offset:{LBUF}
s_waitcnt lgkmcnt(0)
s_barrier""")
        self.stamp(5)
        a("s_cmp_lg_u32 s3, 0\ns_cbranch_scc1 L_s_pub_done")
        a(f"v_lshlrev_b32 v13, 3, v0")
        for w in range(8): a(f"ds_read_b64 v[{40+2*w}:{41+2*w}], v13 offset:{OBUF+512*w}")
        a(f"ds_read_b128 v[56:59], v27 offset:{LBUF}\nds_read_b128 v[60:63], v27 offset:{LBUF+16}")
        a(f"s_lshl_b32 s57, s2, 10\ns_add_u32 s57, s57, {O_OFF}\ns_lshl_b32 s58, s2, 4\ns_add_u32 s58, s58, {ML_OFF}")
        a(f"v_mov_b32 v66, {T0}\nv_mov_b32 v67, {T1}\nv_mov_b32 v70, {T0}\nv_mov_b32 v71, {T1}\nv_mov_b32 v68, v36")
        a("s_waitcnt lgkmcnt(0)")
        a("""v_add_f32 v64, v40, v42
v_add_f32 v65, v41, v43
v_add_f32 v72, v44, v46
v_add_f32 v73, v45, v47
v_add_f32 v74, v48, v50
v_add_f32 v75, v49, v51
v_add_f32 v76, v52, v54
v_add_f32 v77, v53, v55
v_add_f32 v64, v64, v72
v_add_f32 v65, v65, v73
v_add_f32 v74, v74, v76
v_add_f32 v75, v75, v77
v_add_f32 v64, v64, v74
v_add_f32 v65, v65, v75""")
        a(f"buffer_store_dwordx4 v[64:67], v1, {SRD_WS}, s57 offen sc1")
        a("""v_add_f32 v56, v56, v57
v_add_f32 v58, v58, v59
v_add_f32 v60, v60, v61
v_add_f32 v62, v62, v63
v_add_f32 v56, v56, v58
v_add_f32 v60, v60, v62
v_add_f32 v69, v56, v60
s_mov_b64 exec, 1""")
        a(f"buffer_store_dwordx4 v[68:71], v27, {SRD_WS}, s58 offen sc1\ns_mov_b64 exec, -1")
        self.stamp(6)
        if self.dbg == 2:
            Ld = self.lab("dbgs")
            a(f"s_cmp_ge_u32 s2, 8\ns_cbranch_scc1 {Ld}\ns_waitcnt lgkmcnt(0)")
            a(f"v_mov_b32 v60, s{STAMP0}\ns_lshl_b32 s62, s2, 2\nv_mov_b32 v61, s62\ns_mov_b32 s44, s{S_DBG}\ns_mov_b32 s45, s{S_DBG+1}\ns_mov_b32 s46, 256\ns_mov_b32 s47, 0x20000")
            a(f"s_mov_b64 exec, 1\nbuffer_store_dword v60, v61, {SRD_A}, 0 offen\nv_mov_b32 v60, s{STAMP0+8}\nbuffer_store_dword v60, v61, {SRD_A}, 0 offen offset:32\ns_mov_b64 exec, -1")
            a.label(Ld)
        a.label("L_s_pub_done")
        a(f"s_cmp_lt_u32 s2, {G_FFN}\ns_cbranch_scc1 L_s_exit\ns_cmp_ge_u32 s2, {G_FFN_END}\ns_cbranch_scc1 L_s_exit")
        self.ffn_wave()
        a.label("L_s_exit")
        self.finish()

    def ffn_wave(self):
        a = self.a
        FST = "s59"
        a(f"s_sub_u32 s60, s2, {G_FFN}")
        a(f"s_lshl_b32 s59, s3, 13\ns_add_u32 s59, s59, {STG}")
        self.srd(SRD_A, S_W1, 512 * 2752)
        self.srd(SRD_B, S_W2, 1376 * 1024)
        a("""v_lshrrev_b32 v2, 2, v0
s_lshl_b32 s61, s3, 6
v_add_u32 v2, s61, v2
s_movk_i32 s61, 2752
v_mul_lo_u32 v2, v2, s61
v_and_b32 v3, 3, v0
v_lshl_add_u32 v2, v3, 4, v2
s_lshl_b32 s61, s60, 6
v_add_u32 v2, s61, v2""")
        a(f"s_mov_b32 s53, 0\ns_mov_b32 m0, s59")
        for i in range(4):
            a(f"buffer_load_dwordx4 v2, {SRD_A}, s53 offen {self.wflag} lds")
            a(f"s_add_u32 s53, s53, {16*2752}\ns_add_u32 m0, m0, 1024")
        a("""v_lshrrev_b32 v3, 3, v0
s_lshl_b32 s61, s60, 5
v_add_u32 v3, s61, v3
v_lshlrev_b32 v3, 10, v3
v_and_b32 v4, 7, v0
v_lshl_add_u32 v3, v4, 4, v3
s_lshl_b32 s61, s3, 7
v_add_u32 v3, s61, v3
s_mov_b32 s53, 0""")
        for i in range(4):
            a(f"buffer_load_dwordx4 v3, {SRD_B}, s53 offen {self.wflag} lds")
            if i < 3: a(f"s_add_u32 s53, s53, 8192\ns_add_u32 m0, m0, 1024")
        a(f"""v_and_b32 v4, 31, v0
v_lshlrev_b32 v5, 3, v4
s_lshl_b32 s61, s3, 8
v_add_u32 v5, s61, v5
ds_read_b64 v[40:41], v5 offset:{XP}
ds_read_b64 v[42:43], v5 offset:{GA}
ds_read_b64 v[44:45], v5 offset:{SB}
ds_read_b64 v[46:47], v5 offset:{CB1}""")
        self.tr_addr("v6", 64, "v8", "v9"); a("v_add_u32 v6, s59, v6")
        self.tr_addr("v7", 128, "v8", "v9"); a("v_add_u32 v7, s59, v7")
        a(f"""v_lshrrev_b32 v8, 5, v0
v_lshlrev_b32 v8, 12, v8
v_lshl_add_u32 v8, v4, 4, v8
s_lshl_b32 s61, s3, 9
v_add_u32 v8, s61, v8
s_waitcnt vmcnt(0)""")
        self.stamp(7)
        B1f, B2f = 64, 80
        self.tr_frags(B1f, "v6", 0, 64, 2, 2)
        for t in range(4):
            for h in range(2):
                a(f"ds_read_b64_tr_b16 v[{B2f+4*t+2*h}:{B2f+4*t+2*h+1}], v7 offset:{4096 + 4*h*128 + t*32}")
        a("s_waitcnt lgkmcnt(0)")
        G = [96, 100, 104, 108]
        def issue():
            for i in range(4):
                a(f"s_mov_b32 s53, {Y_OFF + i*8192}\nbuffer_load_dwordx4 v[{G[i]}:{G[i]+3}], v8, {SRD_WS}, s53 offen sc1")
        self.poll(issue, G)
        self.stamp(8)
        a("""v_add_f32 v10, v96, v100
v_add_f32 v11, v97, v101
v_add_f32 v12, v104, v108
v_add_f32 v13, v105, v109
v_add_f32 v10, v10, v12
v_add_f32 v11, v11, v13""")
        a("v_mov_b32 v12, v10\nv_mov_b32 v13, v11\nv_permlane32_swap_b32 v10, v12\nv_permlane32_swap_b32 v11, v13\nv_add_f32 v10, v10, v12\nv_add_f32 v11, v11, v13")
        self.rbf2("v10", "v11", "v10", "v11", "v14")
        a("v_mul_f32 v10, v42, v10\nv_mul_f32 v11, v43, v11")
        self.rbf2("v10", "v11", "v10", "v11", "v14")
        a("v_add_f32 v10, v40, v10\nv_add_f32 v11, v41, v11")
        self.rbf2("v10", "v11", "v10", "v11", "v14")
        a("v_add_f32 v12, v10, v11")
        self.row_reduce("v_add_f32", "v12"); self.xor16_add("v12", "v13")
        a("v_mul_f32 v12, 0x3c800000, v12")
        a("v_sub_f32 v13, v10, v12\nv_sub_f32 v14, v11, v12\nv_mul_f32 v13, v13, v13\nv_fmac_f32 v13, v14, v14")
        self.row_reduce("v_add_f32", "v13"); self.xor16_add("v13", "v14")
        a(f"""v_bfe_u32 v14, v0, 4, 1
v_lshlrev_b32 v14, 5, v14
v_and_b32 v15, 15, v0
v_add_u32 v14, v14, v15
s_lshl_b32 s61, s3, 6
v_add_u32 v16, s61, v14
v_lshlrev_b32 v16, 2, v16
s_lshl_b32 s61, s3, 3
v_mov_b32 v17, s61
ds_write_b32 v16, v10 offset:{X1N}
ds_write_b32 v16, v11 offset:{X1N+64}
ds_write_b64 v17, v[12:13] offset:{STAT}
s_waitcnt lgkmcnt(0)
s_barrier""")
        a(f"""v_and_b32 v15, 7, v0
v_lshlrev_b32 v15, 3, v15
ds_read_b64 v[18:19], v15 offset:{STAT}
s_waitcnt lgkmcnt(0)
v_mov_b32 v20, v18""")
        for ctl in ("row_half_mirror", "quad_perm:[2,3,0,1]", "quad_perm:[1,0,3,2]"): self.dpp("v_add_f32", "v20", "v20", "v20", ctl)
        a("""v_mul_f32 v20, 0x3e000000, v20
v_sub_f32 v21, v18, v20
v_mul_f32 v21, v21, v21
v_fmac_f32 v19, 0x42800000, v21""")
        for ctl in ("row_half_mirror", "quad_perm:[2,3,0,1]", "quad_perm:[1,0,3,2]"): self.dpp("v_add_f32", "v19", "v19", "v19", ctl)
        a("v_mul_f32 v19, 0x3b000000, v19")
        self.layernorm_tail("v20", "v19", ["v10", "v11"], ["v22", "v23"], "v21", "v24", "v25")
        a("v_mul_f32 v22, v22, v46\nv_mul_f32 v23, v23, v47")
        self.rbf2("v22", "v23", "v22", "v23", "v24")
        a("v_add_f32 v22, v22, v44\nv_add_f32 v23, v23, v45\nv_cvt_pk_bf16_f32 v24, v22, v23")
        a(f"""s_lshl_b32 s61, s3, 8
s_add_u32 s61, s61, {ABUF}
v_lshl_add_u32 v25, v14, 1, s61
ds_write_b16 v25, v24
ds_write_b16_d16_hi v25, v24 offset:32
v_lshrrev_b32 v26, 4, v0
v_lshl_add_u32 v26, v26, 4, s61
s_waitcnt lgkmcnt(0)
ds_read_b128 v[112:115], v26
ds_read_b128 v[116:119], v26 offset:64
s_waitcnt lgkmcnt(0)""")
        self.mfma_tiles(120, 112, B1f, 2, 2)
        a(f"""v_and_b32 v27, 31, v0
v_lshlrev_b32 v27, 2, v27
s_lshl_b32 s62, s3, 7
v_add_u32 v28, s62, v27
v_cndmask_b32 v29, v120, v124, {M_G1}
s_mov_b32 exec_hi, 0
ds_write_b32 v28, v29 offset:{FP}
s_mov_b64 exec, -1
s_waitcnt lgkmcnt(0)
s_barrier""")
        for w in range(8): a(f"ds_read_b32 v{30+w}, v27 offset:{FP+128*w}")
        a("""s_waitcnt lgkmcnt(0)
v_add_f32 v30, v30, v31
v_add_f32 v32, v32, v33
v_add_f32 v34, v34, v35
v_add_f32 v36, v36, v37
v_add_f32 v30, v30, v32
v_add_f32 v34, v34, v36
v_add_f32 v30, v30, v34
v_cvt_pk_bf16_f32 v30, v30, v30""")
        a(f"""v_and_b32 v30, {S_HI}, v30
v_max_f32 v30, 0, v30
v_and_b32 v31, 31, v0
v_lshl_add_u32 v31, v31, 1, s61
ds_write_b16_d16_hi v31, v30 offset:128
s_waitcnt lgkmcnt(0)
ds_read_b128 v[112:115], v26 offset:128
s_waitcnt lgkmcnt(0)""")
        self.mfma_tiles(120, 112, B2f, 1, 4)
        a(f"""v_and_b32 v16, 15, v0
v_lshrrev_b32 v17, 4, v0
s_lshl_b32 s61, s3, 2
v_add_u32 v17, s61, v17
s_movk_i32 s61, {F_TILE}
v_mul_lo_u32 v17, v17, s61
v_lshl_add_u32 v17, v16, 3, v17
s_lshl_b32 s61, s60, 7
s_add_u32 s61, s61, {F_OFF}
v_cndmask_b32 v40, v120, v124, {M_G1}
v_cndmask_b32 v40, v40, v128, {M_G2}
v_cndmask_b32 v40, v40, v132, {M_G3}
v_mov_b32 v42, {T0}
v_mov_b32 v43, {T1}
v_mov_b32_dpp v41, v40 quad_perm:[1,1,3,3] row_mask:0xf bank_mask:0xf
s_mov_b32 s62, 0x55555555
s_mov_b32 s63, 0x55555555
s_mov_b64 exec, s[62:63]
buffer_store_dwordx4 v[40:43], v17, {SRD_WS}, s61 offen sc1
s_mov_b64 exec, -1""")
        self.stamp(9)
        a("s_cmp_lg_u32 s3, 0\ns_cbranch_scc1 L_s_exit\ns_cmp_ge_u32 s60, 32\ns_cbranch_scc1 L_s_exit")
        a(f"""v_lshlrev_b32 v8, 4, v0
s_mul_i32 s61, s60, {F_TILE}
s_add_u32 s61, s61, {F_OFF}
v_and_b32 v9, 7, v0
s_lshl_b32 s62, s60, 6
v_lshl_add_u32 v9, v9, 3, s62
ds_read_b64 v[10:11], v9 offset:{X1N}
ds_read_b64 v[12:13], v9 offset:{GBN}
v_mov_b32 v68, 0
v_mov_b32 v69, 0
v_mov_b32 v70, {T0}
v_mov_b32 v71, {T1}""")
        G = [48, 52, 56, 60, 64, 68]
        def issue():
            for i in range(5):
                a(f"buffer_load_dwordx4 v[{G[i]}:{G[i]+3}], v8, {SRD_WS}, s61 offen offset:{(i*1024) if i < 4 else 0} sc1" if i < 4 else
                  f"s_add_u32 s62, s61, 4096\nbuffer_load_dwordx4 v[{G[i]}:{G[i]+3}], v8, {SRD_WS}, s62 offen sc1")
            a(f"s_mov_b64 exec, 0xffffff\nbuffer_load_dwordx4 v[68:71], v8, {SRD_WS}, s62 offen offset:1024 sc1\ns_mov_b64 exec, -1")
        self.poll(issue, G)
        self.stamp(10)
        a("""v_add_f32 v48, v48, v52
v_add_f32 v49, v49, v53
v_add_f32 v56, v56, v60
v_add_f32 v57, v57, v61
v_add_f32 v64, v64, v68
v_add_f32 v65, v65, v69
v_add_f32 v48, v48, v56
v_add_f32 v49, v49, v57
v_add_f32 v48, v48, v64
v_add_f32 v49, v49, v65""")
        self.dpp("v_add_f32", "v48", "v48", "v48", "row_ror:8"); self.dpp("v_add_f32", "v49", "v49", "v49", "row_ror:8")
        self.xor16_add("v48", "v50"); self.xor16_add("v49", "v51")
        self.xor32_add("v48", "v50"); self.xor32_add("v49", "v51")
        a("s_waitcnt lgkmcnt(0)")
        self.rbf2("v48", "v49", "v48", "v49", "v50")
        a("v_mul_f32 v48, v12, v48\nv_mul_f32 v49, v13, v49")
        self.rbf2("v48", "v49", "v48", "v49", "v50")
        a(f"""v_add_f32 v48, v10, v48
v_add_f32 v49, v11, v49
v_cvt_pk_bf16_f32 v50, v48, v49
v_and_b32 v9, 7, v0
v_lshlrev_b32 v9, 2, v9
s_lshl_b32 s62, s60, 5
s_mov_b32 s44, s{S_OUT}
s_mov_b32 s45, s{S_OUT+1}
s_mov_b32 s46, 1024
s_mov_b32 s47, 0x20000
s_mov_b64 exec, 0xff
buffer_store_dword v50, v9, {SRD_A}, s62 offen""")
        a(f"""s_cmp_lg_u32 s60, 0
s_cbranch_scc1 L_s_exit""")
        if self.dbg == 1:
            a("s_memrealtime s[100:101]\ns_waitcnt lgkmcnt(0)\ns_mov_b64 exec, -1\nv_mov_b32 v60, 0")
            for k, i in enumerate([11, 1, 2, 3, 4, 5, 6, 7, 8, 9, 10]):
                a(f"s_sub_u32 s62, s{STAMP0+2*i}, s{STAMP0}\nv_writelane_b32 v60, s62, {k}")
            a(f"s_sub_u32 s62, s100, s{STAMP0}\nv_writelane_b32 v60, s62, 11")
            a(f"v_lshlrev_b32 v61, 2, v0\ns_mov_b32 s44, s{S_DBG}\ns_mov_b32 s45, s{S_DBG+1}\ns_mov_b32 s46, 256\ns_mov_b32 s47, 0x20000")
            a(f"s_mov_b64 exec, 0xffff\nbuffer_store_dword v60, v61, {SRD_A}, 0 offen")
        a(f"""s_nop 0
s_mov_b64 exec, 1
v_mov_b32 v52, s34
v_mov_b32 v53, s35
v_mov_b32 v54, 0
buffer_store_dwordx2 v[52:53], v54, {SRD_WS}, 0 offen sc1""")

    def layernorm_tail(self, mean, var, xs, outs, t0, sd, rs):
        a = self.a
        self.rbf2(mean, var, mean, var, t0)
        a(f"v_add_f32 {var}, 0x3727c5ac, {var}")
        self.rbf(var, var)
        a(f"v_sqrt_f32 {sd}, {var}")
        self.rbf(sd, sd)
        a(f"v_rcp_f32 {rs}, {sd}")
        for x, o in zip(xs, outs): a(f"v_sub_f32 {o}, {x}, {mean}")
        self.rbf2(outs[0], outs[1], outs[0], outs[1], t0)
        for o in outs:
            a(f"v_mul_f32 {t0}, {o}, {rs}\nv_fma_f32 {o}, -{t0}, {sd}, {o}\nv_fma_f32 {o}, {o}, {rs}, {t0}")
        self.rbf2(outs[0], outs[1], outs[0], outs[1], t0)

    def tile128x64_load(self, srd, voff, rowstride, lds_base, soff0):
        self.dma_tile(srd, voff, 16, 8 * rowstride, lds_base, soff0)

    def ctl_waves(self):
        a = self.a
        b0 = (lambda: a("s_barrier")) if self.b0 else (lambda: None)
        a("v_lshlrev_b32 v1, 4, v0\ns_sub_u32 s3, s3, 8")
        a(f"s_lshl_b32 s59, s3, 14\ns_add_u32 s59, s59, {STG}")
        a(f"s_lshl_b32 s58, s3, 8\ns_add_u32 s58, s58, {ABUF + 8*256}")
        a("s_cmp_eq_u32 s3, 1\ns_cbranch_scc1 L_c1")
        self.ctl_common()
        b0()
        a("s_cmp_eq_u32 s3, 0\ns_cbranch_scc1 L_c0")
        a("s_cmp_eq_u32 s3, 2\ns_cbranch_scc0 L_c3")
        a(f"v_mov_b32 v2, -1\nv_lshlrev_b32 v3, 2, v0\ns_mov_b64 exec, 0xff\nds_write_b32 v3, v2 offset:{MBUF}\ns_mov_b64 exec, -1")
        a("s_branch L_c_b1")
        a.label("L_c3")
        if self.touch:
            a(f"""v_and_b32 v2, 7, v0
s_lshl_b32 s52, s2, 3
v_add_u32 v2, s52, v2
v_lshlrev_b32 v2, 15, v2
global_load_dword v8, v2, s[{S_V}:{S_V+1}]""")
        a("s_branch L_c_b1")
        a.label("L_c1")
        self.c1()
        a.label("L_c0")
        self.c0()
        a.label("L_c_b1")
        a("s_waitcnt vmcnt(0) lgkmcnt(0)")
        self.epoch_once()
        self.stamp(7)
        a("s_barrier")
        a(f"s_cmp_ge_u32 s2, {G_WO}\ns_cbranch_scc1 L_c_wo")
        a(f"s_cmp_lt_u32 s2, {G_A2}\ns_cbranch_scc1 L_c_b2")
        a("s_cmp_eq_u32 s3, 1\ns_cbranch_scc1 L_unit_late")
        a("s_cmp_eq_u32 s3, 2\ns_cbranch_scc1 L_collect")
        a(f"s_cmp_lg_u32 s3, 0\ns_cbranch_scc1 L_c_b2\ns_cmp_lt_u32 s2, {G_FFN}\ns_cbranch_scc1 L_c_b2\ns_cmp_ge_u32 s2, {G_FFN_END}\ns_cbranch_scc1 L_c_b2")
        self.ffn_vectors()
        a("s_branch L_c_b2")
        a.label("L_collect")
        a(f"s_cmp_ge_u32 s2, {G_COL_END}\ns_cbranch_scc1 L_c_b2")
        self.collect()
        a.label("L_c_b2")
        a("s_waitcnt vmcnt(0) lgkmcnt(0)\ns_barrier")
        a("s_add_u32 s3, s3, 8")
        self.finish()
        a.label("L_c_wo")
        self.wo_wave()

    def ctl_common(self):
        a = self.a
        a("s_waitcnt lgkmcnt(0)")
        a(f"s_load_dwordx2 s[34:35], s[{S_WS}:{S_WS+1}], 0")
        self.srd(SRD_WS, S_WS, 0x200000 if self.stamps else 0x100000)
        self.consts()
        a("s_mov_b32 s75, 0")

    def collect(self):
        a = self.a
        a(f"s_sub_u32 s60, s2, {G_A2}\ns_lshl_b32 s56, s60, 11\ns_add_u32 s56, s56, {AP_OFF + G_A2 * 512}")
        a(f"s_lshl_b32 s57, s60, 9\ns_add_u32 s57, s57, {A2_OFF}")
        def issue():
            a(f"buffer_load_dwordx4 v[8:11], v1, {SRD_WS}, s56 offen sc1\nbuffer_load_dwordx4 v[12:15], v1, {SRD_WS}, s56 offen offset:1024 sc1")
        self.poll(issue, [8, 12], sleep=16)
        a("v_add_f32 v16, v8, v12\nv_add_f32 v17, v9, v13")
        self.xor32_add("v16", "v20"); self.xor32_add("v17", "v21")
        a(f"""v_mov_b32 v18, {T0}
v_mov_b32 v19, {T1}
s_mov_b32 exec_hi, 0
buffer_store_dwordx4 v[16:19], v1, {SRD_WS}, s57 offen sc1
s_mov_b64 exec, -1""")
        self.stamp(2)

    def epoch_once(self):
        a = self.a
        L = self.lab("ep")
        a(f"s_cmp_eq_u32 s75, 1\ns_cbranch_scc1 {L}")
        self.epoch()
        a("s_mov_b32 s75, 1")
        a.label(L)

    def c1(self):
        a = self.a
        a(f"s_mov_b32 s39, 0\ns_cmp_lt_u32 s2, {G_A2}\ns_cbranch_scc1 L_unit")
        self.ctl_common()
        if self.b0: a("s_barrier")
        a("s_branch L_c_b1")
        a.label("L_unit_late")
        a("s_mov_b32 s39, 1")
        a.label("L_unit")
        a("""s_lshr_b32 s61, s2, 2
s_lshl_b32 s61, s61, 7
s_and_b32 s60, s2, 3
s_lshl_b32 s60, s60, 7
v_lshrrev_b32 v4, 3, v0
v_mul_u32_u24 v4, 6144, v4
v_and_b32 v5, 7, v0
v_lshl_add_u32 v4, v5, 4, v4
v_add_u32 v4, s61, v4
v_lshlrev_b32 v5, 2, v0
s_lshl_b32 s56, s60, 1
s_mul_i32 s57, s60, 6144
s_waitcnt lgkmcnt(0)""")
        self.srd(SRD_A, S_WM, 512 * 6144)
        self.srd(SRD_B, S_C, 1024)
        a(f"buffer_load_dword v10, v5, {SRD_B}, s56 offen")
        self.dma_tile(SRD_A, "v4", 16, 8 * 6144, "s59", "s57")
        a("s_cmp_eq_u32 s39, 1\ns_cbranch_scc1 L_unit_go")
        if self.b0: a("s_barrier")
        self.ctl_common()
        a.label("L_unit_go")
        self.tr_addr("v6", 128, "v8", "v9"); a("v_add_u32 v6, s59, v6")
        a("v_lshrrev_b32 v7, 4, v0\nv_lshl_add_u32 v7, v7, 4, s58\nv_lshl_add_u32 v12, v0, 2, s58")
        a("s_waitcnt vmcnt(16)")
        a(f"v_lshlrev_b32 v8, 16, v10\nv_and_b32 v9, {S_HI}, v10")
        a(f"""v_mul_f32 v10, 0xbfb8aa3b, v8
v_mul_f32 v11, 0xbfb8aa3b, v9
v_exp_f32 v10, v10
v_exp_f32 v11, v11
v_add_f32 v10, 1.0, v10
v_add_f32 v11, 1.0, v11
v_min_f32 v10, 0x7f7fffff, v10
v_min_f32 v11, 0x7f7fffff, v11
v_rcp_f32 v13, v10
v_rcp_f32 v14, v11""")
        a("""v_mul_f32 v15, v8, v13
v_mul_f32 v16, v9, v14
v_fma_f32 v17, -v15, v10, v8
v_fma_f32 v18, -v16, v11, v9
v_fma_f32 v17, v17, v13, v15
v_fma_f32 v18, v18, v14, v16
v_cvt_pk_bf16_f32 v10, v17, v18
ds_write_b32 v12, v10
s_waitcnt lgkmcnt(0)""")
        for k in range(4): a(f"ds_read_b128 v[{108+4*k}:{111+4*k}], v7 offset:{64*k}")
        a("s_waitcnt vmcnt(0)")
        self.tr_frags(40, "v6", 0, 128, 4, 4)
        a("s_waitcnt lgkmcnt(0)")
        self.mfma_tiles(124, 108, 40, 4, 4)
        self.epoch_once()
        a(f"""s_lshl_b32 s63, s2, 9
s_add_u32 s63, s63, {AP_OFF}
v_cndmask_b32 v140, v124, v132, {M_G1}
v_cndmask_b32 v141, v128, v136, {M_G1}
v_mov_b32 v142, {T0}
v_mov_b32 v143, {T1}
s_mov_b32 exec_hi, 0
buffer_store_dwordx4 v[140:143], v1, {SRD_WS}, s63 offen sc1
s_mov_b64 exec, -1""")
        self.stamp(1)
        a("s_cmp_eq_u32 s39, 1\ns_cbranch_scc1 L_c_b2\ns_branch L_c_b1")

    def c0(self):
        a = self.a
        if "noc0" in self.exp: a("s_branch L_c_b1")
        a("s_lshr_b32 s60, s2, 3\ns_and_b32 s61, s2, 7")
        self.srd(SRD_A, S_WQ, 512 * 8192)
        self.srd(SRD_B, S_X, 1024)
        a("""v_lshrrev_b32 v4, 4, v0
s_lshl_b32 s56, s61, 6
v_add_u32 v4, s56, v4
v_lshlrev_b32 v4, 13, v4
v_and_b32 v5, 15, v0
v_lshl_add_u32 v4, v5, 4, v4
s_lshl_b32 s56, s60, 8
v_add_u32 v4, s56, v4""")
        a(f"buffer_load_dwordx4 v[24:27], v1, {SRD_B}, 0 offen")
        a("""v_bfe_u32 v6, v0, 4, 1
v_lshlrev_b32 v6, 5, v6
v_add_u32 v6, v6, v5
s_lshl_b32 s56, s61, 7
v_lshl_add_u32 v7, v6, 1, s56""")
        a(f"buffer_load_ushort v28, v7, {SRD_B}, 0 offen\nbuffer_load_ushort v29, v7, {SRD_B}, 0 offen offset:32")
        self.dma_tile(SRD_A, "v4", 16, 4 * 8192, "s59")
        a("s_waitcnt vmcnt(16)")
        self.stamp(1)
        for e in range(4): a(f"v_lshlrev_b32 v{8+2*e}, 16, v{24+e}\nv_and_b32 v{9+2*e}, {S_HI}, v{24+e}")
        a("""v_add_f32 v16, v8, v9
v_add_f32 v17, v10, v11
v_add_f32 v18, v12, v13
v_add_f32 v19, v14, v15
v_add_f32 v16, v16, v17
v_add_f32 v18, v18, v19
v_add_f32 v16, v16, v18""")
        self.wave_reduce_to_s("v_add_f32", "v16", "s56")
        a("v_mov_b32 v20, s56\nv_mul_f32 v20, 0x3b000000, v20")
        for e in range(8): a(f"v_sub_f32 v{8+e}, v{8+e}, v20")
        a("v_mul_f32 v16, v8, v8")
        for e in range(1, 8): a(f"v_fmac_f32 v16, v{8+e}, v{8+e}")
        self.wave_reduce_to_s("v_add_f32", "v16", "s56")
        a("v_mov_b32 v19, s56\nv_mul_f32 v19, 0x3b000000, v19")
        a("v_lshlrev_b32 v28, 16, v28\nv_lshlrev_b32 v29, 16, v29")
        self.layernorm_tail("v20", "v19", ["v28", "v29"], ["v30", "v31"], "v21", "v22", "v23")
        a("s_waitcnt lgkmcnt(0)")
        self.epoch(); a("s_mov_b32 s75, 1")
        self.tr_addr("v144", 256, "v8", "v9"); a("v_add_u32 v144, s59, v144")
        a("s_waitcnt vmcnt(0)")
        self.tr_frags(40, "v144", 0, 256, 2, 8)
        a(f"""v_lshrrev_b32 v8, 5, v0
v_lshlrev_b32 v8, 14, v8
v_and_b32 v9, 31, v0
v_lshl_add_u32 v8, v9, 4, v8
s_lshl_b32 s56, s61, 11
s_add_u32 s56, s56, {AP_OFF}
v_add_u32 v8, s56, v8
s_waitcnt lgkmcnt(0)""")
        self.stamp(2)
        G = [104, 108, 112, 116]
        if self.hintA:
            self.poll(lambda: a(f"buffer_load_dwordx4 v[116:119], v8, {SRD_WS}, 0 offen offset:1536 sc1"), [116], sleep=self.slA, pre=True)
        def issueA():
            for i in range(4): a(f"buffer_load_dwordx4 v[{G[i]}:{G[i]+3}], v8, {SRD_WS}, 0 offen offset:{512*i} sc1")
        self.poll(issueA, G, sleep=self.slA, pre=True)
        self.stamp(3)
        a("""v_add_f32 v8, v104, v108
v_add_f32 v9, v105, v109
v_add_f32 v10, v112, v116
v_add_f32 v11, v113, v117
v_add_f32 v8, v8, v10
v_add_f32 v9, v9, v11""")
        self.rbf2("v8", "v9", "v8", "v9", "v10")
        a("v_mov_b32 v10, v8\nv_mov_b32 v11, v9\nv_permlane32_swap_b32 v8, v10\nv_permlane32_swap_b32 v9, v11")
        a("v_add_f32 v10, 1.0, v10\nv_add_f32 v11, 1.0, v11")
        self.rbf2("v10", "v11", "v10", "v11", "v12")
        a("v_mul_f32 v10, v30, v10\nv_mul_f32 v11, v31, v11")
        self.rbf2("v10", "v11", "v10", "v11", "v12")
        a("v_add_f32 v10, v10, v8\nv_add_f32 v11, v11, v9\nv_cvt_pk_bf16_f32 v12, v10, v11")
        a("""v_lshl_add_u32 v13, v6, 1, s58
ds_write_b16 v13, v12
ds_write_b16_d16_hi v13, v12 offset:32
v_lshrrev_b32 v14, 4, v0
v_lshl_add_u32 v14, v14, 4, s58
s_waitcnt lgkmcnt(0)
ds_read_b128 v[136:139], v14
ds_read_b128 v[140:143], v14 offset:64
s_waitcnt lgkmcnt(0)""")
        self.mfma_tiles(104, 136, 40, 2, 8)
        a(f"""v_cndmask_b32 v8, v104, v112, {M_G1}
v_cndmask_b32 v9, v108, v116, {M_G1}
v_cndmask_b32 v8, v8, v120, {M_G2}
v_cndmask_b32 v9, v9, v124, {M_G2}
v_cndmask_b32 v8, v8, v128, {M_G3}
v_cndmask_b32 v9, v9, v132, {M_G3}
v_mov_b32 v10, {T0}
v_mov_b32 v11, {T1}
s_lshl_b32 s56, s2, 10
s_add_u32 s56, s56, {B_OFF}
buffer_store_dwordx4 v[8:11], v1, {SRD_WS}, s56 offen sc1""")
        self.stamp(4)
        a(f"s_lshl_b32 s56, s60, 13\ns_add_u32 s56, s56, {B_OFF}\ns_add_u32 s57, s56, 4096")
        G = [104 + 4 * i for i in range(8)]
        if self.hintB:
            a("v_and_b32 v15, 7, v0\nv_lshlrev_b32 v15, 10, v15\nv_add_u32 v15, 1008, v15")
            self.poll(lambda: a(f"buffer_load_dwordx4 v[104:107], v15, {SRD_WS}, s56 offen sc1"), [104], sleep=self.slB, pre=True)
        def issueB():
            for i in range(8):
                a(f"buffer_load_dwordx4 v[{G[i]}:{G[i]+3}], v1, {SRD_WS}, {'s56' if i < 4 else 's57'} offen offset:{1024*(i&3)} sc1")
        self.poll(issueB, G, sleep=self.slB, pre=True)
        self.stamp(5)
        a("""v_add_f32 v8, v104, v108
v_add_f32 v9, v105, v109
v_add_f32 v10, v112, v116
v_add_f32 v11, v113, v117
v_add_f32 v12, v120, v124
v_add_f32 v13, v121, v125
v_add_f32 v14, v128, v132
v_add_f32 v15, v129, v133
v_add_f32 v8, v8, v10
v_add_f32 v9, v9, v11
v_add_f32 v12, v12, v14
v_add_f32 v13, v13, v15
v_add_f32 v8, v8, v12
v_add_f32 v9, v9, v13
v_cvt_pk_bf16_f32 v8, v8, v9""")
        a(f"""v_lshrrev_b32 v9, 4, v0
v_lshlrev_b32 v9, 5, v9
v_add_u32 v9, v9, v5
v_lshlrev_b32 v9, 1, v9
ds_write_b16 v9, v8 offset:{QBUF}
ds_write_b16_d16_hi v9, v8 offset:{QBUF+32}""")
        self.stamp(6)

    def ffn_vectors(self):
        a = self.a
        self.srd(SRD_B, S_X, 1024)
        a(f"""v_and_b32 v5, 15, v0
v_bfe_u32 v6, v0, 4, 1
v_lshlrev_b32 v6, 5, v6
v_add_u32 v6, v6, v5
v_lshrrev_b32 v7, 5, v0
v_lshl_add_u32 v7, v7, 6, v6
v_lshlrev_b32 v8, 1, v7
v_lshlrev_b32 v9, 3, v0
v_lshlrev_b32 v3, 2, v7""")
        for i in range(4):
            a(f"buffer_load_ushort v{8*i+104}, v8, {SRD_B}, 0 offen offset:{256*i}\nbuffer_load_ushort v{8*i+105}, v8, {SRD_B}, 0 offen offset:{256*i+32}")
        a("s_waitcnt vmcnt(0)")
        for i in range(4):
            a(f"v_lshlrev_b32 v{8*i+104}, 16, v{8*i+104}\nv_lshlrev_b32 v{8*i+105}, 16, v{8*i+105}")
            a(f"ds_write_b64 v9, v[{8*i+104}:{8*i+105}] offset:{XP+512*i}")
        for half in range(2):
            G = [40 + 4 * i for i in range(8)]
            def issue():
                for i in range(8):
                    k = half * 8 + i
                    a(f"s_mov_b32 s56, {A2_OFF + (k & ~3) * 1024}\nbuffer_load_dwordx4 v[{G[i]}:{G[i]+3}], v1, {SRD_WS}, s56 offen offset:{1024*(k&3)} sc1")
            self.poll(issue, G, sleep=8)
            for i in range(8):
                k = half * 8 + i; r = G[i]
                self.rbf2(f"v{r}", f"v{r+1}", f"v{r}", f"v{r+1}", "v10")
                if k < 4: a(f"ds_write_b64 v9, v[{r}:{r+1}] offset:{GA + 512*k}")
                elif k < 8: a(f"ds_write_b64 v9, v[{r}:{r+1}] offset:{SB + 512*(k-4)}")
                elif k < 12:
                    a(f"v_add_f32 v{r}, 1.0, v{r}\nv_add_f32 v{r+1}, 1.0, v{r+1}")
                    self.rbf2(f"v{r}", f"v{r+1}", f"v{r}", f"v{r+1}", "v10")
                    a(f"ds_write_b64 v9, v[{r}:{r+1}] offset:{CB1 + 512*(k-8)}")
                else:
                    a(f"ds_write_b32 v3, v{r} offset:{GBN + 512*(k-12)}\nds_write_b32 v3, v{r+1} offset:{GBN + 512*(k-12) + 64}")

    def wo_wave(self):
        a = self.a
        a(f"s_sub_u32 s60, s2, {G_WO}\ns_lshr_b32 s61, s60, 3\ns_and_b32 s62, s60, 7")
        a("s_lshl_b32 s63, s61, 2\ns_add_u32 s63, s63, s3")
        self.srd(SRD_A, S_WO, 4096 * 1024)
        a("""v_lshrrev_b32 v4, 3, v0
v_lshlrev_b32 v4, 10, v4
v_and_b32 v5, 7, v0
v_lshl_add_u32 v4, v5, 4, v4
s_lshl_b32 s56, s62, 7
v_add_u32 v4, s56, v4
s_lshl_b32 s57, s63, 17""")
        self.tr_addr("v6", 128, "v8", "v9"); a("v_add_u32 v6, s59, v6")
        a("s_barrier")
        self.dma_tile(SRD_A, "v4", 16, 8192, "s59", "s57")
        a(f"""v_and_b32 v7, 7, v0
v_lshlrev_b32 v7, 4, v7
s_lshl_b32 s56, s63, 7
s_add_u32 s56, s56, {ML_OFF}
s_lshl_b32 s57, s63, 13
s_add_u32 s57, s57, {O_OFF}
s_add_u32 s55, s57, 4096
v_lshl_add_u32 v3, v0, 2, s58
v_lshrrev_b32 v149, 4, v0
v_lshl_add_u32 v149, v149, 4, s58""")
        self.stamp(8)
        a("s_barrier")
        a("s_waitcnt vmcnt(0)")
        self.stamp(9)
        self.tr_frags(40, "v6", 0, 128, 4, 4)
        a("s_waitcnt lgkmcnt(0)")
        self.stamp(6)
        G = [8 + 4 * i for i in range(8)]
        def issue():
            a(f"buffer_load_dwordx4 v[104:107], v7, {SRD_WS}, s56 offen sc1")
            for i in range(8):
                a(f"buffer_load_dwordx4 v[{G[i]}:{G[i]+3}], v1, {SRD_WS}, {'s57' if i < 4 else 's55'} offen offset:{1024*(i&3)} sc1")
        self.poll(issue, [104] + G)
        self.stamp(10)
        a("v_mov_b32 v140, v104")
        for ctl in ("row_half_mirror", "quad_perm:[2,3,0,1]", "quad_perm:[1,0,3,2]"): self.dpp("v_max_f32", "v140", "v140", "v140", ctl)
        a(f"v_sub_f32 v141, v104, v140\nv_mul_f32 v141, {LOG2E}, v141\nv_exp_f32 v141, v141\nv_mul_f32 v142, v141, v105")
        for ctl in ("row_half_mirror", "quad_perm:[2,3,0,1]", "quad_perm:[1,0,3,2]"): self.dpp("v_add_f32", "v142", "v142", "v142", ctl)
        a("v_rcp_f32 v143, v142")
        a("v_mul_f32 v144, v141, v143\nv_fma_f32 v145, -v144, v142, v141\nv_fma_f32 v144, v145, v143, v144")
        a("v_mov_b32 v146, 0\nv_mov_b32 v147, 0")
        for s in range(8):
            a(f"v_fmac_f32_dpp v146, v144, v{G[s]} row_newbcast:{s} row_mask:0xf bank_mask:0xf")
            a(f"v_fmac_f32_dpp v147, v144, v{G[s]+1} row_newbcast:{s} row_mask:0xf bank_mask:0xf")
        a("v_cvt_pk_bf16_f32 v148, v146, v147\nds_write_b32 v3, v148\ns_waitcnt lgkmcnt(0)")
        for s in range(4): a(f"ds_read_b128 v[{108+4*s}:{111+4*s}], v149 offset:{64*s}")
        a("s_waitcnt lgkmcnt(0)")
        self.mfma_tiles(124, 108, 40, 4, 4)
        a(f"""v_lshlrev_b32 v10, 2, v0
s_lshl_b32 s56, s3, 8
v_add_u32 v10, s56, v10
v_cndmask_b32 v11, v124, v128, {M_G1}
v_cndmask_b32 v11, v11, v132, {M_G2}
v_cndmask_b32 v11, v11, v136, {M_G3}
ds_write_b32 v10, v11 offset:{YP}
s_waitcnt lgkmcnt(0)
s_barrier""")
        a("s_cmp_lg_u32 s3, 0\ns_cbranch_scc1 L_wo_done")
        a(f"""v_bfe_u32 v12, v0, 4, 1
v_lshlrev_b32 v12, 5, v12
v_and_b32 v13, 15, v0
v_add_u32 v12, v12, v13
v_lshlrev_b32 v12, 2, v12
v_add_u32 v12, {YP}, v12""")
        for w in range(4): a(f"ds_read2_b32 v[{16+2*w}:{17+2*w}], v12 offset0:{64*w} offset1:{64*w+16}")
        a(f"""s_lshl_b32 s56, s60, 9
s_add_u32 s56, s56, {Y_OFF}
v_mov_b32 v26, {T0}
v_mov_b32 v27, {T1}
s_waitcnt lgkmcnt(0)
v_add_f32 v16, v16, v18
v_add_f32 v17, v17, v19
v_add_f32 v20, v20, v22
v_add_f32 v21, v21, v23
v_add_f32 v24, v16, v20
v_add_f32 v25, v17, v21
s_mov_b32 exec_hi, 0
buffer_store_dwordx4 v[24:27], v1, {SRD_WS}, s56 offen sc1""")
        self.stamp(11)
        a.label("L_wo_done")
        a("s_add_u32 s3, s3, 8")
        self.finish()

def generate(**kw):
    g = Gen(**kw)
    return g.build()

if __name__ == "__main__":
    import argparse
    p = argparse.ArgumentParser()
    p.add_argument("-o", default="k.s"); p.add_argument("-W", type=int, default=3); p.add_argument("--stamps", action="store_true")
    p.add_argument("--nohintA", action="store_true"); p.add_argument("--nohintB", action="store_true"); p.add_argument("--noprefetch", action="store_true")
    p.add_argument("--dbg", type=int, default=0); p.add_argument("--pfmax", type=int, default=256); p.add_argument("--nob0", action="store_true"); p.add_argument("--notouch", action="store_true"); p.add_argument("--exp", default=""); p.add_argument("--slA", type=int, default=4); p.add_argument("--slB", type=int, default=2); p.add_argument("--kv", default="nt"); p.add_argument("--wflag", default="nt")
    x = p.parse_args()
    open(x.o, "w").write(generate(W=x.W, stamps=x.stamps, hintA=not x.nohintA, hintB=not x.nohintB, prefetch=not x.noprefetch, kvflag=x.kv, wflag=x.wflag, exp=x.exp, slA=x.slA, slB=x.slB, pfmax=x.pfmax, b0=not x.nob0, touch=not x.notouch, dbg=x.dbg))
```

```python
import sys
from asmlib import Asm

NAME = "adaLN_cond__gqa_block_cached__dense_activation_relu__decode_kernel"

RDY_OFF = 0x1000; A2_OFF = 0x9000; ML_OFF = 0xD000; Y_OFF = 0x10000; AP_OFF = 0xD0000
B_OFF = 0x20000; O_OFF = 0x60000; F_OFF = 0xA0000; STAMP_OFF = 0x100000
F_TILE = 48 * 64
G_A2 = 64; G_COL_END = 96; G_FFN = 96; G_FFN_END = 139; G_WO = 192
CODE_PAD = 24576
QBUF = 0
MBUF = 256
LBUF = 288
STAT = 320
TRIG = 396
ISSUED = 400
ROLE = 392
CNT = 388
HINT = 384
ABUF = 512
OBUF = 4096
YP = 8192
FP = 9216
XN = 10240; GA = XN + 2048; SB = GA + 2048; CB1 = SB + 2048; GBN = CB1 + 2048; X1N = GBN + 2048
STG = 24576
OVF = STG + 32768
S_X, S_K, S_V, S_WQ, S_WO, S_W1, S_W2 = 8, 10, 12, 14, 16, 20, 22
S_C, S_WM, S_OUT, S_DBG, S_WS = 24, 26, 28, 30, 32
S_E = 34; T0, T1 = "s36", "s37"; SPIN = "s38"
SRD_WS = "s[40:43]"; SRD_A = "s[44:47]"; SRD_B = "s[48:51]"
M_B1 = "s[64:65]"; M_B0 = "s[66:67]"; M_G1 = "s[68:69]"; M_G2 = "s[70:71]"; M_G3 = "s[72:73]"
S_HI = "s74"
STAMP0 = 76
RING = 40
LOG2E = "0x3fb8aa3b"; SCALE = "0x3db504f3"

class Gen:
    def __init__(self, W=3, stamps=False, hintA=True, hintB=True, kvflag="nt", prefetch=True, wflag="nt", dbg=False, exp="", slA=4, slB=2, pfmax=256, b0=True, touch=True, novf=0, jb=31, budget=70, single=False, stag=8, thr=2, jt=26, early=False):
        self.a = Asm(); self.W = W; self.stamps = stamps; self.hintA = hintA; self.hintB = hintB
        self.kv = kvflag; self.prefetch = prefetch; self.wflag = wflag; self.uid = 0; self.dbg = dbg; self.exp = exp.split(','); self.slA = slA; self.slB = slB; self.pfmax = pfmax; self.b0 = b0; self.touch = touch; self.novf = novf; self.jb = jb; self.budget = budget; self.single = single; self.stag = stag; self.thr = thr; self.jt = jt; self.early = early
    def lab(self, p):
        self.uid += 1; return f"L_{p}_{self.uid}"
    def stamp(self, i):
        if self.stamps: self.a(f"s_memrealtime s[{STAMP0+2*i}:{STAMP0+2*i+1}]")
    def finish(self):
        a = self.a
        if self.stamps:
            a("s_waitcnt lgkmcnt(0)\ns_mov_b64 exec, -1")
            a("v_mov_b32 v2, 0")
            for i in range(24): a(f"v_writelane_b32 v2, s{STAMP0+i}, {i}")
            a(f"s_mul_i32 s52, s2, 12\ns_add_u32 s52, s52, s3\ns_lshl_b32 s52, s52, 7\ns_add_u32 s52, s52, {STAMP_OFF}")
            a("v_lshlrev_b32 v3, 2, v0\ns_mov_b32 exec_hi, 0")
            a(f"buffer_store_dword v2, v3, {SRD_WS}, s52 offen")
        a("s_endpgm")
    def rbf(self, dst, src):
        self.a(f"v_cvt_pk_bf16_f32 {dst}, {src}, {src}\nv_and_b32 {dst}, {S_HI}, {dst}")
    def rbf2(self, d0, d1, s0, s1, tmp):
        self.a(f"v_cvt_pk_bf16_f32 {tmp}, {s0}, {s1}\nv_lshlrev_b32 {d0}, 16, {tmp}\nv_and_b32 {d1}, {S_HI}, {tmp}")
    def dpp(self, op, d, s0, s1, ctl, rm="0xf", bm="0xf"):
        self.a(f"{op}_dpp {d}, {s0}, {s1} {ctl} row_mask:{rm} bank_mask:{bm}")
    def row_reduce(self, op, v, steps=(8, 4, 2, 1)):
        for k in steps: self.dpp(op, v, v, v, f"row_ror:{k}")
    def wave_reduce_to_s(self, op, v, s):
        self.row_reduce(op, v)
        self.dpp(op, v, v, v, "row_bcast:15", rm="0xa")
        self.dpp(op, v, v, v, "row_bcast:31", rm="0xc")
        self.a(f"v_readlane_b32 {s}, {v}, 63")
    def xor32_add(self, v, t):
        self.a(f"v_mov_b32 {t}, {v}\nv_permlane32_swap_b32 {v}, {t}\nv_add_f32 {v}, {v}, {t}")
    def xor16_add(self, v, t):
        self.a(f"v_mov_b32 {t}, {v}\nv_permlane16_swap_b32 {v}, {t}\nv_add_f32 {v}, {v}, {t}")
    def tagcheck(self, regs, acc, first=True):
        a = self.a
        for r in regs:
            if first:
                a(f"v_xor_b32 {acc}, {T0}, v{r+2}"); first = False
            else:
                a(f"v_bitop3_b32 {acc}, {acc}, {T0}, v{r+2} bitop3:0xf6")
            a(f"v_bitop3_b32 {acc}, {acc}, {T1}, v{r+3} bitop3:0xf6")
    def poll(self, issue, regs, acc="v2", sleep=0, pre=False, rslot=None):
        a = self.a
        if rslot is not None and "rounds" in self.exp: a(f"s_mov_b32 s{STAMP0+2*rslot}, {SPIN}")
        L = self.lab("poll"); D = self.lab("pok")
        a.label(L)
        issue()
        a("s_waitcnt vmcnt(0)")
        self.tagcheck(regs, acc)
        a(f"v_cmp_ne_u32 vcc, 0, {acc}")
        if "nopoll" in self.exp and pre: a(f"s_branch {D}")
        a(f"s_cbranch_vccz {D}")
        a(f"s_cmp_eq_u32 {SPIN}, 0")
        a(f"s_cbranch_scc1 {D}")
        a(f"s_sub_u32 {SPIN}, {SPIN}, 1")
        if sleep: a(f"s_sleep {sleep}")
        a(f"s_branch {L}")
        a.label(D)
        if rslot is not None and "rounds" in self.exp: a(f"s_sub_u32 s{STAMP0+2*rslot}, s{STAMP0+2*rslot}, {SPIN}\ns_mov_b32 s{STAMP0+2*rslot+1}, 0")
    def sentcheck(self, regs, acc):
        a = self.a; regs = list(regs)
        if len(regs) == 1: a(f"v_cmp_eq_u32 vcc, -1, v{regs[0]}"); return
        if len(regs) == 2: a(f"v_max_u32 {acc}, v{regs[0]}, v{regs[1]}"); rest = []
        else: a(f"v_max3_u32 {acc}, v{regs[0]}, v{regs[1]}, v{regs[2]}"); rest = regs[3:]
        while rest:
            if len(rest) >= 2: a(f"v_max3_u32 {acc}, {acc}, v{rest[0]}, v{rest[1]}"); rest = rest[2:]
            else: a(f"v_max_u32 {acc}, {acc}, v{rest[0]}"); rest = []
        a(f"v_cmp_eq_u32 vcc, -1, {acc}")
    def poll2(self, issue, regs, nload, consume, acc="v2", rslot=None):
        a = self.a
        if rslot is not None and "rounds" in self.exp: a(f"s_mov_b32 s{STAMP0+2*rslot}, {SPIN}")
        L = self.lab("p2"); OA = L + "_a"; OB = L + "_b"; J = L + "_j"
        if self.single:
            a.label(L); issue(0); a("s_waitcnt vmcnt(0)"); self.sentcheck(regs(0), acc)
            a(f"s_cbranch_vccz {OA}\ns_cmp_eq_u32 {SPIN}, 0\ns_cbranch_scc1 {OA}\ns_sub_u32 {SPIN}, {SPIN}, 1\ns_branch {L}")
            a.label(OA); consume(0)
        else:
            issue(0); a(f"s_sleep {self.stag}"); issue(1)
            a.label(L)
            a(f"s_waitcnt vmcnt({nload})"); self.sentcheck(regs(0), acc); a(f"s_cbranch_vccz {OA}")
            issue(0)
            a(f"s_waitcnt vmcnt({nload})"); self.sentcheck(regs(1), acc); a(f"s_cbranch_vccz {OB}")
            issue(1)
            a(f"s_cmp_eq_u32 {SPIN}, 0\ns_cbranch_scc1 {OA}\ns_sub_u32 {SPIN}, {SPIN}, 1\ns_branch {L}")
            a.label(OB); consume(1); a(f"s_branch {J}")
            a.label(OA); consume(0)
            a.label(J)
        if rslot is not None and "rounds" in self.exp: a(f"s_sub_u32 s{STAMP0+2*rslot}, s{STAMP0+2*rslot}, {SPIN}\ns_mov_b32 s{STAMP0+2*rslot+1}, 0")
    def poll3(self, items, rslot=None, stag=None, sleep=0, mask0=8):
        a = self.a; n = len(items)
        M = lambda i: f"s[{mask0+2*i}:{mask0+2*i+1}]"
        if rslot is not None and "rounds" in self.exp: a(f"s_mov_b32 s{STAMP0+2*rslot}, {SPIN}")
        for i, (txt, regs, m0) in enumerate(items):
            a(f"s_mov_b64 {M(i)}, {m0 if m0 is not None else -1}")
        def issue():
            for i, (txt, regs, m0) in enumerate(items): a(f"s_mov_b64 exec, {M(i)}\n{txt}")
            a("s_mov_b64 exec, -1")
        L = self.lab("p3"); D = L + "_d"
        two = not self.single
        if two: issue(); a(f"s_sleep {self.stag if stag is None else stag}")
        a.label(L)
        issue()
        a(f"s_waitcnt vmcnt({n if two else 0})")
        for i, (txt, regs, m0) in enumerate(items):
            regs = list(regs)
            if len(regs) == 1: a(f"v_cmp_eq_u32 {M(i)}, -1, v{regs[0]}")
            else:
                if len(regs) == 2: a(f"v_max_u32 v2, v{regs[0]}, v{regs[1]}")
                else: a(f"v_max3_u32 v2, v{regs[0]}, v{regs[1]}, v{regs[2]}\nv_max_u32 v2, v2, v{regs[3]}")
                a(f"v_cmp_eq_u32 {M(i)}, -1, v2")
        a(f"s_or_b64 vcc, {M(0)}, {M(1)}" if n > 1 else f"s_mov_b64 vcc, {M(0)}")
        for i in range(2, n): a(f"s_or_b64 vcc, vcc, {M(i)}")
        a(f"s_cbranch_vccz {D}\ns_cmp_eq_u32 {SPIN}, 0\ns_cbranch_scc1 {D}\ns_sub_u32 {SPIN}, {SPIN}, 1")
        if sleep: a(f"s_sleep {sleep}")
        a(f"s_branch {L}")
        a.label(D)
        if rslot is not None and "rounds" in self.exp: a(f"s_sub_u32 s{STAMP0+2*rslot}, s{STAMP0+2*rslot}, {SPIN}\ns_mov_b32 s{STAMP0+2*rslot+1}, 0")
    def lds_spin(self, off, cmp_op, val, sleep, reg="v2", addr="v3"):
        a = self.a; L = self.lab("ls")
        a(f"v_mov_b32 {addr}, 0")
        a.label(L)
        a(f"""ds_read_b32 {reg}, {addr} offset:{off}
s_waitcnt lgkmcnt(0)
{cmp_op} vcc, {val}, {reg}
s_cbranch_vccnz {L}_ok
s_cmp_eq_u32 {SPIN}, 0
s_cbranch_scc1 {L}_ok
s_sub_u32 {SPIN}, {SPIN}, 1
s_sleep {sleep}
s_branch {L}""")
        a.label(L + "_ok")
    def srd(self, srd, base, size, add=None):
        n = int(srd[2:srd.index(':')])
        if add is None: self.a(f"s_mov_b32 s{n}, s{base}\ns_mov_b32 s{n+1}, s{base+1}")
        else: self.a(f"s_add_u32 s{n}, s{base}, {add}\ns_addc_u32 s{n+1}, s{base+1}, 0")
        self.a(f"s_mov_b32 s{n+2}, {size}\ns_mov_b32 s{n+3}, 0x20000")
    def consts(self):
        a = self.a
        a(f"s_mov_b32 {S_HI}, 0xffff0000\ns_mov_b32 {SPIN}, 0x40000")
        a("s_mov_b32 s64, 0xcccccccc\ns_mov_b32 s65, 0xcccccccc\ns_mov_b32 s66, 0xaaaaaaaa\ns_mov_b32 s67, 0xaaaaaaaa")
        a("s_mov_b32 s68, 0xffff0000\ns_mov_b32 s69, 0\ns_mov_b32 s70, 0\ns_mov_b32 s71, 0xffff\ns_mov_b32 s72, 0\ns_mov_b32 s73, 0xffff0000")
    def epoch(self):
        self.a(f"s_add_u32 s34, s34, 1\ns_addc_u32 s35, s35, 0\ns_xor_b32 {T0}, s34, 0x5bd1e995\ns_xor_b32 {T1}, s35, 0x9e3779b9")
    def dma_tile(self, srd, voff, n, step, lds_base, soff0="0"):
        a = self.a
        a(f"s_mov_b32 s53, {soff0}\ns_mov_b32 m0, {lds_base}")
        for i in range(n):
            a(f"buffer_load_dwordx4 {voff}, {srd}, s53 offen {self.wflag} lds")
            if i < n - 1: a(f"s_add_u32 s53, s53, {step}\ns_add_u32 m0, m0, 1024")
    def tr_addr(self, dst, rowbytes, t0, t1):
        sh = rowbytes.bit_length() - 1
        self.a(f"""v_lshrrev_b32 {t0}, 4, v0
v_bfe_u32 {t1}, v0, 2, 2
v_lshl_add_u32 {t0}, {t0}, 3, {t1}
v_lshlrev_b32 {t0}, {sh}, {t0}
v_and_b32 {t1}, 3, v0
v_lshl_add_u32 {dst}, {t1}, 3, {t0}""")
    def tr_frags(self, base_reg, vaddr, lds_base, rowbytes, nsteps, ntiles):
        for s in range(nsteps):
            for t in range(ntiles):
                r = base_reg + 4 * (s * ntiles + t)
                for h in range(2):
                    off = lds_base + (32 * s + 4 * h) * rowbytes + t * 32
                    self.a(f"ds_read_b64_tr_b16 v[{r+2*h}:{r+2*h+1}], {vaddr} offset:{off}")
    def mfma_tiles(self, dbase, abase, bbase, nsteps, ntiles, zero_first=True):
        for s in range(nsteps):
            for t in range(ntiles):
                d = f"v[{dbase+4*t}:{dbase+4*t+3}]"
                c = "0" if (s == 0 and zero_first) else d
                b = bbase + 4 * (s * ntiles + t)
                self.a(f"v_mfma_f32_16x16x32_bf16 {d}, v[{abase+4*s}:{abase+4*s+3}], v[{b}:{b+3}], {c}")

    def build(self):
        a = self.a; W = self.W
        a.raw(f"; @launch grid=(256,1,1) block=(768,1,1) lds={max(STG + 65536, OVF + 8192 * self.novf)}")
        a.raw('.amdgcn_target "amdgcn-amd-amdhsa--gfx950"')
        a.raw(".text"); a.raw(f".globl {NAME}"); a.raw(".p2align 8"); a.raw(f".type {NAME},@function"); a.raw(f"{NAME}:")
        a("s_cmp_ge_u32 s2, 256\ns_cbranch_scc1 L_exit")
        self.stamp(0)
        a("""s_load_dwordx16 s[8:23], s[0:1], 0
s_load_dwordx8 s[24:31], s[0:1], 64
s_load_dwordx2 s[32:33], s[0:1], 96
v_lshrrev_b32 v1, 6, v0
v_and_b32 v0, 63, v0
v_readfirstlane_b32 s3, v1""")
        if self.prefetch:
            a(f"s_cmp_lg_u32 s3, 11\ns_cbranch_scc1 L_nopf")
            if self.pfmax < 256: a(f"s_cmp_ge_u32 s2, {self.pfmax}\ns_cbranch_scc1 L_nopf")
            a("s_getpc_b64 s[52:53]")
            a.label("L_pc")
            a(f"s_sub_u32 s52, s52, L_pc-{NAME}\ns_subb_u32 s53, s53, 0\nv_lshlrev_b32 v2, 7, v0")
            for i in range(CODE_PAD // 8192):
                a(f"global_load_dword v{4+i}, v2, s[52:53]")
                if i < CODE_PAD // 8192 - 1: a("v_add_u32 v2, 0x2000, v2")
            a.label("L_nopf")
        a("s_cmp_ge_u32 s3, 8\ns_cbranch_scc1 L_ctl")
        self.stream_wave()
        a.label("L_ctl")
        self.ctl_waves()
        a.label("L_exit")
        a("s_endpgm")
        a.raw(f".fill ({CODE_PAD} - (. - {NAME})) / 4, 4, 0xbf800000")
        a.raw("L_code_end:")
        a.raw('.section .rodata,"a"'); a.raw(".p2align 6"); a.raw(f".amdhsa_kernel {NAME}")
        for l in ["  .amdhsa_next_free_vgpr 168", "  .amdhsa_next_free_sgpr 102", "  .amdhsa_accum_offset 168",
                  "  .amdhsa_group_segment_fixed_size 0", "  .amdhsa_kernarg_size 104", "  .amdhsa_user_sgpr_count 2",
                  "  .amdhsa_user_sgpr_kernarg_segment_ptr 1", "  .amdhsa_system_sgpr_workgroup_id_x 1", ".end_amdhsa_kernel"]:
            a.raw(l)
        return a.text()

    def stream_wave(self):
        a = self.a; W = self.W; kv = self.kv; n = self.novf
        ring = lambda j: RING + 4 * j
        a("""s_lshl_b32 s52, s2, 3
s_add_u32 s52, s52, s3
s_lshl_b32 s52, s52, 15
v_lshlrev_b32 v1, 4, v0
s_lshl_b32 s54, s3, 2
s_add_u32 s54, s54, s2
s_and_b32 s54, s54, 31
s_lshl_b32 s54, s54, 10
s_waitcnt lgkmcnt(0)""")
        self.srd(SRD_A, S_K, 32768, "s52")
        if self.b0: a("s_barrier")
        st = dict(issued=0, known=-1)
        def issue():
            i = st["issued"]
            if i < 32:
                r = ring(i); a(f"buffer_load_dwordx4 v[{r}:{r+3}], v1, {SRD_A}, s54 offen {kv}")
            elif i < 32 + n:
                a(f"buffer_load_dwordx4 v1, {SRD_B}, s54 offen {kv} lds")
            else:
                r = ring(i - 32 - n); a(f"buffer_load_dwordx4 v[{r}:{r+3}], v1, {SRD_B}, s54 offen {kv}")
            a("s_add_u32 s54, s54, 1024\ns_and_b32 s54, s54, 0x7fff")
            if 32 <= i < 31 + n: a("s_add_u32 m0, m0, 1024")
            st["issued"] = i + 1
        def tick():
            i = st["issued"]
            if i >= W:
                a(f"s_waitcnt vmcnt({W-1})"); st["known"] = max(st["known"], i - W)
            issue()
        def need(idx):
            if st["known"] < idx:
                a(f"s_waitcnt vmcnt({st['issued'] - 1 - idx})"); st["known"] = idx
        for j in range(W): issue()
        a(f"s_load_dwordx2 s[34:35], s[{S_WS}:{S_WS+1}], 0")
        self.srd(SRD_B, S_V, 32768, "s52")
        self.srd(SRD_WS, S_WS, 0x200000 if self.stamps else 0x100000)
        self.consts()
        if n:
            a(f"s_mul_i32 s57, s3, {n*1024}\ns_add_u32 s57, s57, {OVF}\ns_mov_b32 m0, s57\nv_add_u32 v3, s57, v1")
        while st["issued"] < 32 + n:
            j = st["issued"]
            tick()
            if j == W: self.stamp(11)
            if j == W + 1:
                a("s_waitcnt lgkmcnt(0)"); self.epoch()
        self.stamp(1)
        if self.stamps: a(f"s_mov_b32 s{STAMP0+12}, 0\ns_mov_b32 s{STAMP0+13}, 0")
        a("v_and_b32 v2, 15, v0\nv_lshlrev_b32 v2, 4, v2")
        a("s_barrier")
        self.stamp(2)
        a(f"ds_read_b128 v[4:7], v2 offset:{QBUF}\ns_waitcnt lgkmcnt(0)")
        t = [10, 11, 12, 13]; ra, rb = 14, 15; u = [16, 17, 18, 19]; x, y = 20, 21; S = [8, 9]
        def group(k):
            need(4 * k + 3)
            js = [4 * k + b for b in range(4)]
            for e in range(4):
                for b in range(4):
                    c = "0" if e == 0 else f"v{t[b]}"
                    a(f"v_dot2_f32_bf16 v{t[b]}, v{ring(js[b])+e}, v{4+e}, {c}")
            self.dpp("v_add_f32", f"v{ra}", f"v{t[0]}", f"v{t[0]}", "row_ror:8", bm="0x3")
            self.dpp("v_add_f32", f"v{rb}", f"v{t[2]}", f"v{t[2]}", "row_ror:8", bm="0x3")
            self.dpp("v_add_f32", f"v{ra}", f"v{t[1]}", f"v{t[1]}", "row_ror:8", bm="0xc")
            self.dpp("v_add_f32", f"v{rb}", f"v{t[3]}", f"v{t[3]}", "row_ror:8", bm="0xc")
            uk = u[k & 3]
            self.dpp("v_add_f32", f"v{uk}", f"v{ra}", f"v{ra}", "row_half_mirror", bm="0x5")
            self.dpp("v_add_f32", f"v{uk}", f"v{rb}", f"v{rb}", "row_half_mirror", bm="0xa")
            if (k & 3) == 3:
                def merge(dst, p, q, ctl, mask):
                    self.dpp("v_add_f32", f"v{x}", f"v{p}", f"v{p}", ctl)
                    self.dpp("v_add_f32", f"v{y}", f"v{q}", f"v{q}", ctl)
                    a(f"v_cndmask_b32 v{dst}, v{x}, v{y}, {mask}")
                merge(u[0], u[0], u[1], "quad_perm:[2,3,0,1]", M_B1)
                merge(u[2], u[2], u[3], "quad_perm:[2,3,0,1]", M_B1)
                merge(S[k >> 2], u[0], u[2], "quad_perm:[1,0,3,2]", M_B0)
        acc = list(range(10, 18)); un = list(range(18, 26)); pb = 26
        def softmax():
            self.stamp(3)
            self.rbf2("v8", "v9", "v8", "v9", "v10")
            a(f"v_mul_f32 v8, {SCALE}, v8\nv_mul_f32 v9, {SCALE}, v9")
            self.rbf2("v8", "v9", "v8", "v9", "v10")
            a("v_max_f32 v10, v8, v9")
            self.wave_reduce_to_s("v_max_f32", "v10", "s55")
            a(f"""v_subrev_f32 v8, s55, v8
v_subrev_f32 v9, s55, v9
v_mul_f32 v8, {LOG2E}, v8
v_mul_f32 v9, {LOG2E}, v9
v_exp_f32 v8, v8
v_exp_f32 v9, v9
v_mov_b32 v11, s55
s_lshl_b32 s56, s3, 2
v_mov_b32 v12, s56
s_mov_b64 exec, 1
ds_write_b32 v12, v11 offset:{MBUF}
s_mov_b64 exec, -1
v_add_f32 v10, v8, v9""")
            self.wave_reduce_to_s("v_add_f32", "v10", "s56")
            for e in acc: a(f"v_mov_b32 v{e}, 0")
        def lane_of(j):
            jj = j & 15; ga_, b = jj >> 2, jj & 3
            return ((b & 1) << 3) | ((b >> 1) << 2) | ((ga_ & 1) << 1) | (ga_ >> 1)
        TQ = [28, 32]
        def lds_read(j):
            need(32 + j)
            r = TQ[j & 1]
            a(f"ds_read_b128 v[{r}:{r+3}], v3 offset:{1024*j}")
        def cu_max():
            L = self.lab("mx")
            a("v_mov_b32 v27, 0")
            a.label(L)
            a(f"""ds_read_b128 v[28:31], v27 offset:{MBUF}
ds_read_b128 v[32:35], v27 offset:{MBUF+16}
s_waitcnt lgkmcnt(0)
v_max3_u32 v36, v28, v29, v30
v_max3_u32 v36, v36, v31, v32
v_max3_u32 v36, v36, v33, v34
v_max_u32 v36, v36, v35
v_cmp_eq_u32 vcc, -1, v36
s_cbranch_vccz {L}_ok
s_cmp_eq_u32 {SPIN}, 0
s_cbranch_scc1 {L}_ok
s_sub_u32 {SPIN}, {SPIN}, 1
s_branch {L}""")
            a.label(L + "_ok")
            a(f"""v_max3_f32 v36, v28, v29, v30
v_max3_f32 v36, v36, v31, v32
v_max3_f32 v36, v36, v33, v34
v_max_f32 v36, v36, v35
v_sub_f32 v37, s55, v36
v_mul_f32 v37, {LOG2E}, v37
v_exp_f32 v37, v37""")
        def consume(j):
            if j < n:
                if j == 0: lds_read(0)
                a("s_waitcnt lgkmcnt(0)")
                if j + 1 < n: lds_read(j + 1)
                r = TQ[j & 1]
            else:
                need(32 + j)
                r = ring(j - n)
            if j == max(20, n):
                cu_max()
                a("v_mov_b32 v38, 1")
            if j == max(20, n, self.jt):
                a(f"ds_write_b32 v27, v38 offset:{TRIG}")
            a(f"v_mov_b32_dpp v{pb}, v{8 + (j >> 4)} row_newbcast:{lane_of(j)} row_mask:0xf bank_mask:0xf")
            for e in range(4):
                a(f"v_lshlrev_b32 v{un[2*e]}, 16, v{r+e}\nv_and_b32 v{un[2*e+1]}, {S_HI}, v{r+e}")
            for e in range(8):
                a(f"v_fmac_f32 v{acc[e]}, v{pb}, v{un[e]}")
        work = [("G", k, 30) for k in range(8)] + [("S", 0, 80)] + [("C", j, 20) for j in range(32)]
        groups_done = 0; consumed = 0
        def can_issue():
            i = st["issued"]
            if i >= 64: return False
            slot = i - 32 - n
            return slot < 0 or groups_done > slot // 4
        BUDGET = self.budget
        while work:
            issued_now = False
            if can_issue():
                tick(); issued_now = True
                if st["issued"] == 64 and self.early:
                    assert consumed > max(20, n)
                    a(f"s_mov_b64 exec, 1\nds_add_u32 v27, v38 offset:{ISSUED}\ns_mov_b64 exec, -1")
            cost = 0
            while work and (cost < BUDGET or not can_issue()):
                kind, k, c = work[0]
                if kind == "C":
                    req = 32 + min(k + 1, n - 1) if k < n else 32 + k
                    if can_issue() and st["known"] < req: break
                work.pop(0); cost += c
                if kind == "G": group(k); groups_done = k + 1
                elif kind == "S": softmax()
                else: consume(k); consumed = k + 1
        assert st["issued"] == 64
        self.stamp(4)
        for e in range(4): a(f"v_permlane32_swap_b32 v{acc[e]}, v{acc[e+4]}")
        for e in range(4): a(f"v_add_f32 v{acc[e]}, v{acc[e]}, v{acc[e+4]}")
        for e in range(2): a(f"v_permlane16_swap_b32 v{acc[e]}, v{acc[e+2]}")
        for e in range(2): a(f"v_add_f32 v{acc[e]}, v{acc[e]}, v{acc[e+2]}")
        a(f"""v_mul_f32 v10, v10, v37
v_mul_f32 v11, v11, v37
v_mul_f32 v12, s56, v37
v_and_b32 v13, 15, v0
v_lshrrev_b32 v14, 4, v0
v_lshl_add_u32 v13, v13, 2, v14
v_lshlrev_b32 v13, 3, v13
s_lshl_b32 s57, s3, 9
v_add_u32 v13, s57, v13
s_lshl_b32 s57, s3, 2
v_mov_b32 v14, s57
ds_write_b64 v13, v[10:11] offset:{OBUF}
ds_write_b32 v14, v12 offset:{LBUF}
v_mov_b32 v15, 1
s_waitcnt lgkmcnt(0)
s_mov_b64 exec, 1
ds_add_rtn_u32 v15, v27, v15 offset:{CNT}
s_mov_b64 exec, -1
v_lshlrev_b32 v13, 3, v0
s_waitcnt lgkmcnt(0)
v_readfirstlane_b32 s57, v15""")
        self.stamp(5)
        a("s_cmp_lg_u32 s57, 7\ns_cbranch_scc1 L_s_pub_done")
        for w in range(8): a(f"ds_read_b64 v[{40+2*w}:{41+2*w}], v13 offset:{OBUF+512*w}")
        a(f"ds_read_b128 v[56:59], v27 offset:{LBUF}\nds_read_b128 v[60:63], v27 offset:{LBUF+16}")
        a(f"s_lshl_b32 s57, s2, 9\ns_add_u32 s57, s57, {O_OFF}\ns_lshl_b32 s58, s2, 3\ns_add_u32 s58, s58, {ML_OFF}\nv_mov_b32 v68, v36")
        a("s_waitcnt lgkmcnt(0)")
        a("""v_add_f32 v64, v40, v42
v_add_f32 v65, v41, v43
v_add_f32 v72, v44, v46
v_add_f32 v73, v45, v47
v_add_f32 v74, v48, v50
v_add_f32 v75, v49, v51
v_add_f32 v76, v52, v54
v_add_f32 v77, v53, v55
v_add_f32 v64, v64, v72
v_add_f32 v65, v65, v73
v_add_f32 v74, v74, v76
v_add_f32 v75, v75, v77
v_add_f32 v64, v64, v74
v_add_f32 v65, v65, v75""")
        a(f"buffer_store_dwordx2 v[64:65], v13, {SRD_WS}, s57 offen sc1")
        a("""v_add_f32 v56, v56, v57
v_add_f32 v58, v58, v59
v_add_f32 v60, v60, v61
v_add_f32 v62, v62, v63
v_add_f32 v56, v56, v58
v_add_f32 v60, v60, v62
v_add_f32 v69, v56, v60
s_mov_b64 exec, 1""")
        a(f"buffer_store_dwordx2 v[68:69], v27, {SRD_WS}, s58 offen sc1\ns_mov_b64 exec, -1")
        if not self.early: a(f"v_mov_b32 v15, 8\nds_write_b32 v27, v15 offset:{ISSUED}")
        self.stamp(6)
        a.label("L_s_pub_done")
        self.role("L_s_exit", "L_s_exit", "L_s_ffn", tick=True)
        a.label("L_s_ffn")
        a("s_barrier")
        self.ffn_wave()
        a.label("L_s_exit")
        self.finish()

    def role(self, l_none, l_wo, l_ffn, tick=False):
        a = self.a
        self.lds_spin(ROLE, "v_cmp_ne_u32", "-1", 2)
        a(f"""s_lshr_b32 s57, s2, 3
s_and_b32 s57, s57, 1
v_readfirstlane_b32 s56, v2
{"s_mov_b32 s%d, s56" % (STAMP0 + 22) if (self.stamps and tick) else ""}
{"s_mov_b32 s%d, 0" % (STAMP0 + 23) if (self.stamps and tick) else ""}
s_lshl_b32 s60, s57, 5
s_add_u32 s60, s60, s56
s_cmp_lt_u32 s56, 32
s_cbranch_scc1 {l_wo}
s_sub_u32 s60, 54, s57
s_cmp_ge_u32 s56, s60
s_cbranch_scc1 {l_none}
s_mul_i32 s60, s57, 22
s_add_u32 s60, s60, s56
s_sub_u32 s60, s60, 32
s_branch {l_ffn}""")

    def ffn_wave(self):
        a = self.a
        a(f"s_lshl_b32 s59, s3, 13\ns_add_u32 s59, s59, {STG}")
        a(f"""v_lshrrev_b32 v4, 4, v0
v_lshlrev_b32 v4, 3, v4
v_and_b32 v5, 7, v0
v_add_u32 v4, v4, v5
v_mov_b32 v30, v4
v_bfe_u32 v5, v0, 3, 1
v_lshl_add_u32 v4, v5, 5, v4
s_lshl_b32 s61, s3, 6
v_add_u32 v5, s61, v4
v_lshlrev_b32 v5, 2, v5
v_lshlrev_b32 v30, 2, v30
v_lshlrev_b32 v8, 2, v4
s_lshl_b32 s61, s3, 8
v_add_u32 v8, s61, v8""")
        self.tr_addr("v6", 64, "v9", "v10"); a("v_add_u32 v6, s59, v6")
        self.tr_addr("v7", 128, "v9", "v10"); a("v_add_u32 v7, s59, v7")
        a(f"""v_and_b32 v31, 31, v0
v_lshlrev_b32 v31, 2, v31
s_lshl_b32 s61, s3, 7
v_add_u32 v31, s61, v31
s_lshl_b32 s61, s3, 3
v_mov_b32 v32, s61
v_and_b32 v33, 7, v0
v_lshlrev_b32 v33, 3, v33
v_mov_b32 v34, 0
v_lshrrev_b32 v35, 4, v0
s_lshl_b32 s61, s3, 2
v_add_u32 v35, s61, v35
v_mul_u32_u24 v35, {F_TILE}, v35
v_and_b32 v36, 15, v0
v_lshl_add_u32 v35, v36, 2, v35
s_lshl_b32 s63, s60, 6
s_add_u32 s63, s63, {F_OFF}
s_mov_b32 s52, {Y_OFF}
s_mov_b32 s53, {Y_OFF + 4096}
s_mov_b32 s54, {Y_OFF + 8192}
s_mov_b32 s55, {Y_OFF + 12288}
s_barrier""")
        self.stamp(7)
        a(f"ds_read_b32 v40, v5 offset:{XN}\nds_read_b32 v41, v5 offset:{GA}\nds_read_b32 v42, v5 offset:{SB}\nds_read_b32 v43, v5 offset:{CB1}")
        B1f, B2f = 64, 80
        self.tr_frags(B1f, "v6", 0, 64, 2, 2)
        for t in range(4):
            for h in range(2):
                a(f"ds_read_b64_tr_b16 v[{B2f+4*t+2*h}:{B2f+4*t+2*h+1}], v7 offset:{4096 + 4*h*128 + t*32}")
        a("s_waitcnt lgkmcnt(0)")
        r = 96
        self.poll3([(f"buffer_load_dword v{r+i}, v8, {SRD_WS}, s{52 + (i >> 1)} offen offset:{2048*(i&1)} sc1", [r + i], None) for i in range(8)], rslot=1)
        a(f"""v_add_f32 v10, v{r}, v{r+1}
v_add_f32 v11, v{r+2}, v{r+3}
v_add_f32 v12, v{r+4}, v{r+5}
v_add_f32 v13, v{r+6}, v{r+7}
v_add_f32 v10, v10, v11
v_add_f32 v12, v12, v13
v_add_f32 v10, v10, v12""")
        self.stamp(8)
        self.rbf("v10", "v10")
        a("v_mul_f32 v10, v41, v10"); self.rbf("v10", "v10")
        a("v_add_f32 v10, v40, v10"); self.rbf("v10", "v10")
        a(f"v_readfirstlane_b32 s61, v10\nds_write_b32 v5, v10 offset:{X1N}\nv_subrev_f32 v12, s61, v10\nv_mul_f32 v13, v12, v12")
        for k in (8, 4, 2, 1):
            self.dpp("v_add_f32", "v12", "v12", "v12", f"row_ror:{k}"); self.dpp("v_add_f32", "v13", "v13", "v13", f"row_ror:{k}")
        self.dpp("v_add_f32", "v12", "v12", "v12", "row_bcast:15", rm="0xa"); self.dpp("v_add_f32", "v13", "v13", "v13", "row_bcast:15", rm="0xa")
        self.dpp("v_add_f32", "v12", "v12", "v12", "row_bcast:31", rm="0xc"); self.dpp("v_add_f32", "v13", "v13", "v13", "row_bcast:31", rm="0xc")
        a(f"""v_mul_f32 v14, 0x3c800000, v12
v_fma_f32 v15, -v14, v12, v13
v_add_f32 v14, s61, v14
s_mov_b32 exec_lo, 0
s_mov_b32 exec_hi, 0x80000000
ds_write_b64 v32, v[14:15] offset:{STAT}
s_mov_b64 exec, -1
s_waitcnt lgkmcnt(0)
s_barrier""")
        a(f"""ds_read_b64 v[18:19], v33 offset:{STAT}
ds_read_b32 v20, v34 offset:{STAT}
s_waitcnt lgkmcnt(0)
v_sub_f32 v18, v18, v20
v_mul_f32 v21, v18, v18
v_fmac_f32 v19, 0x42800000, v21""")
        for ctl in ("row_half_mirror", "quad_perm:[2,3,0,1]", "quad_perm:[1,0,3,2]"):
            self.dpp("v_add_f32", "v18", "v18", "v18", ctl); self.dpp("v_add_f32", "v19", "v19", "v19", ctl)
        a("""v_mul_f32 v21, v18, v18
v_fmac_f32 v20, 0x3e000000, v18
v_fmac_f32 v19, 0xc1000000, v21
v_mul_f32 v19, 0x3b000000, v19
v_max_f32 v19, 0, v19""")
        self.ln_tail1("v20", "v19", "v10", "v22", "v21", "v24", "v25")
        a("v_mul_f32 v22, v22, v43"); self.rbf("v22", "v22")
        a("v_add_f32 v22, v22, v42")
        a("v_mov_b32_dpp v23, v22 quad_perm:[1,1,3,3] row_mask:0xf bank_mask:0xf\nv_cvt_pk_bf16_f32 v24, v22, v23")
        for k in range(2):
            for q in range(4): a(f"v_mov_b32_dpp v{112+4*k+q}, v24 row_newbcast:{8*k+2*q} row_mask:0xf bank_mask:0xf")
        self.mfma_tiles(120, 112, B1f, 2, 2)
        a(f"""v_cndmask_b32 v29, v120, v124, {M_G1}
s_mov_b32 exec_hi, 0
ds_write_b32 v31, v29 offset:{FP}
s_mov_b64 exec, -1
s_waitcnt lgkmcnt(0)
s_barrier""")
        for w in range(8): a(f"ds_read_b32 v{44+w}, v30 offset:{FP+128*w}")
        a("""s_waitcnt lgkmcnt(0)
v_add_f32 v44, v44, v45
v_add_f32 v46, v46, v47
v_add_f32 v48, v48, v49
v_add_f32 v50, v50, v51
v_add_f32 v44, v44, v46
v_add_f32 v48, v48, v50
v_add_f32 v44, v44, v48
v_max_f32 v44, 0, v44
v_mov_b32_dpp v45, v44 quad_perm:[1,1,3,3] row_mask:0xf bank_mask:0xf
v_cvt_pk_bf16_f32 v46, v44, v45""")
        for q in range(4): a(f"v_mov_b32_dpp v{112+q}, v46 row_newbcast:{2*q} row_mask:0xf bank_mask:0xf")
        self.mfma_tiles(120, 112, B2f, 1, 4)
        a(f"""v_cndmask_b32 v40, v120, v124, {M_G1}
v_cndmask_b32 v40, v40, v128, {M_G2}
v_cndmask_b32 v40, v40, v132, {M_G3}
buffer_store_dword v40, v35, {SRD_WS}, s63 offen sc1""")
        self.stamp(9)
        a("s_cmp_lg_u32 s3, 0\ns_cbranch_scc1 L_s_exit\ns_cmp_ge_u32 s60, 32\ns_cbranch_scc1 L_s_exit")
        a(f"""v_lshlrev_b32 v8, 3, v0
s_mul_i32 s61, s60, {F_TILE}
s_add_u32 s61, s61, {F_OFF}
v_and_b32 v9, 7, v0
s_lshl_b32 s62, s60, 6
v_lshl_add_u32 v9, v9, 3, s62
ds_read_b64 v[10:11], v9 offset:{X1N}
ds_read_b64 v[12:13], v9 offset:{GBN}
v_mov_b32 v58, 0
v_mov_b32 v59, 0
v_mov_b32 v74, 0
v_mov_b32 v75, 0
v_and_b32 v14, 7, v0
v_lshlrev_b32 v14, 2, v14
s_lshl_b32 s62, s60, 5
s_mov_b32 s44, s{S_OUT}
s_mov_b32 s45, s{S_OUT+1}
s_mov_b32 s46, 1024
s_mov_b32 s47, 0x20000""")
        r = 48
        self.poll3([(f"buffer_load_dwordx2 v[{r+2*i}:{r+2*i+1}], v8, {SRD_WS}, s61 offen offset:{512*i} sc1", [r + 2*i, r + 2*i + 1], None if i < 5 else "0xffffff") for i in range(6)], rslot=2)
        a(f"""v_add_f32 v80, v{r}, v{r+2}
v_add_f32 v81, v{r+1}, v{r+3}
v_add_f32 v82, v{r+4}, v{r+6}
v_add_f32 v83, v{r+5}, v{r+7}
v_add_f32 v84, v{r+8}, v{r+10}
v_add_f32 v85, v{r+9}, v{r+11}
v_add_f32 v80, v80, v82
v_add_f32 v81, v81, v83
v_add_f32 v80, v80, v84
v_add_f32 v81, v81, v85""")
        self.stamp(10)
        self.dpp("v_add_f32", "v80", "v80", "v80", "row_ror:8"); self.dpp("v_add_f32", "v81", "v81", "v81", "row_ror:8")
        a("v_mov_b32 v82, v80\nv_mov_b32 v83, v81\nv_permlane16_swap_b32 v80, v82\nv_permlane16_swap_b32 v81, v83\nv_add_f32 v80, v80, v82\nv_add_f32 v81, v81, v83")
        a("v_mov_b32 v82, v80\nv_mov_b32 v83, v81\nv_permlane32_swap_b32 v80, v82\nv_permlane32_swap_b32 v81, v83\nv_add_f32 v80, v80, v82\nv_add_f32 v81, v81, v83")
        a("s_waitcnt lgkmcnt(0)")
        self.rbf2("v80", "v81", "v80", "v81", "v82")
        a("v_mul_f32 v80, v12, v80\nv_mul_f32 v81, v13, v81")
        self.rbf2("v80", "v81", "v80", "v81", "v82")
        a(f"""v_add_f32 v80, v10, v80
v_add_f32 v81, v11, v81
v_cvt_pk_bf16_f32 v82, v80, v81
s_mov_b64 exec, 0xff
buffer_store_dword v82, v14, {SRD_A}, s62 offen""")
        a(f"""s_cmp_lg_u32 s60, 0
s_cbranch_scc1 L_s_exit
s_mov_b64 exec, 1
v_mov_b32 v52, s34
v_mov_b32 v53, s35
v_mov_b32 v54, 0
buffer_store_dwordx2 v[52:53], v54, {SRD_WS}, 0 offen sc1""")

    def ln_tail1(self, mean, var, x, out, t0, sd, rs):
        a = self.a
        self.rbf2(mean, var, mean, var, t0)
        a(f"v_add_f32 {var}, 0x3727c5ac, {var}\nv_sub_f32 {out}, {x}, {mean}")
        self.rbf(var, var)
        a(f"v_sqrt_f32 {sd}, {var}")
        self.rbf(out, out)
        self.rbf(sd, sd)
        a(f"v_rcp_f32 {rs}, {sd}")
        a(f"v_mul_f32 {t0}, {out}, {rs}\nv_fma_f32 {out}, -{t0}, {sd}, {out}\nv_fma_f32 {out}, {out}, {rs}, {t0}")
        self.rbf(out, out)

    def layernorm_tail(self, mean, var, xs, outs, t0, sd, rs):
        a = self.a
        self.rbf2(mean, var, mean, var, t0)
        a(f"v_add_f32 {var}, 0x3727c5ac, {var}")
        self.rbf(var, var)
        a(f"v_sqrt_f32 {sd}, {var}")
        self.rbf(sd, sd)
        a(f"v_rcp_f32 {rs}, {sd}")
        for x, o in zip(xs, outs): a(f"v_sub_f32 {o}, {x}, {mean}")
        self.rbf2(outs[0], outs[1], outs[0], outs[1], t0)
        for o in outs:
            a(f"v_mul_f32 {t0}, {o}, {rs}\nv_fma_f32 {o}, -{t0}, {sd}, {o}\nv_fma_f32 {o}, {o}, {rs}, {t0}")
        self.rbf2(outs[0], outs[1], outs[0], outs[1], t0)

    def tile128x64_load(self, srd, voff, rowstride, lds_base, soff0):
        self.dma_tile(srd, voff, 16, 8 * rowstride, lds_base, soff0)

    def ctl_waves(self):
        a = self.a
        b0 = (lambda: a("s_barrier")) if self.b0 else (lambda: None)
        a("v_lshlrev_b32 v1, 4, v0\ns_sub_u32 s3, s3, 8")
        a(f"s_lshl_b32 s59, s3, 14\ns_add_u32 s59, s59, {STG}")
        a(f"s_lshl_b32 s58, s3, 8\ns_add_u32 s58, s58, {ABUF + 8*256}")
        a("s_cmp_eq_u32 s3, 1\ns_cbranch_scc1 L_c1")
        self.ctl_common()
        b0()
        a("s_cmp_eq_u32 s3, 0\ns_cbranch_scc1 L_c0")
        a("s_cmp_eq_u32 s3, 2\ns_cbranch_scc0 L_c3")
        a(f"v_mov_b32 v2, -1\nv_lshlrev_b32 v3, 2, v0\ns_mov_b64 exec, 0xff\nds_write_b32 v3, v2 offset:{MBUF}\ns_mov_b64 exec, 1\nv_mov_b32 v2, 0\nds_write_b32 v2, v2 offset:{CNT}\nds_write_b32 v2, v2 offset:{TRIG}\nds_write_b32 v2, v2 offset:{ISSUED}\nv_mov_b32 v3, -1\nds_write_b32 v2, v3 offset:{ROLE}\ns_mov_b64 exec, -1")
        self.clear_slots()
        a(f"s_cmp_lt_u32 s2, {G_A2}\ns_cbranch_scc1 L_c_b1\ns_cmp_ge_u32 s2, {G_COL_END}\ns_cbranch_scc1 L_c_b1")
        self.collect()
        a("s_branch L_c_b1")
        a.label("L_c3")
        if self.touch:
            a(f"""v_and_b32 v2, 7, v0
s_lshl_b32 s52, s2, 3
v_add_u32 v2, s52, v2
v_lshlrev_b32 v2, 15, v2
global_load_dword v8, v2, s[{S_V}:{S_V+1}]""")
        a("s_branch L_c_b1")
        a.label("L_c1")
        self.c1()
        a.label("L_c0")
        self.c0()
        a.label("L_c_b1")
        a("s_waitcnt vmcnt(0) lgkmcnt(0)")
        self.epoch_once()
        self.stamp(7)
        a("s_barrier")
        a("s_cmp_eq_u32 s3, 3\ns_cbranch_scc0 L_c_b2")
        a(f"s_mov_b32 s56, {RDY_OFF}\ns_mov_b32 s57, {RDY_OFF + 2048}")
        def issue_r2():
            a(f"buffer_load_dwordx4 v[8:11], v1, {SRD_WS}, s56 offen sc1\nbuffer_load_dwordx4 v[12:15], v1, {SRD_WS}, s56 offen offset:1024 sc1")
            a(f"buffer_load_dwordx4 v[16:19], v1, {SRD_WS}, s57 offen sc1\nbuffer_load_dwordx4 v[20:23], v1, {SRD_WS}, s57 offen offset:1024 sc1")
        self.poll(issue_r2, [8, 12, 16, 20], sleep=16)
        self.lds_spin(TRIG, "v_cmp_ne_u32", "0", 8)
        a(f"""s_mov_b32 s44, s{S_DBG}
s_mov_b32 s45, s{S_DBG+1}
s_mov_b32 s46, 256
s_mov_b32 s47, 0x20000
s_lshr_b32 s57, s2, 3
s_and_b32 s57, s57, 1
s_lshl_b32 s57, s57, 7
v_mov_b32 v15, 1
v_mov_b32 v16, 0
s_mov_b64 exec, 1
buffer_atomic_add v15, v16, {SRD_A}, s57 offen sc0
s_waitcnt vmcnt(0)
ds_write_b32 v16, v15 offset:{ROLE}
s_mov_b64 exec, -1""")
        a.label("L_c_b2")
        a("s_waitcnt vmcnt(0) lgkmcnt(0)")
        self.role("L_c_fin", "L_c_wo", "L_c_ffn")
        a.label("L_c_fin")
        a("s_add_u32 s3, s3, 8")
        self.finish()
        a.label("L_c_ffn")
        self.ffn_weights()
        a.label("L_c_wo")
        self.wo_wave()

    def clear_slots(self):
        a = self.a
        a(f"""v_mov_b32 v8, -1
v_mov_b32 v9, -1
v_mov_b32 v10, -1
v_mov_b32 v11, -1
s_lshl_b32 s56, s2, 9
s_add_u32 s56, s56, {O_OFF}
s_lshl_b32 s57, s2, 3
s_add_u32 s57, s57, {ML_OFF}
v_mov_b32 v12, 0
s_mov_b32 exec_hi, 0
buffer_store_dwordx4 v[8:11], v1, {SRD_WS}, s56 offen sc1
s_mov_b64 exec, 1
buffer_store_dwordx2 v[8:9], v12, {SRD_WS}, s57 offen sc1
s_mov_b64 exec, -1""")
        L1 = self.lab("clr"); L2 = self.lab("clr"); L3 = self.lab("clr")
        a(f"s_cmp_ge_u32 s2, 64\ns_cbranch_scc1 {L1}")
        a(f"s_lshl_b32 s56, s2, 8\ns_add_u32 s56, s56, {Y_OFF}\ns_mov_b64 exec, 0xffff\nbuffer_store_dwordx4 v[8:11], v1, {SRD_WS}, s56 offen sc1\ns_mov_b64 exec, -1")
        a.label(L1)
        a(f"s_cmp_lt_u32 s2, {G_A2}\ns_cbranch_scc1 {L3}\ns_cmp_ge_u32 s2, {G_COL_END}\ns_cbranch_scc1 {L3}")
        a(f"s_sub_u32 s56, s2, {G_A2}\ns_lshl_b32 s56, s56, 7\ns_add_u32 s56, s56, {A2_OFF}\ns_mov_b64 exec, 0xff\nbuffer_store_dwordx4 v[8:11], v1, {SRD_WS}, s56 offen sc1\ns_mov_b64 exec, -1")
        a.label(L3)
        a(f"s_cmp_ge_u32 s2, 43\ns_cbranch_scc1 {L2}")
        a(f"""v_lshrrev_b32 v13, 2, v0
v_mul_u32_u24 v13, {F_TILE}, v13
v_and_b32 v14, 3, v0
v_lshl_add_u32 v13, v14, 4, v13
s_lshl_b32 s56, s2, 6
s_add_u32 s56, s56, {F_OFF}
s_add_u32 s57, s56, {16*F_TILE}
buffer_store_dwordx4 v[8:11], v13, {SRD_WS}, s56 offen sc1
buffer_store_dwordx4 v[8:11], v13, {SRD_WS}, s57 offen sc1""")
        a.label(L2)
        a("s_waitcnt vmcnt(0) lgkmcnt(0)")
        self.epoch_once()
        a(f"""v_mov_b32 v16, 0
v_mov_b32 v17, 0
v_mov_b32 v18, {T0}
v_mov_b32 v19, {T1}
s_lshl_b32 s56, s2, 4
s_add_u32 s56, s56, {RDY_OFF}
s_mov_b64 exec, 1
buffer_store_dwordx4 v[16:19], v12, {SRD_WS}, s56 offen sc1
s_mov_b64 exec, -1""")

    def ffn_weights(self):
        a = self.a
        Lv = self.lab("vec")
        a("s_barrier")
        a(f"s_cmp_eq_u32 s3, 0\ns_cbranch_scc0 {Lv}")
        self.ffn_vectors()
        a.label(Lv)
        self.srd(SRD_A, S_W1, 512 * 2752)
        self.srd(SRD_B, S_W2, 1376 * 1024)
        a(f"""v_lshrrev_b32 v2, 2, v0
v_mul_u32_u24 v2, 2752, v2
v_and_b32 v3, 3, v0
v_lshl_add_u32 v2, v3, 4, v2
s_lshl_b32 s61, s60, 6
v_add_u32 v2, s61, v2
v_lshrrev_b32 v3, 3, v0
s_lshl_b32 s61, s60, 5
v_add_u32 v3, s61, v3
v_lshlrev_b32 v3, 10, v3
v_and_b32 v4, 7, v0
v_lshl_add_u32 v3, v4, 4, v3
s_lshl_b32 s61, s3, 14
s_add_u32 s61, s61, {STG}
s_mul_i32 s62, s3, {128*2752}
s_lshl_b32 s63, s3, 8""")
        a("s_mov_b32 m0, s61")
        for k in range(2):
            for i in range(4):
                a(f"buffer_load_dwordx4 v2, {SRD_A}, s62 offen {self.wflag} lds\ns_add_u32 s62, s62, {16*2752}\ns_add_u32 m0, m0, 1024")
            a("s_mov_b32 s56, s63")
            for i in range(4):
                a(f"buffer_load_dwordx4 v3, {SRD_B}, s56 offen {self.wflag} lds\ns_add_u32 s56, s56, 8192")
                if not (k == 1 and i == 3): a("s_add_u32 m0, m0, 1024")
            a("s_add_u32 s63, s63, 128")
        Lg = self.lab("gate")
        a(f"s_cmp_eq_u32 s3, 3\ns_cbranch_scc0 {Lg}")
        a(f"s_waitcnt vmcnt(0)\ns_mov_b32 s56, {ML_OFF}")
        self.poll3([(f"buffer_load_dwordx4 v[8:11], v1, {SRD_WS}, s56 offen sc1", range(8, 12), None),
                    (f"buffer_load_dwordx4 v[12:15], v1, {SRD_WS}, s56 offen offset:1024 sc1", range(12, 16), None)], stag=4, sleep=2)
        self.stamp(9)
        a.label(Lg)
        a("s_waitcnt vmcnt(0) lgkmcnt(0)\ns_barrier")
        a("s_branch L_c_fin")

    def ctl_common(self):
        a = self.a
        a("s_waitcnt lgkmcnt(0)")
        a(f"s_load_dwordx2 s[34:35], s[{S_WS}:{S_WS+1}], 0")
        self.srd(SRD_WS, S_WS, 0x200000 if self.stamps else 0x100000)
        self.consts()
        a("s_mov_b32 s75, 0")

    def collect(self):
        a = self.a
        a(f"s_sub_u32 s60, s2, {G_A2}\ns_lshl_b32 s56, s60, 11\ns_add_u32 s56, s56, {AP_OFF + G_A2 * 512}")
        a(f"s_lshl_b32 s57, s60, 7\ns_add_u32 s57, s57, {A2_OFF}")
        def issue():
            a(f"buffer_load_dwordx4 v[8:11], v1, {SRD_WS}, s56 offen sc1\nbuffer_load_dwordx4 v[12:15], v1, {SRD_WS}, s56 offen offset:1024 sc1")
        self.poll(issue, [8, 12], sleep=16)
        a("v_add_f32 v16, v8, v12\nv_add_f32 v17, v9, v13")
        self.xor32_add("v16", "v20"); self.xor32_add("v17", "v21")
        a(f"""v_cvt_pk_bf16_f32 v18, v16, v17
v_lshlrev_b32 v19, 2, v0
s_mov_b32 exec_hi, 0
buffer_store_dword v18, v19, {SRD_WS}, s57 offen sc1
s_mov_b64 exec, -1""")
        self.stamp(2)

    def epoch_once(self):
        a = self.a
        L = self.lab("ep")
        a(f"s_cmp_eq_u32 s75, 1\ns_cbranch_scc1 {L}")
        self.epoch()
        a("s_mov_b32 s75, 1")
        a.label(L)

    def c1(self):
        a = self.a
        a(f"s_mov_b32 s39, 0\ns_cmp_lt_u32 s2, {G_A2}\ns_cbranch_scc1 L_unit")
        self.ctl_common()
        if self.b0: a("s_barrier")
        a(f"s_cmp_ge_u32 s2, {G_WO}\ns_cbranch_scc1 L_c_b1")
        Lh = self.lab("hint")
        a("s_waitcnt lgkmcnt(0)")
        self.epoch_once()
        a("v_mov_b32 v9, 0")
        a.label(Lh)
        a(f"""ds_read_b32 v8, v9 offset:{HINT}
s_waitcnt lgkmcnt(0)
v_cmp_eq_u32 vcc, {T0}, v8
s_cbranch_vccnz {Lh}_ok
s_cmp_eq_u32 {SPIN}, 0
s_cbranch_scc1 {Lh}_ok
s_sub_u32 {SPIN}, {SPIN}, 1
s_sleep 8
s_branch {Lh}""")
        a.label(Lh + "_ok")
        a("s_mov_b32 s39, 1")
        a.label("L_unit")
        a("""s_lshr_b32 s61, s2, 2
s_lshl_b32 s61, s61, 7
s_and_b32 s60, s2, 3
s_lshl_b32 s60, s60, 7
v_lshrrev_b32 v4, 3, v0
v_mul_u32_u24 v4, 6144, v4
v_and_b32 v5, 7, v0
v_lshl_add_u32 v4, v5, 4, v4
v_add_u32 v4, s61, v4
v_lshlrev_b32 v5, 2, v0
s_lshl_b32 s56, s60, 1
s_mul_i32 s57, s60, 6144
s_waitcnt lgkmcnt(0)""")
        self.srd(SRD_A, S_WM, 512 * 6144)
        self.srd(SRD_B, S_C, 1024)
        a(f"buffer_load_dword v10, v5, {SRD_B}, s56 offen")
        self.dma_tile(SRD_A, "v4", 16, 8 * 6144, "s59", "s57")
        a("s_cmp_eq_u32 s39, 1\ns_cbranch_scc1 L_unit_go")
        if self.b0: a("s_barrier")
        self.ctl_common()
        a.label("L_unit_go")
        self.tr_addr("v6", 128, "v8", "v9"); a("v_add_u32 v6, s59, v6")
        a("v_lshrrev_b32 v7, 4, v0\nv_lshl_add_u32 v7, v7, 4, s58\nv_lshl_add_u32 v12, v0, 2, s58")
        a("s_waitcnt vmcnt(16)")
        a(f"v_lshlrev_b32 v8, 16, v10\nv_and_b32 v9, {S_HI}, v10")
        a(f"""v_mul_f32 v10, 0xbfb8aa3b, v8
v_mul_f32 v11, 0xbfb8aa3b, v9
v_exp_f32 v10, v10
v_exp_f32 v11, v11
v_add_f32 v10, 1.0, v10
v_add_f32 v11, 1.0, v11
v_min_f32 v10, 0x7f7fffff, v10
v_min_f32 v11, 0x7f7fffff, v11
v_rcp_f32 v13, v10
v_rcp_f32 v14, v11""")
        a("""v_mul_f32 v15, v8, v13
v_mul_f32 v16, v9, v14
v_fma_f32 v17, -v15, v10, v8
v_fma_f32 v18, -v16, v11, v9
v_fma_f32 v17, v17, v13, v15
v_fma_f32 v18, v18, v14, v16
v_cvt_pk_bf16_f32 v10, v17, v18
ds_write_b32 v12, v10
s_waitcnt lgkmcnt(0)""")
        for k in range(4): a(f"ds_read_b128 v[{108+4*k}:{111+4*k}], v7 offset:{64*k}")
        a("s_waitcnt vmcnt(0)")
        self.tr_frags(40, "v6", 0, 128, 4, 4)
        a("s_waitcnt lgkmcnt(0)")
        self.mfma_tiles(124, 108, 40, 4, 4)
        self.epoch_once()
        a(f"""s_lshl_b32 s63, s2, 9
s_add_u32 s63, s63, {AP_OFF}
v_cndmask_b32 v140, v124, v132, {M_G1}
v_cndmask_b32 v141, v128, v136, {M_G1}
v_mov_b32 v142, {T0}
v_mov_b32 v143, {T1}
s_mov_b32 exec_hi, 0
buffer_store_dwordx4 v[140:143], v1, {SRD_WS}, s63 offen sc1
s_mov_b64 exec, -1""")
        self.stamp(1)
        a("s_branch L_c_b1")

    def c0(self):
        a = self.a
        if "noc0" in self.exp: a("s_branch L_c_b1")
        a("s_lshr_b32 s60, s2, 3\ns_and_b32 s61, s2, 7")
        self.srd(SRD_A, S_WQ, 512 * 8192)
        self.srd(SRD_B, S_X, 1024)
        a("""v_lshrrev_b32 v4, 4, v0
s_lshl_b32 s56, s61, 6
v_add_u32 v4, s56, v4
v_lshlrev_b32 v4, 13, v4
v_and_b32 v5, 15, v0
v_lshl_add_u32 v4, v5, 4, v4
s_lshl_b32 s56, s60, 8
v_add_u32 v4, s56, v4""")
        a(f"buffer_load_dwordx4 v[24:27], v1, {SRD_B}, 0 offen")
        a("""v_bfe_u32 v6, v0, 4, 1
v_lshlrev_b32 v6, 5, v6
v_add_u32 v6, v6, v5
s_lshl_b32 s56, s61, 7
v_lshl_add_u32 v7, v6, 1, s56""")
        a(f"buffer_load_ushort v28, v7, {SRD_B}, 0 offen\nbuffer_load_ushort v29, v7, {SRD_B}, 0 offen offset:32")
        self.dma_tile(SRD_A, "v4", 16, 4 * 8192, "s59")
        a("s_waitcnt vmcnt(16)")
        self.stamp(1)
        for e in range(4): a(f"v_lshlrev_b32 v{8+2*e}, 16, v{24+e}\nv_and_b32 v{9+2*e}, {S_HI}, v{24+e}")
        a("""v_add_f32 v16, v8, v9
v_add_f32 v17, v10, v11
v_add_f32 v18, v12, v13
v_add_f32 v19, v14, v15
v_add_f32 v16, v16, v17
v_add_f32 v18, v18, v19
v_add_f32 v16, v16, v18""")
        self.wave_reduce_to_s("v_add_f32", "v16", "s56")
        a("v_mov_b32 v20, s56\nv_mul_f32 v20, 0x3b000000, v20")
        for e in range(8): a(f"v_sub_f32 v{8+e}, v{8+e}, v20")
        a("v_mul_f32 v16, v8, v8")
        for e in range(1, 8): a(f"v_fmac_f32 v16, v{8+e}, v{8+e}")
        self.wave_reduce_to_s("v_add_f32", "v16", "s56")
        a("v_mov_b32 v19, s56\nv_mul_f32 v19, 0x3b000000, v19")
        a("v_lshlrev_b32 v28, 16, v28\nv_lshlrev_b32 v29, 16, v29")
        self.layernorm_tail("v20", "v19", ["v28", "v29"], ["v30", "v31"], "v21", "v22", "v23")
        a("s_waitcnt lgkmcnt(0)")
        self.epoch(); a("s_mov_b32 s75, 1")
        self.tr_addr("v144", 256, "v8", "v9"); a("v_add_u32 v144, s59, v144")
        a("s_waitcnt vmcnt(0)")
        self.tr_frags(40, "v144", 0, 256, 2, 8)
        a(f"""v_lshrrev_b32 v8, 5, v0
v_lshlrev_b32 v8, 14, v8
v_and_b32 v9, 31, v0
v_lshl_add_u32 v8, v9, 4, v8
s_lshl_b32 s56, s61, 11
s_add_u32 s56, s56, {AP_OFF}
v_add_u32 v8, s56, v8
s_waitcnt lgkmcnt(0)""")
        self.stamp(2)
        G = [104, 108, 112, 116]
        if self.hintA:
            self.poll(lambda: a(f"buffer_load_dwordx4 v[116:119], v8, {SRD_WS}, 0 offen offset:1536 sc1"), [116], sleep=self.slA, pre=True)
        def issueA():
            for i in range(4): a(f"buffer_load_dwordx4 v[{G[i]}:{G[i]+3}], v8, {SRD_WS}, 0 offen offset:{512*i} sc1")
        self.poll(issueA, G, sleep=self.slA, pre=True, rslot=8)
        self.stamp(3)
        a(f"v_mov_b32 v8, {T0}\nv_mov_b32 v9, 0\nds_write_b32 v9, v8 offset:{HINT}")
        a("""v_add_f32 v8, v104, v108
v_add_f32 v9, v105, v109
v_add_f32 v10, v112, v116
v_add_f32 v11, v113, v117
v_add_f32 v8, v8, v10
v_add_f32 v9, v9, v11""")
        self.rbf2("v8", "v9", "v8", "v9", "v10")
        a("v_mov_b32 v10, v8\nv_mov_b32 v11, v9\nv_permlane32_swap_b32 v8, v10\nv_permlane32_swap_b32 v9, v11")
        a("v_add_f32 v10, 1.0, v10\nv_add_f32 v11, 1.0, v11")
        self.rbf2("v10", "v11", "v10", "v11", "v12")
        a("v_mul_f32 v10, v30, v10\nv_mul_f32 v11, v31, v11")
        self.rbf2("v10", "v11", "v10", "v11", "v12")
        a("v_add_f32 v10, v10, v8\nv_add_f32 v11, v11, v9\nv_cvt_pk_bf16_f32 v12, v10, v11")
        a("""v_lshl_add_u32 v13, v6, 1, s58
ds_write_b16 v13, v12
ds_write_b16_d16_hi v13, v12 offset:32
v_lshrrev_b32 v14, 4, v0
v_lshl_add_u32 v14, v14, 4, s58
s_waitcnt lgkmcnt(0)
ds_read_b128 v[136:139], v14
ds_read_b128 v[140:143], v14 offset:64
s_waitcnt lgkmcnt(0)""")
        self.mfma_tiles(104, 136, 40, 2, 8)
        a(f"""v_cndmask_b32 v8, v104, v112, {M_G1}
v_cndmask_b32 v9, v108, v116, {M_G1}
v_cndmask_b32 v8, v8, v120, {M_G2}
v_cndmask_b32 v9, v9, v124, {M_G2}
v_cndmask_b32 v8, v8, v128, {M_G3}
v_cndmask_b32 v9, v9, v132, {M_G3}
v_mov_b32 v10, {T0}
v_mov_b32 v11, {T1}
s_lshl_b32 s56, s2, 10
s_add_u32 s56, s56, {B_OFF}
buffer_store_dwordx4 v[8:11], v1, {SRD_WS}, s56 offen sc1""")
        self.stamp(4)
        a(f"s_lshl_b32 s56, s60, 13\ns_add_u32 s56, s56, {B_OFF}\ns_add_u32 s57, s56, 4096")
        G = [104 + 4 * i for i in range(8)]
        if self.hintB:
            a("v_and_b32 v15, 7, v0\nv_lshlrev_b32 v15, 10, v15\nv_add_u32 v15, 1008, v15")
            self.poll(lambda: a(f"buffer_load_dwordx4 v[104:107], v15, {SRD_WS}, s56 offen sc1"), [104], sleep=self.slB, pre=True)
        def issueB():
            for i in range(8):
                a(f"buffer_load_dwordx4 v[{G[i]}:{G[i]+3}], v1, {SRD_WS}, {'s56' if i < 4 else 's57'} offen offset:{1024*(i&3)} sc1")
        self.poll(issueB, G, sleep=self.slB, pre=True, rslot=9)
        self.stamp(5)
        a("""v_add_f32 v8, v104, v108
v_add_f32 v9, v105, v109
v_add_f32 v10, v112, v116
v_add_f32 v11, v113, v117
v_add_f32 v12, v120, v124
v_add_f32 v13, v121, v125
v_add_f32 v14, v128, v132
v_add_f32 v15, v129, v133
v_add_f32 v8, v8, v10
v_add_f32 v9, v9, v11
v_add_f32 v12, v12, v14
v_add_f32 v13, v13, v15
v_add_f32 v8, v8, v12
v_add_f32 v9, v9, v13
v_cvt_pk_bf16_f32 v8, v8, v9""")
        a(f"""v_lshrrev_b32 v9, 4, v0
v_lshlrev_b32 v9, 5, v9
v_add_u32 v9, v9, v5
v_lshlrev_b32 v9, 1, v9
ds_write_b16 v9, v8 offset:{QBUF}
ds_write_b16_d16_hi v9, v8 offset:{QBUF+32}""")
        self.stamp(6)

    def ffn_vectors(self):
        a = self.a
        self.srd(SRD_B, S_X, 1024)
        a(f"buffer_load_dwordx4 v[104:107], v1, {SRD_B}, 0 offen\ns_mov_b32 s56, {A2_OFF}")
        self.poll3([(f"buffer_load_dwordx4 v[{40+4*k}:{43+4*k}], v1, {SRD_WS}, s56 offen offset:{1024*k} sc1", range(40 + 4*k, 44 + 4*k), None) for k in range(4)], stag=4, sleep=4, mask0=8)
        a(f"""v_lshrrev_b32 v5, 3, v0
v_lshlrev_b32 v5, 6, v5
v_bfe_u32 v6, v0, 2, 1
v_lshl_add_u32 v5, v6, 5, v5
v_and_b32 v6, 3, v0
v_lshl_add_u32 v5, v6, 2, v5
v_lshlrev_b32 v5, 2, v5
v_lshlrev_b32 v9, 5, v0
s_waitcnt vmcnt(0)""")
        for e in range(4): a(f"v_lshlrev_b32 v{108+2*e}, 16, v{104+e}\nv_and_b32 v{109+2*e}, {S_HI}, v{104+e}")
        a(f"ds_write_b128 v9, v[108:111] offset:{XN}\nds_write_b128 v9, v[112:115] offset:{XN+16}")
        for k in range(4):
            r = 40 + 4 * k; lo = 120 + 8 * k; hi = lo + 4
            for e in range(4): a(f"v_lshlrev_b32 v{lo+e}, 16, v{r+e}\nv_and_b32 v{hi+e}, {S_HI}, v{r+e}")
            if k == 2:
                for e in range(8): a(f"v_add_f32 v{lo+e}, 1.0, v{lo+e}")
                for e in range(0, 8, 2): self.rbf2(f"v{lo+e}", f"v{lo+e+1}", f"v{lo+e}", f"v{lo+e+1}", "v10")
            base = [GA, SB, CB1, GBN][k]
            a(f"ds_write_b128 v5, v[{lo}:{lo+3}] offset:{base}\nds_write_b128 v5, v[{hi}:{hi+3}] offset:{base+64}")

    def wo_wave(self):
        a = self.a
        if "wod" in self.exp: self.stamp(3)
        a("s_lshr_b32 s61, s60, 3\ns_and_b32 s62, s60, 7")
        a("s_lshl_b32 s63, s61, 2\ns_add_u32 s63, s63, s3")
        a("v_and_b32 v7, 7, v0")
        self.srd(SRD_A, S_WO, 4096 * 1024)
        a("""v_lshrrev_b32 v4, 3, v0
v_lshlrev_b32 v4, 10, v4
v_and_b32 v5, 7, v0
v_lshl_add_u32 v4, v5, 4, v4
s_lshl_b32 s56, s62, 7
v_add_u32 v4, s56, v4
s_lshl_b32 s54, s63, 17""")
        self.tr_addr("v6", 128, "v8", "v9"); a("v_add_u32 v6, s59, v6")
        a(f"""v_lshlrev_b32 v7, 3, v7
s_lshl_b32 s56, s63, 6
s_add_u32 s56, s56, {ML_OFF}
s_lshl_b32 s57, s63, 12
s_add_u32 s57, s57, {O_OFF}
v_bfe_u32 v3, v0, 2, 2
v_lshlrev_b32 v3, 4, v3
v_lshrrev_b32 v5, 4, v0
v_lshl_add_u32 v3, v5, 2, v3
v_and_b32 v5, 3, v0
v_add_u32 v3, v3, v5
v_lshlrev_b32 v3, 3, v3
v_lshlrev_b32 v150, 2, v0
s_lshl_b32 s55, s3, 8
v_add_u32 v151, s55, v150
s_lshl_b32 s55, s60, 8
s_add_u32 s55, s55, {Y_OFF}""")
        self.lds_spin(ISSUED, "v_cmp_eq_u32", "8", 1, reg="v2", addr="v5")
        if "wod" in self.exp: self.stamp(4)
        self.dma_tile(SRD_A, "v4", 16, 8192, "s59", "s54")
        self.stamp(8)
        P = [8, 10, 12, 14, 16, 18, 20, 22]
        items = [(f"buffer_load_dwordx2 v[24:25], v7, {SRD_WS}, s56 offen sc1", [24, 25], None)] + \
                [(f"buffer_load_dwordx2 v[{P[i]}:{P[i]+1}], v3, {SRD_WS}, s57 offen offset:{512*i} sc1", [P[i], P[i] + 1], None) for i in range(8)]
        for txt, regs, m0 in items: a(txt)
        a("s_waitcnt vmcnt(9)")
        self.stamp(9)
        self.tr_frags(40, "v6", 0, 128, 4, 4)
        a("s_waitcnt vmcnt(0)")
        self.sentcheck([r for it in items for r in it[1]], "v2")
        Lg = self.lab("gate")
        a(f"s_cbranch_vccz {Lg}_all")
        a.label(Lg)
        a(f"""buffer_load_dwordx2 v[24:25], v7, {SRD_WS}, s56 offen sc1
s_waitcnt vmcnt(0)
v_max_u32 v2, v24, v25
v_cmp_eq_u32 vcc, -1, v2
s_and_b32 s52, vcc_lo, 0xff
s_bcnt1_i32_b32 s52, s52
s_cmp_le_u32 s52, {self.thr}
s_cbranch_scc1 {Lg}_ok
s_cmp_eq_u32 {SPIN}, 0
s_cbranch_scc1 {Lg}_ok
s_sub_u32 {SPIN}, {SPIN}, 1
s_sleep 2
s_branch {Lg}""")
        a.label(Lg + "_ok")
        self.poll3(items, rslot=2, mask0=8)
        a.label(Lg + "_all")
        a("s_waitcnt lgkmcnt(0)")
        self.stamp(6)
        m, l = "v24", "v25"
        a(f"v_mov_b32 v144, {m}")
        for ctl in ("row_half_mirror", "quad_perm:[2,3,0,1]", "quad_perm:[1,0,3,2]"): self.dpp("v_max_f32", "v144", "v144", "v144", ctl)
        a(f"v_sub_f32 v145, {m}, v144\nv_mul_f32 v145, {LOG2E}, v145\nv_exp_f32 v145, v145\nv_mov_b32 v152, 0\nv_mul_f32 v146, v145, {l}")
        for ctl in ("row_half_mirror", "quad_perm:[2,3,0,1]", "quad_perm:[1,0,3,2]"): self.dpp("v_add_f32", "v146", "v146", "v146", ctl)
        a("v_mov_b32 v153, 0\nv_rcp_f32 v147, v146")
        for j in range(8):
            a(f"v_fmac_f32_dpp v152, v145, v{P[j]} row_newbcast:{j} row_mask:0xf bank_mask:0xf")
            a(f"v_fmac_f32_dpp v153, v145, v{P[j]+1} row_newbcast:{j} row_mask:0xf bank_mask:0xf")
        self.stamp(10)
        a("""v_mul_f32 v154, v152, v147
v_mul_f32 v155, v153, v147
v_fma_f32 v156, -v154, v146, v152
v_fma_f32 v157, -v155, v146, v153
v_fma_f32 v154, v156, v147, v154
v_fma_f32 v155, v157, v147, v155
v_cvt_pk_bf16_f32 v148, v154, v155""")
        for k in range(4):
            for q in range(4): a(f"v_mov_b32_dpp v{108+4*k+q}, v148 row_newbcast:{4*k+q} row_mask:0xf bank_mask:0xf")
        self.mfma_tiles(124, 108, 40, 4, 4)
        a(f"""v_cndmask_b32 v158, v124, v128, {M_G1}
v_cndmask_b32 v158, v158, v132, {M_G2}
v_cndmask_b32 v158, v158, v136, {M_G3}
ds_write_b32 v151, v158 offset:{YP}
s_waitcnt lgkmcnt(0)
s_barrier""")
        a("s_cmp_lg_u32 s3, 0\ns_cbranch_scc1 L_wo_done")
        for w in range(4): a(f"ds_read_b32 v{160+w}, v150 offset:{YP + 256*w}")
        a(f"""s_waitcnt lgkmcnt(0)
v_add_f32 v160, v160, v161
v_add_f32 v162, v162, v163
v_add_f32 v160, v160, v162
buffer_store_dword v160, v150, {SRD_WS}, s55 offen sc1""")
        self.stamp(11)
        a.label("L_wo_done")
        a("s_add_u32 s3, s3, 8")
        self.finish()

def generate(**kw):
    g = Gen(**kw)
    return g.build()

if __name__ == "__main__":
    import argparse
    p = argparse.ArgumentParser()
    p.add_argument("-o", default="k.s"); p.add_argument("-W", type=int, default=3); p.add_argument("--stamps", action="store_true")
    p.add_argument("--nohintA", action="store_true"); p.add_argument("--nohintB", action="store_true"); p.add_argument("--noprefetch", action="store_true")
    p.add_argument("--dbg", type=int, default=0); p.add_argument("--jt", type=int, default=26); p.add_argument("--early", action="store_true"); p.add_argument("--thr", type=int, default=2); p.add_argument("--single", action="store_true"); p.add_argument("--stag", type=int, default=8); p.add_argument("--novf", type=int, default=0); p.add_argument("--jb", type=int, default=31); p.add_argument("--budget", type=int, default=70); p.add_argument("--pfmax", type=int, default=256); p.add_argument("--nob0", action="store_true"); p.add_argument("--notouch", action="store_true"); p.add_argument("--exp", default=""); p.add_argument("--slA", type=int, default=4); p.add_argument("--slB", type=int, default=2); p.add_argument("--kv", default="nt"); p.add_argument("--wflag", default="nt")
    x = p.parse_args()
    open(x.o, "w").write(generate(W=x.W, stamps=x.stamps, hintA=not x.nohintA, hintB=not x.nohintB, prefetch=not x.noprefetch, kvflag=x.kv, wflag=x.wflag, exp=x.exp, slA=x.slA, slB=x.slB, pfmax=x.pfmax, b0=not x.nob0, touch=not x.notouch, dbg=x.dbg, novf=x.novf, jb=x.jb, budget=x.budget, single=x.single, stag=x.stag, thr=x.thr, jt=x.jt, early=x.early))
```

```python
import sys
from asmlib import Asm

NAME = "adaLN_cond__gqa_block_cached__dense_activation_relu__decode_kernel"

RDY_OFF = 0x1000; A2_OFF = 0x9000; ML_OFF = 0xD000; GATE_OFF = 0xE000; Y_OFF = 0x10000; AP_OFF = 0xD0000
B_OFF = 0x20000; O_OFF = 0x60000; F_OFF = 0xA0000; STAMP_OFF = 0x100000
F_TILE = 48 * 64
G_A2 = 64; G_COL_END = 96; G_FFN = 96; G_FFN_END = 139; G_WO = 192
CODE_PAD = 24576
QBUF = 0
MBUF = 256
LBUF = 288
STAT = 320
TRIG = 396
ISSUED = 400
ROLE = 392
CNT = 388
HINT = 384
ABUF = 512
OBUF = 4096
YP = 8192
FP = 9216
XN = 10240; GA = XN + 2048; SB = GA + 2048; CB1 = SB + 2048; GBN = CB1 + 2048; X1N = GBN + 2048
STG = 24576
OVF = STG + 32768
S_X, S_K, S_V, S_WQ, S_WO, S_W1, S_W2 = 8, 10, 12, 14, 16, 20, 22
S_C, S_WM, S_OUT, S_DBG, S_WS = 24, 26, 28, 30, 32
S_E = 34; T0, T1 = "s36", "s37"; SPIN = "s38"
SRD_WS = "s[40:43]"; SRD_A = "s[44:47]"; SRD_B = "s[48:51]"
M_B1 = "s[64:65]"; M_B0 = "s[66:67]"; M_G1 = "s[68:69]"; M_G2 = "s[70:71]"; M_G3 = "s[72:73]"
S_HI = "s74"
STAMP0 = 76
RING = 40
LOG2E = "0x3fb8aa3b"; SCALE = "0x3db504f3"

class Gen:
    def __init__(self, W=3, stamps=False, hintA=True, hintB=True, kvflag="nt", prefetch=True, wflag="nt", dbg=False, exp="", slA=4, slB=2, pfmax=256, b0=True, touch=True, novf=0, jb=31, budget=70, single=False, stag=8, thr=2, jt=26, early=False, ry=1, d2=2, d3=2, stag2=8, stag3=8, slG=2):
        self.a = Asm(); self.W = W; self.stamps = stamps; self.hintA = hintA; self.hintB = hintB
        self.kv = kvflag; self.prefetch = prefetch; self.wflag = wflag; self.uid = 0; self.dbg = dbg; self.exp = exp.split(','); self.slA = slA; self.slB = slB; self.pfmax = pfmax; self.b0 = b0; self.touch = touch; self.novf = novf; self.jb = jb; self.budget = budget; self.single = single; self.stag = stag; self.thr = thr; self.jt = jt; self.early = early; self.ry = ry; self.d2 = d2; self.d3 = d3; self.stag2 = stag2; self.stag3 = stag3; self.slG = slG
    def lab(self, p):
        self.uid += 1; return f"L_{p}_{self.uid}"
    def stamp(self, i):
        if self.stamps: self.a(f"s_memrealtime s[{STAMP0+2*i}:{STAMP0+2*i+1}]")
    def finish(self):
        a = self.a
        if self.stamps:
            a("s_waitcnt lgkmcnt(0)\ns_mov_b64 exec, -1")
            a("v_mov_b32 v2, 0")
            for i in range(24): a(f"v_writelane_b32 v2, s{STAMP0+i}, {i}")
            a(f"s_mul_i32 s52, s2, 12\ns_add_u32 s52, s52, s3\ns_lshl_b32 s52, s52, 7\ns_add_u32 s52, s52, {STAMP_OFF}")
            a("v_lshlrev_b32 v3, 2, v0\ns_mov_b32 exec_hi, 0")
            a(f"buffer_store_dword v2, v3, {SRD_WS}, s52 offen")
        a("s_endpgm")
    def rbf(self, dst, src):
        self.a(f"v_cvt_pk_bf16_f32 {dst}, {src}, {src}\nv_and_b32 {dst}, {S_HI}, {dst}")
    def rbf2(self, d0, d1, s0, s1, tmp):
        self.a(f"v_cvt_pk_bf16_f32 {tmp}, {s0}, {s1}\nv_lshlrev_b32 {d0}, 16, {tmp}\nv_and_b32 {d1}, {S_HI}, {tmp}")
    def dpp(self, op, d, s0, s1, ctl, rm="0xf", bm="0xf"):
        self.a(f"{op}_dpp {d}, {s0}, {s1} {ctl} row_mask:{rm} bank_mask:{bm}")
    def row_reduce(self, op, v, steps=(8, 4, 2, 1)):
        for k in steps: self.dpp(op, v, v, v, f"row_ror:{k}")
    def wave_reduce_to_s(self, op, v, s):
        self.row_reduce(op, v)
        self.dpp(op, v, v, v, "row_bcast:15", rm="0xa")
        self.dpp(op, v, v, v, "row_bcast:31", rm="0xc")
        self.a(f"v_readlane_b32 {s}, {v}, 63")
    def xor32_add(self, v, t):
        self.a(f"v_mov_b32 {t}, {v}\nv_permlane32_swap_b32 {v}, {t}\nv_add_f32 {v}, {v}, {t}")
    def xor16_add(self, v, t):
        self.a(f"v_mov_b32 {t}, {v}\nv_permlane16_swap_b32 {v}, {t}\nv_add_f32 {v}, {v}, {t}")
    def tagcheck(self, regs, acc, first=True):
        a = self.a
        for r in regs:
            if first:
                a(f"v_xor_b32 {acc}, {T0}, v{r+2}"); first = False
            else:
                a(f"v_bitop3_b32 {acc}, {acc}, {T0}, v{r+2} bitop3:0xf6")
            a(f"v_bitop3_b32 {acc}, {acc}, {T1}, v{r+3} bitop3:0xf6")
    def poll(self, issue, regs, acc="v2", sleep=0, pre=False, rslot=None):
        a = self.a
        if rslot is not None and "rounds" in self.exp: a(f"s_mov_b32 s{STAMP0+2*rslot}, {SPIN}")
        L = self.lab("poll"); D = self.lab("pok")
        a.label(L)
        issue()
        a("s_waitcnt vmcnt(0)")
        self.tagcheck(regs, acc)
        a(f"v_cmp_ne_u32 vcc, 0, {acc}")
        if "nopoll" in self.exp and pre: a(f"s_branch {D}")
        a(f"s_cbranch_vccz {D}")
        a(f"s_cmp_eq_u32 {SPIN}, 0")
        a(f"s_cbranch_scc1 {D}")
        a(f"s_sub_u32 {SPIN}, {SPIN}, 1")
        if sleep: a(f"s_sleep {sleep}")
        a(f"s_branch {L}")
        a.label(D)
        if rslot is not None and "rounds" in self.exp: a(f"s_sub_u32 s{STAMP0+2*rslot}, s{STAMP0+2*rslot}, {SPIN}\ns_mov_b32 s{STAMP0+2*rslot+1}, 0")
    def sentcheck(self, regs, acc):
        a = self.a; regs = list(regs)
        if len(regs) == 1: a(f"v_cmp_eq_u32 vcc, -1, v{regs[0]}"); return
        if len(regs) == 2: a(f"v_max_u32 {acc}, v{regs[0]}, v{regs[1]}"); rest = []
        else: a(f"v_max3_u32 {acc}, v{regs[0]}, v{regs[1]}, v{regs[2]}"); rest = regs[3:]
        while rest:
            if len(rest) >= 2: a(f"v_max3_u32 {acc}, {acc}, v{rest[0]}, v{rest[1]}"); rest = rest[2:]
            else: a(f"v_max_u32 {acc}, {acc}, v{rest[0]}"); rest = []
        a(f"v_cmp_eq_u32 vcc, -1, {acc}")
    def poll2(self, issue, regs, nload, consume, acc="v2", rslot=None):
        a = self.a
        if rslot is not None and "rounds" in self.exp: a(f"s_mov_b32 s{STAMP0+2*rslot}, {SPIN}")
        L = self.lab("p2"); OA = L + "_a"; OB = L + "_b"; J = L + "_j"
        if self.single:
            a.label(L); issue(0); a("s_waitcnt vmcnt(0)"); self.sentcheck(regs(0), acc)
            a(f"s_cbranch_vccz {OA}\ns_cmp_eq_u32 {SPIN}, 0\ns_cbranch_scc1 {OA}\ns_sub_u32 {SPIN}, {SPIN}, 1\ns_branch {L}")
            a.label(OA); consume(0)
        else:
            issue(0); a(f"s_sleep {self.stag}"); issue(1)
            a.label(L)
            a(f"s_waitcnt vmcnt({nload})"); self.sentcheck(regs(0), acc); a(f"s_cbranch_vccz {OA}")
            issue(0)
            a(f"s_waitcnt vmcnt({nload})"); self.sentcheck(regs(1), acc); a(f"s_cbranch_vccz {OB}")
            issue(1)
            a(f"s_cmp_eq_u32 {SPIN}, 0\ns_cbranch_scc1 {OA}\ns_sub_u32 {SPIN}, {SPIN}, 1\ns_branch {L}")
            a.label(OB); consume(1); a(f"s_branch {J}")
            a.label(OA); consume(0)
            a.label(J)
        if rslot is not None and "rounds" in self.exp: a(f"s_sub_u32 s{STAMP0+2*rslot}, s{STAMP0+2*rslot}, {SPIN}\ns_mov_b32 s{STAMP0+2*rslot+1}, 0")
    def poll3(self, items, rslot=None, stag=None, sleep=0, mask0=8, depth=2):
        a = self.a; n = len(items)
        M = lambda i: f"s[{mask0+2*i}:{mask0+2*i+1}]"
        if rslot is not None and "rounds" in self.exp: a(f"s_mov_b32 s{STAMP0+2*rslot}, {SPIN}")
        for i, (txt, regs, m0) in enumerate(items):
            a(f"s_mov_b64 {M(i)}, {m0 if m0 is not None else -1}")
        def issue():
            for i, (txt, regs, m0) in enumerate(items): a(f"s_mov_b64 exec, {M(i)}\n{txt}")
            a("s_mov_b64 exec, -1")
        L = self.lab("p3"); D = L + "_d"
        if self.single: depth = 1
        for k in range(depth - 1): issue(); a(f"s_sleep {self.stag if stag is None else stag}")
        a.label(L)
        issue()
        a(f"s_waitcnt vmcnt({n * (depth - 1)})")
        for i, (txt, regs, m0) in enumerate(items):
            regs = list(regs)
            if len(regs) == 1: a(f"v_cmp_eq_u32 {M(i)}, -1, v{regs[0]}")
            else:
                if len(regs) == 2: a(f"v_max_u32 v2, v{regs[0]}, v{regs[1]}")
                else: a(f"v_max3_u32 v2, v{regs[0]}, v{regs[1]}, v{regs[2]}\nv_max_u32 v2, v2, v{regs[3]}")
                a(f"v_cmp_eq_u32 {M(i)}, -1, v2")
        a(f"s_or_b64 vcc, {M(0)}, {M(1)}" if n > 1 else f"s_mov_b64 vcc, {M(0)}")
        for i in range(2, n): a(f"s_or_b64 vcc, vcc, {M(i)}")
        a(f"s_cbranch_vccz {D}\ns_cmp_eq_u32 {SPIN}, 0\ns_cbranch_scc1 {D}\ns_sub_u32 {SPIN}, {SPIN}, 1")
        if sleep: a(f"s_sleep {sleep}")
        a(f"s_branch {L}")
        a.label(D)
        if rslot is not None and "rounds" in self.exp: a(f"s_sub_u32 s{STAMP0+2*rslot}, s{STAMP0+2*rslot}, {SPIN}\ns_mov_b32 s{STAMP0+2*rslot+1}, 0")
    def lds_spin(self, off, cmp_op, val, sleep, reg="v2", addr="v3"):
        a = self.a; L = self.lab("ls")
        a(f"v_mov_b32 {addr}, 0")
        a.label(L)
        a(f"""ds_read_b32 {reg}, {addr} offset:{off}
s_waitcnt lgkmcnt(0)
{cmp_op} vcc, {val}, {reg}
s_cbranch_vccnz {L}_ok
s_cmp_eq_u32 {SPIN}, 0
s_cbranch_scc1 {L}_ok
s_sub_u32 {SPIN}, {SPIN}, 1
s_sleep {sleep}
s_branch {L}""")
        a.label(L + "_ok")
    def srd(self, srd, base, size, add=None):
        n = int(srd[2:srd.index(':')])
        if add is None: self.a(f"s_mov_b32 s{n}, s{base}\ns_mov_b32 s{n+1}, s{base+1}")
        else: self.a(f"s_add_u32 s{n}, s{base}, {add}\ns_addc_u32 s{n+1}, s{base+1}, 0")
        self.a(f"s_mov_b32 s{n+2}, {size}\ns_mov_b32 s{n+3}, 0x20000")
    def consts(self):
        a = self.a
        a(f"s_mov_b32 {S_HI}, 0xffff0000\ns_mov_b32 {SPIN}, 0x40000")
        a("s_mov_b32 s64, 0xcccccccc\ns_mov_b32 s65, 0xcccccccc\ns_mov_b32 s66, 0xaaaaaaaa\ns_mov_b32 s67, 0xaaaaaaaa")
        a("s_mov_b32 s68, 0xffff0000\ns_mov_b32 s69, 0\ns_mov_b32 s70, 0\ns_mov_b32 s71, 0xffff\ns_mov_b32 s72, 0\ns_mov_b32 s73, 0xffff0000")
    def epoch(self):
        self.a(f"s_add_u32 s34, s34, 1\ns_addc_u32 s35, s35, 0\ns_xor_b32 {T0}, s34, 0x5bd1e995\ns_xor_b32 {T1}, s35, 0x9e3779b9")
    def dma_tile(self, srd, voff, n, step, lds_base, soff0="0"):
        a = self.a
        a(f"s_mov_b32 s53, {soff0}\ns_mov_b32 m0, {lds_base}")
        for i in range(n):
            a(f"buffer_load_dwordx4 {voff}, {srd}, s53 offen {self.wflag} lds")
            if i < n - 1: a(f"s_add_u32 s53, s53, {step}\ns_add_u32 m0, m0, 1024")
    def tr_addr(self, dst, rowbytes, t0, t1):
        sh = rowbytes.bit_length() - 1
        self.a(f"""v_lshrrev_b32 {t0}, 4, v0
v_bfe_u32 {t1}, v0, 2, 2
v_lshl_add_u32 {t0}, {t0}, 3, {t1}
v_lshlrev_b32 {t0}, {sh}, {t0}
v_and_b32 {t1}, 3, v0
v_lshl_add_u32 {dst}, {t1}, 3, {t0}""")
    def tr_frags(self, base_reg, vaddr, lds_base, rowbytes, nsteps, ntiles):
        for s in range(nsteps):
            for t in range(ntiles):
                r = base_reg + 4 * (s * ntiles + t)
                for h in range(2):
                    off = lds_base + (32 * s + 4 * h) * rowbytes + t * 32
                    self.a(f"ds_read_b64_tr_b16 v[{r+2*h}:{r+2*h+1}], {vaddr} offset:{off}")
    def mfma_tiles(self, dbase, abase, bbase, nsteps, ntiles, zero_first=True):
        for s in range(nsteps):
            for t in range(ntiles):
                d = f"v[{dbase+4*t}:{dbase+4*t+3}]"
                c = "0" if (s == 0 and zero_first) else d
                b = bbase + 4 * (s * ntiles + t)
                self.a(f"v_mfma_f32_16x16x32_bf16 {d}, v[{abase+4*s}:{abase+4*s+3}], v[{b}:{b+3}], {c}")

    def build(self):
        a = self.a; W = self.W
        a.raw(f"; @launch grid=(256,1,1) block=(768,1,1) lds={max(STG + 65536, OVF + 8192 * self.novf)}")
        a.raw('.amdgcn_target "amdgcn-amd-amdhsa--gfx950"')
        a.raw(".text"); a.raw(f".globl {NAME}"); a.raw(".p2align 8"); a.raw(f".type {NAME},@function"); a.raw(f"{NAME}:")
        a("s_cmp_ge_u32 s2, 256\ns_cbranch_scc1 L_exit")
        self.stamp(0)
        a("""s_load_dwordx16 s[8:23], s[0:1], 0
s_load_dwordx8 s[24:31], s[0:1], 64
s_load_dwordx2 s[32:33], s[0:1], 96
v_lshrrev_b32 v1, 6, v0
v_and_b32 v0, 63, v0
v_readfirstlane_b32 s3, v1""")
        if self.prefetch:
            a(f"s_cmp_lg_u32 s3, 11\ns_cbranch_scc1 L_nopf")
            if self.pfmax < 256: a(f"s_cmp_ge_u32 s2, {self.pfmax}\ns_cbranch_scc1 L_nopf")
            a("s_getpc_b64 s[52:53]")
            a.label("L_pc")
            a(f"s_sub_u32 s52, s52, L_pc-{NAME}\ns_subb_u32 s53, s53, 0\nv_lshlrev_b32 v2, 7, v0")
            for i in range(CODE_PAD // 8192):
                a(f"global_load_dword v{4+i}, v2, s[52:53]")
                if i < CODE_PAD // 8192 - 1: a("v_add_u32 v2, 0x2000, v2")
            a.label("L_nopf")
        a("s_cmp_ge_u32 s3, 8\ns_cbranch_scc1 L_ctl")
        self.stream_wave()
        a.label("L_ctl")
        self.ctl_waves()
        a.label("L_exit")
        a("s_endpgm")
        a.raw(f".fill ({CODE_PAD} - (. - {NAME})) / 4, 4, 0xbf800000")
        a.raw("L_code_end:")
        a.raw('.section .rodata,"a"'); a.raw(".p2align 6"); a.raw(f".amdhsa_kernel {NAME}")
        for l in ["  .amdhsa_next_free_vgpr 168", "  .amdhsa_next_free_sgpr 102", "  .amdhsa_accum_offset 168",
                  "  .amdhsa_group_segment_fixed_size 0", "  .amdhsa_kernarg_size 104", "  .amdhsa_user_sgpr_count 2",
                  "  .amdhsa_user_sgpr_kernarg_segment_ptr 1", "  .amdhsa_system_sgpr_workgroup_id_x 1", ".end_amdhsa_kernel"]:
            a.raw(l)
        return a.text()

    def stream_wave(self):
        a = self.a; W = self.W; kv = self.kv; n = self.novf
        ring = lambda j: RING + 4 * j
        a("""s_lshl_b32 s52, s2, 3
s_add_u32 s52, s52, s3
s_lshl_b32 s52, s52, 15
v_lshlrev_b32 v1, 4, v0
s_lshl_b32 s54, s3, 2
s_add_u32 s54, s54, s2
s_and_b32 s54, s54, 31
s_lshl_b32 s54, s54, 10
s_waitcnt lgkmcnt(0)""")
        self.srd(SRD_A, S_K, 32768, "s52")
        if self.b0: a("s_barrier")
        st = dict(issued=0, known=-1)
        def issue():
            i = st["issued"]
            if i < 32:
                r = ring(i); a(f"buffer_load_dwordx4 v[{r}:{r+3}], v1, {SRD_A}, s54 offen {kv}")
            elif i < 32 + n:
                a(f"buffer_load_dwordx4 v1, {SRD_B}, s54 offen {kv} lds")
            else:
                r = ring(i - 32 - n); a(f"buffer_load_dwordx4 v[{r}:{r+3}], v1, {SRD_B}, s54 offen {kv}")
            a("s_add_u32 s54, s54, 1024\ns_and_b32 s54, s54, 0x7fff")
            if 32 <= i < 31 + n: a("s_add_u32 m0, m0, 1024")
            st["issued"] = i + 1
        def tick():
            i = st["issued"]
            if i >= W:
                a(f"s_waitcnt vmcnt({W-1})"); st["known"] = max(st["known"], i - W)
            issue()
        def need(idx):
            if st["known"] < idx:
                a(f"s_waitcnt vmcnt({st['issued'] - 1 - idx})"); st["known"] = idx
        for j in range(W): issue()
        a(f"s_load_dwordx2 s[34:35], s[{S_WS}:{S_WS+1}], 0")
        self.srd(SRD_B, S_V, 32768, "s52")
        self.srd(SRD_WS, S_WS, 0x200000 if self.stamps else 0x100000)
        self.consts()
        if n:
            a(f"s_mul_i32 s57, s3, {n*1024}\ns_add_u32 s57, s57, {OVF}\ns_mov_b32 m0, s57\nv_add_u32 v3, s57, v1")
        while st["issued"] < 32 + n:
            j = st["issued"]
            tick()
            if j == W: self.stamp(11)
            if j == W + 1:
                a("s_waitcnt lgkmcnt(0)"); self.epoch()
        self.stamp(1)
        if self.stamps: a(f"s_mov_b32 s{STAMP0+12}, 0\ns_mov_b32 s{STAMP0+13}, 0")
        a("v_and_b32 v2, 15, v0\nv_lshlrev_b32 v2, 4, v2")
        a("s_barrier")
        self.stamp(2)
        a(f"ds_read_b128 v[4:7], v2 offset:{QBUF}\ns_waitcnt lgkmcnt(0)")
        t = [10, 11, 12, 13]; ra, rb = 14, 15; u = [16, 17, 18, 19]; x, y = 20, 21; S = [8, 9]
        def group(k):
            need(4 * k + 3)
            js = [4 * k + b for b in range(4)]
            for e in range(4):
                for b in range(4):
                    c = "0" if e == 0 else f"v{t[b]}"
                    a(f"v_dot2_f32_bf16 v{t[b]}, v{ring(js[b])+e}, v{4+e}, {c}")
            self.dpp("v_add_f32", f"v{ra}", f"v{t[0]}", f"v{t[0]}", "row_ror:8", bm="0x3")
            self.dpp("v_add_f32", f"v{rb}", f"v{t[2]}", f"v{t[2]}", "row_ror:8", bm="0x3")
            self.dpp("v_add_f32", f"v{ra}", f"v{t[1]}", f"v{t[1]}", "row_ror:8", bm="0xc")
            self.dpp("v_add_f32", f"v{rb}", f"v{t[3]}", f"v{t[3]}", "row_ror:8", bm="0xc")
            uk = u[k & 3]
            self.dpp("v_add_f32", f"v{uk}", f"v{ra}", f"v{ra}", "row_half_mirror", bm="0x5")
            self.dpp("v_add_f32", f"v{uk}", f"v{rb}", f"v{rb}", "row_half_mirror", bm="0xa")
            if (k & 3) == 3:
                def merge(dst, p, q, ctl, mask):
                    self.dpp("v_add_f32", f"v{x}", f"v{p}", f"v{p}", ctl)
                    self.dpp("v_add_f32", f"v{y}", f"v{q}", f"v{q}", ctl)
                    a(f"v_cndmask_b32 v{dst}, v{x}, v{y}, {mask}")
                merge(u[0], u[0], u[1], "quad_perm:[2,3,0,1]", M_B1)
                merge(u[2], u[2], u[3], "quad_perm:[2,3,0,1]", M_B1)
                merge(S[k >> 2], u[0], u[2], "quad_perm:[1,0,3,2]", M_B0)
        acc = list(range(10, 18)); un = list(range(18, 26)); pb = 26
        def softmax():
            self.stamp(3)
            self.rbf2("v8", "v9", "v8", "v9", "v10")
            a(f"v_mul_f32 v8, {SCALE}, v8\nv_mul_f32 v9, {SCALE}, v9")
            self.rbf2("v8", "v9", "v8", "v9", "v10")
            a("v_max_f32 v10, v8, v9")
            self.wave_reduce_to_s("v_max_f32", "v10", "s55")
            a(f"""v_subrev_f32 v8, s55, v8
v_subrev_f32 v9, s55, v9
v_mul_f32 v8, {LOG2E}, v8
v_mul_f32 v9, {LOG2E}, v9
v_exp_f32 v8, v8
v_exp_f32 v9, v9
v_mov_b32 v11, s55
s_lshl_b32 s56, s3, 2
v_mov_b32 v12, s56
s_mov_b64 exec, 1
ds_write_b32 v12, v11 offset:{MBUF}
s_mov_b64 exec, -1
v_add_f32 v10, v8, v9""")
            self.wave_reduce_to_s("v_add_f32", "v10", "s56")
            for e in acc: a(f"v_mov_b32 v{e}, 0")
        def lane_of(j):
            jj = j & 15; ga_, b = jj >> 2, jj & 3
            return ((b & 1) << 3) | ((b >> 1) << 2) | ((ga_ & 1) << 1) | (ga_ >> 1)
        TQ = [28, 32]
        def lds_read(j):
            need(32 + j)
            r = TQ[j & 1]
            a(f"ds_read_b128 v[{r}:{r+3}], v3 offset:{1024*j}")
        def cu_max():
            L = self.lab("mx")
            a("v_mov_b32 v27, 0")
            a.label(L)
            a(f"""ds_read_b128 v[28:31], v27 offset:{MBUF}
ds_read_b128 v[32:35], v27 offset:{MBUF+16}
s_waitcnt lgkmcnt(0)
v_max3_u32 v36, v28, v29, v30
v_max3_u32 v36, v36, v31, v32
v_max3_u32 v36, v36, v33, v34
v_max_u32 v36, v36, v35
v_cmp_eq_u32 vcc, -1, v36
s_cbranch_vccz {L}_ok
s_cmp_eq_u32 {SPIN}, 0
s_cbranch_scc1 {L}_ok
s_sub_u32 {SPIN}, {SPIN}, 1
s_branch {L}""")
            a.label(L + "_ok")
            a(f"""v_max3_f32 v36, v28, v29, v30
v_max3_f32 v36, v36, v31, v32
v_max3_f32 v36, v36, v33, v34
v_max_f32 v36, v36, v35
v_sub_f32 v37, s55, v36
v_mul_f32 v37, {LOG2E}, v37
v_exp_f32 v37, v37""")
        def consume(j):
            if j < n:
                if j == 0: lds_read(0)
                a("s_waitcnt lgkmcnt(0)")
                if j + 1 < n: lds_read(j + 1)
                r = TQ[j & 1]
            else:
                need(32 + j)
                r = ring(j - n)
            if j == max(20, n):
                cu_max()
                a("v_mov_b32 v38, 1")
            if j == max(20, n, self.jt):
                a(f"ds_write_b32 v27, v38 offset:{TRIG}")
            a(f"v_mov_b32_dpp v{pb}, v{8 + (j >> 4)} row_newbcast:{lane_of(j)} row_mask:0xf bank_mask:0xf")
            for e in range(4):
                a(f"v_lshlrev_b32 v{un[2*e]}, 16, v{r+e}\nv_and_b32 v{un[2*e+1]}, {S_HI}, v{r+e}")
            for e in range(8):
                a(f"v_fmac_f32 v{acc[e]}, v{pb}, v{un[e]}")
        work = [("G", k, 30) for k in range(8)] + [("S", 0, 80)] + [("C", j, 20) for j in range(32)]
        groups_done = 0; consumed = 0
        def can_issue():
            i = st["issued"]
            if i >= 64: return False
            slot = i - 32 - n
            return slot < 0 or groups_done > slot // 4
        BUDGET = self.budget
        while work:
            issued_now = False
            if can_issue():
                tick(); issued_now = True
                if st["issued"] == 64 and self.early:
                    assert consumed > max(20, n)
                    a(f"s_mov_b64 exec, 1\nds_add_u32 v27, v38 offset:{ISSUED}\ns_mov_b64 exec, -1")
            cost = 0
            while work and (cost < BUDGET or not can_issue()):
                kind, k, c = work[0]
                if kind == "C":
                    req = 32 + min(k + 1, n - 1) if k < n else 32 + k
                    if can_issue() and st["known"] < req: break
                work.pop(0); cost += c
                if kind == "G": group(k); groups_done = k + 1
                elif kind == "S": softmax()
                else: consume(k); consumed = k + 1
        assert st["issued"] == 64
        self.stamp(4)
        for e in range(4): a(f"v_permlane32_swap_b32 v{acc[e]}, v{acc[e+4]}")
        for e in range(4): a(f"v_add_f32 v{acc[e]}, v{acc[e]}, v{acc[e+4]}")
        for e in range(2): a(f"v_permlane16_swap_b32 v{acc[e]}, v{acc[e+2]}")
        for e in range(2): a(f"v_add_f32 v{acc[e]}, v{acc[e]}, v{acc[e+2]}")
        a(f"""v_mul_f32 v10, v10, v37
v_mul_f32 v11, v11, v37
v_mul_f32 v12, s56, v37
v_and_b32 v13, 15, v0
v_lshrrev_b32 v14, 4, v0
v_lshl_add_u32 v13, v13, 2, v14
v_lshlrev_b32 v13, 3, v13
s_lshl_b32 s57, s3, 9
v_add_u32 v13, s57, v13
s_lshl_b32 s57, s3, 2
v_mov_b32 v14, s57
ds_write_b64 v13, v[10:11] offset:{OBUF}
ds_write_b32 v14, v12 offset:{LBUF}
v_mov_b32 v15, 1
s_waitcnt lgkmcnt(0)
s_mov_b64 exec, 1
ds_add_rtn_u32 v15, v27, v15 offset:{CNT}
s_mov_b64 exec, -1
v_lshlrev_b32 v13, 3, v0
s_waitcnt lgkmcnt(0)
v_readfirstlane_b32 s57, v15""")
        self.stamp(5)
        a("s_cmp_lg_u32 s57, 7\ns_cbranch_scc1 L_s_pub_done")
        for w in range(8): a(f"ds_read_b64 v[{40+2*w}:{41+2*w}], v13 offset:{OBUF+512*w}")
        a(f"ds_read_b128 v[56:59], v27 offset:{LBUF}\nds_read_b128 v[60:63], v27 offset:{LBUF+16}")
        a(f"s_lshl_b32 s57, s2, 9\ns_add_u32 s57, s57, {O_OFF}\ns_lshl_b32 s58, s2, 3\ns_add_u32 s58, s58, {ML_OFF}\nv_mov_b32 v68, v36")
        a("s_waitcnt lgkmcnt(0)")
        a("""v_add_f32 v64, v40, v42
v_add_f32 v65, v41, v43
v_add_f32 v72, v44, v46
v_add_f32 v73, v45, v47
v_add_f32 v74, v48, v50
v_add_f32 v75, v49, v51
v_add_f32 v76, v52, v54
v_add_f32 v77, v53, v55
v_add_f32 v64, v64, v72
v_add_f32 v65, v65, v73
v_add_f32 v74, v74, v76
v_add_f32 v75, v75, v77
v_add_f32 v64, v64, v74
v_add_f32 v65, v65, v75""")
        a(f"buffer_store_dwordx2 v[64:65], v13, {SRD_WS}, s57 offen sc1")
        a("""v_add_f32 v56, v56, v57
v_add_f32 v58, v58, v59
v_add_f32 v60, v60, v61
v_add_f32 v62, v62, v63
v_add_f32 v56, v56, v58
v_add_f32 v60, v60, v62
v_add_f32 v69, v56, v60
s_mov_b64 exec, 1""")
        a(f"buffer_store_dwordx2 v[68:69], v27, {SRD_WS}, s58 offen sc1")
        a(f"s_lshl_b32 s58, s2, 2\ns_add_u32 s58, s58, {GATE_OFF}\ns_mov_b64 exec, 0xf\nv_lshlrev_b32 v14, 10, v0\nbuffer_store_dword v36, v14, {SRD_WS}, s58 offen sc1\ns_mov_b64 exec, -1")
        if not self.early: a(f"v_mov_b32 v15, 8\nds_write_b32 v27, v15 offset:{ISSUED}")
        self.stamp(6)
        a.label("L_s_pub_done")
        self.role("L_s_exit", "L_s_exit", "L_s_ffn", tick=True)
        a.label("L_s_ffn")
        a("s_barrier")
        self.ffn_wave()
        a.label("L_s_exit")
        self.finish()

    def role(self, l_none, l_wo, l_ffn, tick=False):
        a = self.a
        self.lds_spin(ROLE, "v_cmp_ne_u32", "-1", 2)
        a(f"""s_lshr_b32 s57, s2, 3
s_and_b32 s57, s57, 1
v_readfirstlane_b32 s56, v2
{"s_mov_b32 s%d, s56" % (STAMP0 + 22) if (self.stamps and tick) else ""}
{"s_mov_b32 s%d, 0" % (STAMP0 + 23) if (self.stamps and tick) else ""}
s_lshl_b32 s60, s57, 5
s_add_u32 s60, s60, s56
s_cmp_lt_u32 s56, 32
s_cbranch_scc1 {l_wo}
s_sub_u32 s60, 54, s57
s_cmp_ge_u32 s56, s60
s_cbranch_scc1 {l_none}
s_mul_i32 s60, s57, 22
s_add_u32 s60, s60, s56
s_sub_u32 s60, s60, 32
s_branch {l_ffn}""")

    def ffn_wave(self):
        a = self.a
        a(f"s_lshl_b32 s59, s3, 13\ns_add_u32 s59, s59, {STG}")
        a(f"""v_lshrrev_b32 v4, 4, v0
v_lshlrev_b32 v4, 3, v4
v_and_b32 v5, 7, v0
v_add_u32 v4, v4, v5
v_mov_b32 v30, v4
v_bfe_u32 v5, v0, 3, 1
v_lshl_add_u32 v4, v5, 5, v4
s_lshl_b32 s61, s3, 6
v_add_u32 v5, s61, v4
v_lshlrev_b32 v5, 2, v5
v_lshlrev_b32 v30, 2, v30
v_lshlrev_b32 v8, 2, v4
s_lshl_b32 s61, s3, 8
v_add_u32 v8, s61, v8""")
        self.tr_addr("v6", 64, "v9", "v10"); a("v_add_u32 v6, s59, v6")
        self.tr_addr("v7", 128, "v9", "v10"); a("v_add_u32 v7, s59, v7")
        a(f"""v_and_b32 v31, 31, v0
v_lshlrev_b32 v31, 2, v31
s_lshl_b32 s61, s3, 7
v_add_u32 v31, s61, v31
s_lshl_b32 s61, s3, 3
v_mov_b32 v32, s61
v_and_b32 v33, 7, v0
v_lshlrev_b32 v33, 3, v33
v_mov_b32 v34, 0
v_lshrrev_b32 v35, 4, v0
s_lshl_b32 s61, s3, 2
v_add_u32 v35, s61, v35
v_mul_u32_u24 v35, {F_TILE}, v35
v_and_b32 v36, 15, v0
v_lshl_add_u32 v35, v36, 2, v35
s_lshl_b32 s63, s60, 6
s_add_u32 s63, s63, {F_OFF}
s_and_b32 s52, s60, {self.ry - 1}
s_lshl_b32 s52, s52, 14
s_add_u32 s52, s52, {Y_OFF}
s_add_u32 s53, s52, 4096
s_add_u32 s54, s52, 8192
s_add_u32 s55, s52, 12288
s_barrier""")
        self.stamp(7)
        a(f"ds_read_b32 v40, v5 offset:{XN}\nds_read_b32 v41, v5 offset:{GA}\nds_read_b32 v42, v5 offset:{SB}\nds_read_b32 v43, v5 offset:{CB1}")
        B1f, B2f = 64, 80
        self.tr_frags(B1f, "v6", 0, 64, 2, 2)
        for t in range(4):
            for h in range(2):
                a(f"ds_read_b64_tr_b16 v[{B2f+4*t+2*h}:{B2f+4*t+2*h+1}], v7 offset:{4096 + 4*h*128 + t*32}")
        a("s_waitcnt lgkmcnt(0)")
        r = 96
        self.poll3([(f"buffer_load_dword v{r+i}, v8, {SRD_WS}, s{52 + (i >> 1)} offen offset:{2048*(i&1)} sc1", [r + i], None) for i in range(8)], rslot=1, depth=self.d2, stag=self.stag2)
        a(f"""v_add_f32 v10, v{r}, v{r+1}
v_add_f32 v11, v{r+2}, v{r+3}
v_add_f32 v12, v{r+4}, v{r+5}
v_add_f32 v13, v{r+6}, v{r+7}
v_add_f32 v10, v10, v11
v_add_f32 v12, v12, v13
v_add_f32 v10, v10, v12""")
        self.stamp(8)
        self.rbf("v10", "v10")
        a("v_mul_f32 v10, v41, v10"); self.rbf("v10", "v10")
        a("v_add_f32 v10, v40, v10"); self.rbf("v10", "v10")
        a(f"v_readfirstlane_b32 s61, v10\nds_write_b32 v5, v10 offset:{X1N}\nv_subrev_f32 v12, s61, v10\nv_mul_f32 v13, v12, v12")
        for k in (8, 4, 2, 1):
            self.dpp("v_add_f32", "v12", "v12", "v12", f"row_ror:{k}"); self.dpp("v_add_f32", "v13", "v13", "v13", f"row_ror:{k}")
        self.dpp("v_add_f32", "v12", "v12", "v12", "row_bcast:15", rm="0xa"); self.dpp("v_add_f32", "v13", "v13", "v13", "row_bcast:15", rm="0xa")
        self.dpp("v_add_f32", "v12", "v12", "v12", "row_bcast:31", rm="0xc"); self.dpp("v_add_f32", "v13", "v13", "v13", "row_bcast:31", rm="0xc")
        a(f"""v_mul_f32 v14, 0x3c800000, v12
v_fma_f32 v15, -v14, v12, v13
v_add_f32 v14, s61, v14
s_mov_b32 exec_lo, 0
s_mov_b32 exec_hi, 0x80000000
ds_write_b64 v32, v[14:15] offset:{STAT}
s_mov_b64 exec, -1
s_waitcnt lgkmcnt(0)
s_barrier""")
        a(f"""ds_read_b64 v[18:19], v33 offset:{STAT}
ds_read_b32 v20, v34 offset:{STAT}
s_waitcnt lgkmcnt(0)
v_sub_f32 v18, v18, v20
v_mul_f32 v21, v18, v18
v_fmac_f32 v19, 0x42800000, v21""")
        for ctl in ("row_half_mirror", "quad_perm:[2,3,0,1]", "quad_perm:[1,0,3,2]"):
            self.dpp("v_add_f32", "v18", "v18", "v18", ctl); self.dpp("v_add_f32", "v19", "v19", "v19", ctl)
        a("""v_mul_f32 v21, v18, v18
v_fmac_f32 v20, 0x3e000000, v18
v_fmac_f32 v19, 0xc1000000, v21
v_mul_f32 v19, 0x3b000000, v19
v_max_f32 v19, 0, v19""")
        self.ln_tail1("v20", "v19", "v10", "v22", "v21", "v24", "v25")
        a("v_mul_f32 v22, v22, v43"); self.rbf("v22", "v22")
        a("v_add_f32 v22, v22, v42")
        a("v_mov_b32_dpp v23, v22 quad_perm:[1,1,3,3] row_mask:0xf bank_mask:0xf\nv_cvt_pk_bf16_f32 v24, v22, v23")
        for k in range(2):
            for q in range(4): a(f"v_mov_b32_dpp v{112+4*k+q}, v24 row_newbcast:{8*k+2*q} row_mask:0xf bank_mask:0xf")
        self.mfma_tiles(120, 112, B1f, 2, 2)
        a(f"""v_cndmask_b32 v29, v120, v124, {M_G1}
s_mov_b32 exec_hi, 0
ds_write_b32 v31, v29 offset:{FP}
s_mov_b64 exec, -1
s_waitcnt lgkmcnt(0)
s_barrier""")
        for w in range(8): a(f"ds_read_b32 v{44+w}, v30 offset:{FP+128*w}")
        a("""s_waitcnt lgkmcnt(0)
v_add_f32 v44, v44, v45
v_add_f32 v46, v46, v47
v_add_f32 v48, v48, v49
v_add_f32 v50, v50, v51
v_add_f32 v44, v44, v46
v_add_f32 v48, v48, v50
v_add_f32 v44, v44, v48
v_max_f32 v44, 0, v44
v_mov_b32_dpp v45, v44 quad_perm:[1,1,3,3] row_mask:0xf bank_mask:0xf
v_cvt_pk_bf16_f32 v46, v44, v45""")
        for q in range(4): a(f"v_mov_b32_dpp v{112+q}, v46 row_newbcast:{2*q} row_mask:0xf bank_mask:0xf")
        self.mfma_tiles(120, 112, B2f, 1, 4)
        a(f"""v_cndmask_b32 v40, v120, v124, {M_G1}
v_cndmask_b32 v40, v40, v128, {M_G2}
v_cndmask_b32 v40, v40, v132, {M_G3}
buffer_store_dword v40, v35, {SRD_WS}, s63 offen sc1""")
        self.stamp(9)
        a("s_cmp_lg_u32 s3, 0\ns_cbranch_scc1 L_s_exit\ns_cmp_ge_u32 s60, 32\ns_cbranch_scc1 L_s_exit")
        a(f"""v_lshlrev_b32 v8, 3, v0
s_mul_i32 s61, s60, {F_TILE}
s_add_u32 s61, s61, {F_OFF}
v_and_b32 v9, 7, v0
s_lshl_b32 s62, s60, 6
v_lshl_add_u32 v9, v9, 3, s62
ds_read_b64 v[10:11], v9 offset:{X1N}
ds_read_b64 v[12:13], v9 offset:{GBN}
v_mov_b32 v58, 0
v_mov_b32 v59, 0
v_mov_b32 v74, 0
v_mov_b32 v75, 0
v_and_b32 v14, 7, v0
v_lshlrev_b32 v14, 2, v14
s_lshl_b32 s62, s60, 5
s_mov_b32 s44, s{S_OUT}
s_mov_b32 s45, s{S_OUT+1}
s_mov_b32 s46, 1024
s_mov_b32 s47, 0x20000""")
        r = 48
        self.poll3([(f"buffer_load_dwordx2 v[{r+2*i}:{r+2*i+1}], v8, {SRD_WS}, s61 offen offset:{512*i} sc1", [r + 2*i, r + 2*i + 1], None if i < 5 else "0xffffff") for i in range(6)], rslot=2, depth=self.d3, stag=self.stag3)
        a(f"""v_add_f32 v80, v{r}, v{r+2}
v_add_f32 v81, v{r+1}, v{r+3}
v_add_f32 v82, v{r+4}, v{r+6}
v_add_f32 v83, v{r+5}, v{r+7}
v_add_f32 v84, v{r+8}, v{r+10}
v_add_f32 v85, v{r+9}, v{r+11}
v_add_f32 v80, v80, v82
v_add_f32 v81, v81, v83
v_add_f32 v80, v80, v84
v_add_f32 v81, v81, v85""")
        self.stamp(10)
        self.dpp("v_add_f32", "v80", "v80", "v80", "row_ror:8"); self.dpp("v_add_f32", "v81", "v81", "v81", "row_ror:8")
        a("v_mov_b32 v82, v80\nv_mov_b32 v83, v81\nv_permlane16_swap_b32 v80, v82\nv_permlane16_swap_b32 v81, v83\nv_add_f32 v80, v80, v82\nv_add_f32 v81, v81, v83")
        a("v_mov_b32 v82, v80\nv_mov_b32 v83, v81\nv_permlane32_swap_b32 v80, v82\nv_permlane32_swap_b32 v81, v83\nv_add_f32 v80, v80, v82\nv_add_f32 v81, v81, v83")
        a("s_waitcnt lgkmcnt(0)")
        self.rbf2("v80", "v81", "v80", "v81", "v82")
        a("v_mul_f32 v80, v12, v80\nv_mul_f32 v81, v13, v81")
        self.rbf2("v80", "v81", "v80", "v81", "v82")
        a(f"""v_add_f32 v80, v10, v80
v_add_f32 v81, v11, v81
v_cvt_pk_bf16_f32 v82, v80, v81
s_mov_b64 exec, 0xff
buffer_store_dword v82, v14, {SRD_A}, s62 offen""")
        a(f"""s_cmp_lg_u32 s60, 0
s_cbranch_scc1 L_s_exit
s_mov_b64 exec, 1
v_mov_b32 v52, s34
v_mov_b32 v53, s35
v_mov_b32 v54, 0
buffer_store_dwordx2 v[52:53], v54, {SRD_WS}, 0 offen sc1""")

    def ln_tail1(self, mean, var, x, out, t0, sd, rs):
        a = self.a
        self.rbf2(mean, var, mean, var, t0)
        a(f"v_add_f32 {var}, 0x3727c5ac, {var}\nv_sub_f32 {out}, {x}, {mean}")
        self.rbf(var, var)
        a(f"v_sqrt_f32 {sd}, {var}")
        self.rbf(out, out)
        self.rbf(sd, sd)
        a(f"v_rcp_f32 {rs}, {sd}")
        a(f"v_mul_f32 {t0}, {out}, {rs}\nv_fma_f32 {out}, -{t0}, {sd}, {out}\nv_fma_f32 {out}, {out}, {rs}, {t0}")
        self.rbf(out, out)

    def layernorm_tail(self, mean, var, xs, outs, t0, sd, rs):
        a = self.a
        self.rbf2(mean, var, mean, var, t0)
        a(f"v_add_f32 {var}, 0x3727c5ac, {var}")
        self.rbf(var, var)
        a(f"v_sqrt_f32 {sd}, {var}")
        self.rbf(sd, sd)
        a(f"v_rcp_f32 {rs}, {sd}")
        for x, o in zip(xs, outs): a(f"v_sub_f32 {o}, {x}, {mean}")
        self.rbf2(outs[0], outs[1], outs[0], outs[1], t0)
        for o in outs:
            a(f"v_mul_f32 {t0}, {o}, {rs}\nv_fma_f32 {o}, -{t0}, {sd}, {o}\nv_fma_f32 {o}, {o}, {rs}, {t0}")
        self.rbf2(outs[0], outs[1], outs[0], outs[1], t0)

    def tile128x64_load(self, srd, voff, rowstride, lds_base, soff0):
        self.dma_tile(srd, voff, 16, 8 * rowstride, lds_base, soff0)

    def ctl_waves(self):
        a = self.a
        b0 = (lambda: a("s_barrier")) if self.b0 else (lambda: None)
        a("v_lshlrev_b32 v1, 4, v0\ns_sub_u32 s3, s3, 8")
        a(f"s_lshl_b32 s59, s3, 14\ns_add_u32 s59, s59, {STG}")
        a(f"s_lshl_b32 s58, s3, 8\ns_add_u32 s58, s58, {ABUF + 8*256}")
        a("s_cmp_eq_u32 s3, 1\ns_cbranch_scc1 L_c1")
        self.ctl_common()
        b0()
        a("s_cmp_eq_u32 s3, 0\ns_cbranch_scc1 L_c0")
        a("s_cmp_eq_u32 s3, 2\ns_cbranch_scc0 L_c3")
        a(f"v_mov_b32 v2, -1\nv_lshlrev_b32 v3, 2, v0\ns_mov_b64 exec, 0xff\nds_write_b32 v3, v2 offset:{MBUF}\ns_mov_b64 exec, 1\nv_mov_b32 v2, 0\nds_write_b32 v2, v2 offset:{CNT}\nds_write_b32 v2, v2 offset:{TRIG}\nds_write_b32 v2, v2 offset:{ISSUED}\nv_mov_b32 v3, -1\nds_write_b32 v2, v3 offset:{ROLE}\ns_mov_b64 exec, -1")
        self.clear_slots()
        a(f"s_cmp_lt_u32 s2, {G_A2}\ns_cbranch_scc1 L_c_b1\ns_cmp_ge_u32 s2, {G_COL_END}\ns_cbranch_scc1 L_c_b1")
        self.collect()
        a("s_branch L_c_b1")
        a.label("L_c3")
        if self.touch:
            a(f"""v_and_b32 v2, 7, v0
s_lshl_b32 s52, s2, 3
v_add_u32 v2, s52, v2
v_lshlrev_b32 v2, 15, v2
global_load_dword v8, v2, s[{S_V}:{S_V+1}]""")
        a("s_branch L_c_b1")
        a.label("L_c1")
        self.c1()
        a.label("L_c0")
        self.c0()
        a.label("L_c_b1")
        a("s_waitcnt vmcnt(0) lgkmcnt(0)")
        self.epoch_once()
        self.stamp(7)
        a("s_barrier")
        a("s_cmp_eq_u32 s3, 3\ns_cbranch_scc0 L_c_b2")
        a(f"s_mov_b32 s56, {RDY_OFF}\ns_mov_b32 s57, {RDY_OFF + 2048}")
        def issue_r2():
            a(f"buffer_load_dwordx4 v[8:11], v1, {SRD_WS}, s56 offen sc1\nbuffer_load_dwordx4 v[12:15], v1, {SRD_WS}, s56 offen offset:1024 sc1")
            a(f"buffer_load_dwordx4 v[16:19], v1, {SRD_WS}, s57 offen sc1\nbuffer_load_dwordx4 v[20:23], v1, {SRD_WS}, s57 offen offset:1024 sc1")
        self.poll(issue_r2, [8, 12, 16, 20], sleep=16)
        self.lds_spin(TRIG, "v_cmp_ne_u32", "0", 8)
        a(f"""s_mov_b32 s44, s{S_DBG}
s_mov_b32 s45, s{S_DBG+1}
s_mov_b32 s46, 256
s_mov_b32 s47, 0x20000
s_lshr_b32 s57, s2, 3
s_and_b32 s57, s57, 1
s_lshl_b32 s57, s57, 7
v_mov_b32 v15, 1
v_mov_b32 v16, 0
s_mov_b64 exec, 1
buffer_atomic_add v15, v16, {SRD_A}, s57 offen sc0
s_waitcnt vmcnt(0)
ds_write_b32 v16, v15 offset:{ROLE}
s_mov_b64 exec, -1""")
        a.label("L_c_b2")
        a("s_waitcnt vmcnt(0) lgkmcnt(0)")
        self.role("L_c_fin", "L_c_wo", "L_c_ffn")
        a.label("L_c_fin")
        a("s_add_u32 s3, s3, 8")
        self.finish()
        a.label("L_c_ffn")
        self.ffn_weights()
        a.label("L_c_wo")
        self.wo_wave()

    def clear_slots(self):
        a = self.a
        a(f"""v_mov_b32 v8, -1
v_mov_b32 v9, -1
v_mov_b32 v10, -1
v_mov_b32 v11, -1
s_lshl_b32 s56, s2, 9
s_add_u32 s56, s56, {O_OFF}
s_lshl_b32 s57, s2, 3
s_add_u32 s57, s57, {ML_OFF}
v_mov_b32 v12, 0
s_mov_b32 exec_hi, 0
buffer_store_dwordx4 v[8:11], v1, {SRD_WS}, s56 offen sc1
s_mov_b64 exec, 1
buffer_store_dwordx2 v[8:9], v12, {SRD_WS}, s57 offen sc1
s_mov_b64 exec, -1""")
        a(f"s_lshl_b32 s56, s2, 2\ns_add_u32 s56, s56, {GATE_OFF}\nv_lshlrev_b32 v13, 10, v0\ns_mov_b64 exec, 0xf\nbuffer_store_dword v8, v13, {SRD_WS}, s56 offen sc1\ns_mov_b64 exec, -1")
        L1 = self.lab("clr"); L2 = self.lab("clr"); L3 = self.lab("clr")
        a(f"s_cmp_ge_u32 s2, 64\ns_cbranch_scc1 {L1}")
        a(f"s_lshl_b32 s56, s2, 8\ns_add_u32 s56, s56, {Y_OFF}\ns_mov_b64 exec, 0xffff")
        for r in range(self.ry):
            a(f"buffer_store_dwordx4 v[8:11], v1, {SRD_WS}, s56 offen sc1")
            if r < self.ry - 1: a("s_add_u32 s56, s56, 16384")
        a("s_mov_b64 exec, -1")
        a.label(L1)
        a(f"s_cmp_lt_u32 s2, {G_A2}\ns_cbranch_scc1 {L3}\ns_cmp_ge_u32 s2, {G_COL_END}\ns_cbranch_scc1 {L3}")
        a(f"s_sub_u32 s56, s2, {G_A2}\ns_lshl_b32 s56, s56, 7\ns_add_u32 s56, s56, {A2_OFF}\ns_mov_b64 exec, 0xff\nbuffer_store_dwordx4 v[8:11], v1, {SRD_WS}, s56 offen sc1\ns_mov_b64 exec, -1")
        a.label(L3)
        a(f"s_cmp_ge_u32 s2, 43\ns_cbranch_scc1 {L2}")
        a(f"""v_lshrrev_b32 v13, 2, v0
v_mul_u32_u24 v13, {F_TILE}, v13
v_and_b32 v14, 3, v0
v_lshl_add_u32 v13, v14, 4, v13
s_lshl_b32 s56, s2, 6
s_add_u32 s56, s56, {F_OFF}
s_add_u32 s57, s56, {16*F_TILE}
buffer_store_dwordx4 v[8:11], v13, {SRD_WS}, s56 offen sc1
buffer_store_dwordx4 v[8:11], v13, {SRD_WS}, s57 offen sc1""")
        a.label(L2)
        a("s_waitcnt vmcnt(0) lgkmcnt(0)")
        self.epoch_once()
        a(f"""v_mov_b32 v16, 0
v_mov_b32 v17, 0
v_mov_b32 v18, {T0}
v_mov_b32 v19, {T1}
s_lshl_b32 s56, s2, 4
s_add_u32 s56, s56, {RDY_OFF}
s_mov_b64 exec, 1
buffer_store_dwordx4 v[16:19], v12, {SRD_WS}, s56 offen sc1
s_mov_b64 exec, -1""")

    def ffn_weights(self):
        a = self.a
        Lv = self.lab("vec")
        a("s_barrier")
        a(f"s_cmp_eq_u32 s3, 0\ns_cbranch_scc0 {Lv}")
        self.ffn_vectors()
        a.label(Lv)
        self.srd(SRD_A, S_W1, 512 * 2752)
        self.srd(SRD_B, S_W2, 1376 * 1024)
        a(f"""v_lshrrev_b32 v2, 2, v0
v_mul_u32_u24 v2, 2752, v2
v_and_b32 v3, 3, v0
v_lshl_add_u32 v2, v3, 4, v2
s_lshl_b32 s61, s60, 6
v_add_u32 v2, s61, v2
v_lshrrev_b32 v3, 3, v0
s_lshl_b32 s61, s60, 5
v_add_u32 v3, s61, v3
v_lshlrev_b32 v3, 10, v3
v_and_b32 v4, 7, v0
v_lshl_add_u32 v3, v4, 4, v3
s_lshl_b32 s61, s3, 14
s_add_u32 s61, s61, {STG}
s_mul_i32 s62, s3, {128*2752}
s_lshl_b32 s63, s3, 8""")
        a("s_mov_b32 m0, s61")
        for k in range(2):
            for i in range(4):
                a(f"buffer_load_dwordx4 v2, {SRD_A}, s62 offen {self.wflag} lds\ns_add_u32 s62, s62, {16*2752}\ns_add_u32 m0, m0, 1024")
            a("s_mov_b32 s56, s63")
            for i in range(4):
                a(f"buffer_load_dwordx4 v3, {SRD_B}, s56 offen {self.wflag} lds\ns_add_u32 s56, s56, 8192")
                if not (k == 1 and i == 3): a("s_add_u32 m0, m0, 1024")
            a("s_add_u32 s63, s63, 128")
        Lg = self.lab("gate")
        a(f"s_cmp_eq_u32 s3, 3\ns_cbranch_scc0 {Lg}")
        a(f"s_waitcnt vmcnt(0)\ns_and_b32 s56, s60, 3\ns_lshl_b32 s56, s56, 10\ns_add_u32 s56, s56, {GATE_OFF}")
        self.poll3([(f"buffer_load_dwordx4 v[8:11], v1, {SRD_WS}, s56 offen sc1", range(8, 12), None)], stag=4, sleep=self.slG)
        self.stamp(9)
        a.label(Lg)
        a("s_waitcnt vmcnt(0) lgkmcnt(0)\ns_barrier")
        a("s_branch L_c_fin")

    def ctl_common(self):
        a = self.a
        a("s_waitcnt lgkmcnt(0)")
        a(f"s_load_dwordx2 s[34:35], s[{S_WS}:{S_WS+1}], 0")
        self.srd(SRD_WS, S_WS, 0x200000 if self.stamps else 0x100000)
        self.consts()
        a("s_mov_b32 s75, 0")

    def collect(self):
        a = self.a
        a(f"s_sub_u32 s60, s2, {G_A2}\ns_lshl_b32 s56, s60, 11\ns_add_u32 s56, s56, {AP_OFF + G_A2 * 512}")
        a(f"s_lshl_b32 s57, s60, 7\ns_add_u32 s57, s57, {A2_OFF}")
        def issue():
            a(f"buffer_load_dwordx4 v[8:11], v1, {SRD_WS}, s56 offen sc1\nbuffer_load_dwordx4 v[12:15], v1, {SRD_WS}, s56 offen offset:1024 sc1")
        self.poll(issue, [8, 12], sleep=16)
        a("v_add_f32 v16, v8, v12\nv_add_f32 v17, v9, v13")
        self.xor32_add("v16", "v20"); self.xor32_add("v17", "v21")
        a(f"""v_cvt_pk_bf16_f32 v18, v16, v17
v_lshlrev_b32 v19, 2, v0
s_mov_b32 exec_hi, 0
buffer_store_dword v18, v19, {SRD_WS}, s57 offen sc1
s_mov_b64 exec, -1""")
        self.stamp(2)

    def epoch_once(self):
        a = self.a
        L = self.lab("ep")
        a(f"s_cmp_eq_u32 s75, 1\ns_cbranch_scc1 {L}")
        self.epoch()
        a("s_mov_b32 s75, 1")
        a.label(L)

    def c1(self):
        a = self.a
        a(f"s_mov_b32 s39, 0\ns_cmp_lt_u32 s2, {G_A2}\ns_cbranch_scc1 L_unit")
        self.ctl_common()
        if self.b0: a("s_barrier")
        a(f"s_cmp_ge_u32 s2, {G_WO}\ns_cbranch_scc1 L_c_b1")
        Lh = self.lab("hint")
        a("s_waitcnt lgkmcnt(0)")
        self.epoch_once()
        a("v_mov_b32 v9, 0")
        a.label(Lh)
        a(f"""ds_read_b32 v8, v9 offset:{HINT}
s_waitcnt lgkmcnt(0)
v_cmp_eq_u32 vcc, {T0}, v8
s_cbranch_vccnz {Lh}_ok
s_cmp_eq_u32 {SPIN}, 0
s_cbranch_scc1 {Lh}_ok
s_sub_u32 {SPIN}, {SPIN}, 1
s_sleep 8
s_branch {Lh}""")
        a.label(Lh + "_ok")
        a("s_mov_b32 s39, 1")
        a.label("L_unit")
        a("""s_lshr_b32 s61, s2, 2
s_lshl_b32 s61, s61, 7
s_and_b32 s60, s2, 3
s_lshl_b32 s60, s60, 7
v_lshrrev_b32 v4, 3, v0
v_mul_u32_u24 v4, 6144, v4
v_and_b32 v5, 7, v0
v_lshl_add_u32 v4, v5, 4, v4
v_add_u32 v4, s61, v4
v_lshlrev_b32 v5, 2, v0
s_lshl_b32 s56, s60, 1
s_mul_i32 s57, s60, 6144
s_waitcnt lgkmcnt(0)""")
        self.srd(SRD_A, S_WM, 512 * 6144)
        self.srd(SRD_B, S_C, 1024)
        a(f"buffer_load_dword v10, v5, {SRD_B}, s56 offen")
        self.dma_tile(SRD_A, "v4", 16, 8 * 6144, "s59", "s57")
        a("s_cmp_eq_u32 s39, 1\ns_cbranch_scc1 L_unit_go")
        if self.b0: a("s_barrier")
        self.ctl_common()
        a.label("L_unit_go")
        self.tr_addr("v6", 128, "v8", "v9"); a("v_add_u32 v6, s59, v6")
        a("v_lshrrev_b32 v7, 4, v0\nv_lshl_add_u32 v7, v7, 4, s58\nv_lshl_add_u32 v12, v0, 2, s58")
        a("s_waitcnt vmcnt(16)")
        a(f"v_lshlrev_b32 v8, 16, v10\nv_and_b32 v9, {S_HI}, v10")
        a(f"""v_mul_f32 v10, 0xbfb8aa3b, v8
v_mul_f32 v11, 0xbfb8aa3b, v9
v_exp_f32 v10, v10
v_exp_f32 v11, v11
v_add_f32 v10, 1.0, v10
v_add_f32 v11, 1.0, v11
v_min_f32 v10, 0x7f7fffff, v10
v_min_f32 v11, 0x7f7fffff, v11
v_rcp_f32 v13, v10
v_rcp_f32 v14, v11""")
        a("""v_mul_f32 v15, v8, v13
v_mul_f32 v16, v9, v14
v_fma_f32 v17, -v15, v10, v8
v_fma_f32 v18, -v16, v11, v9
v_fma_f32 v17, v17, v13, v15
v_fma_f32 v18, v18, v14, v16
v_cvt_pk_bf16_f32 v10, v17, v18
ds_write_b32 v12, v10
s_waitcnt lgkmcnt(0)""")
        for k in range(4): a(f"ds_read_b128 v[{108+4*k}:{111+4*k}], v7 offset:{64*k}")
        a("s_waitcnt vmcnt(0)")
        self.tr_frags(40, "v6", 0, 128, 4, 4)
        a("s_waitcnt lgkmcnt(0)")
        self.mfma_tiles(124, 108, 40, 4, 4)
        self.epoch_once()
        a(f"""s_lshl_b32 s63, s2, 9
s_add_u32 s63, s63, {AP_OFF}
v_cndmask_b32 v140, v124, v132, {M_G1}
v_cndmask_b32 v141, v128, v136, {M_G1}
v_mov_b32 v142, {T0}
v_mov_b32 v143, {T1}
s_mov_b32 exec_hi, 0
buffer_store_dwordx4 v[140:143], v1, {SRD_WS}, s63 offen sc1
s_mov_b64 exec, -1""")
        self.stamp(1)
        a("s_branch L_c_b1")

    def c0(self):
        a = self.a
        if "noc0" in self.exp: a("s_branch L_c_b1")
        a("s_lshr_b32 s60, s2, 3\ns_and_b32 s61, s2, 7")
        self.srd(SRD_A, S_WQ, 512 * 8192)
        self.srd(SRD_B, S_X, 1024)
        a("""v_lshrrev_b32 v4, 4, v0
s_lshl_b32 s56, s61, 6
v_add_u32 v4, s56, v4
v_lshlrev_b32 v4, 13, v4
v_and_b32 v5, 15, v0
v_lshl_add_u32 v4, v5, 4, v4
s_lshl_b32 s56, s60, 8
v_add_u32 v4, s56, v4""")
        a(f"buffer_load_dwordx4 v[24:27], v1, {SRD_B}, 0 offen")
        a("""v_bfe_u32 v6, v0, 4, 1
v_lshlrev_b32 v6, 5, v6
v_add_u32 v6, v6, v5
s_lshl_b32 s56, s61, 7
v_lshl_add_u32 v7, v6, 1, s56""")
        a(f"buffer_load_ushort v28, v7, {SRD_B}, 0 offen\nbuffer_load_ushort v29, v7, {SRD_B}, 0 offen offset:32")
        self.dma_tile(SRD_A, "v4", 16, 4 * 8192, "s59")
        a("s_waitcnt vmcnt(16)")
        self.stamp(1)
        for e in range(4): a(f"v_lshlrev_b32 v{8+2*e}, 16, v{24+e}\nv_and_b32 v{9+2*e}, {S_HI}, v{24+e}")
        a("""v_add_f32 v16, v8, v9
v_add_f32 v17, v10, v11
v_add_f32 v18, v12, v13
v_add_f32 v19, v14, v15
v_add_f32 v16, v16, v17
v_add_f32 v18, v18, v19
v_add_f32 v16, v16, v18""")
        self.wave_reduce_to_s("v_add_f32", "v16", "s56")
        a("v_mov_b32 v20, s56\nv_mul_f32 v20, 0x3b000000, v20")
        for e in range(8): a(f"v_sub_f32 v{8+e}, v{8+e}, v20")
        a("v_mul_f32 v16, v8, v8")
        for e in range(1, 8): a(f"v_fmac_f32 v16, v{8+e}, v{8+e}")
        self.wave_reduce_to_s("v_add_f32", "v16", "s56")
        a("v_mov_b32 v19, s56\nv_mul_f32 v19, 0x3b000000, v19")
        a("v_lshlrev_b32 v28, 16, v28\nv_lshlrev_b32 v29, 16, v29")
        self.layernorm_tail("v20", "v19", ["v28", "v29"], ["v30", "v31"], "v21", "v22", "v23")
        a("s_waitcnt lgkmcnt(0)")
        self.epoch(); a("s_mov_b32 s75, 1")
        self.tr_addr("v144", 256, "v8", "v9"); a("v_add_u32 v144, s59, v144")
        a("s_waitcnt vmcnt(0)")
        self.tr_frags(40, "v144", 0, 256, 2, 8)
        a(f"""v_lshrrev_b32 v8, 5, v0
v_lshlrev_b32 v8, 14, v8
v_and_b32 v9, 31, v0
v_lshl_add_u32 v8, v9, 4, v8
s_lshl_b32 s56, s61, 11
s_add_u32 s56, s56, {AP_OFF}
v_add_u32 v8, s56, v8
s_waitcnt lgkmcnt(0)""")
        self.stamp(2)
        G = [104, 108, 112, 116]
        if self.hintA:
            self.poll(lambda: a(f"buffer_load_dwordx4 v[116:119], v8, {SRD_WS}, 0 offen offset:1536 sc1"), [116], sleep=self.slA, pre=True)
        def issueA():
            for i in range(4): a(f"buffer_load_dwordx4 v[{G[i]}:{G[i]+3}], v8, {SRD_WS}, 0 offen offset:{512*i} sc1")
        self.poll(issueA, G, sleep=self.slA, pre=True, rslot=8)
        self.stamp(3)
        a(f"v_mov_b32 v8, {T0}\nv_mov_b32 v9, 0\nds_write_b32 v9, v8 offset:{HINT}")
        a("""v_add_f32 v8, v104, v108
v_add_f32 v9, v105, v109
v_add_f32 v10, v112, v116
v_add_f32 v11, v113, v117
v_add_f32 v8, v8, v10
v_add_f32 v9, v9, v11""")
        self.rbf2("v8", "v9", "v8", "v9", "v10")
        a("v_mov_b32 v10, v8\nv_mov_b32 v11, v9\nv_permlane32_swap_b32 v8, v10\nv_permlane32_swap_b32 v9, v11")
        a("v_add_f32 v10, 1.0, v10\nv_add_f32 v11, 1.0, v11")
        self.rbf2("v10", "v11", "v10", "v11", "v12")
        a("v_mul_f32 v10, v30, v10\nv_mul_f32 v11, v31, v11")
        self.rbf2("v10", "v11", "v10", "v11", "v12")
        a("v_add_f32 v10, v10, v8\nv_add_f32 v11, v11, v9\nv_cvt_pk_bf16_f32 v12, v10, v11")
        a("""v_lshl_add_u32 v13, v6, 1, s58
ds_write_b16 v13, v12
ds_write_b16_d16_hi v13, v12 offset:32
v_lshrrev_b32 v14, 4, v0
v_lshl_add_u32 v14, v14, 4, s58
s_waitcnt lgkmcnt(0)
ds_read_b128 v[136:139], v14
ds_read_b128 v[140:143], v14 offset:64
s_waitcnt lgkmcnt(0)""")
        self.mfma_tiles(104, 136, 40, 2, 8)
        a(f"""v_cndmask_b32 v8, v104, v112, {M_G1}
v_cndmask_b32 v9, v108, v116, {M_G1}
v_cndmask_b32 v8, v8, v120, {M_G2}
v_cndmask_b32 v9, v9, v124, {M_G2}
v_cndmask_b32 v8, v8, v128, {M_G3}
v_cndmask_b32 v9, v9, v132, {M_G3}
v_mov_b32 v10, {T0}
v_mov_b32 v11, {T1}
s_lshl_b32 s56, s2, 10
s_add_u32 s56, s56, {B_OFF}
buffer_store_dwordx4 v[8:11], v1, {SRD_WS}, s56 offen sc1""")
        self.stamp(4)
        a(f"s_lshl_b32 s56, s60, 13\ns_add_u32 s56, s56, {B_OFF}\ns_add_u32 s57, s56, 4096")
        G = [104 + 4 * i for i in range(8)]
        if self.hintB:
            a("v_and_b32 v15, 7, v0\nv_lshlrev_b32 v15, 10, v15\nv_add_u32 v15, 1008, v15")
            self.poll(lambda: a(f"buffer_load_dwordx4 v[104:107], v15, {SRD_WS}, s56 offen sc1"), [104], sleep=self.slB, pre=True)
        def issueB():
            for i in range(8):
                a(f"buffer_load_dwordx4 v[{G[i]}:{G[i]+3}], v1, {SRD_WS}, {'s56' if i < 4 else 's57'} offen offset:{1024*(i&3)} sc1")
        self.poll(issueB, G, sleep=self.slB, pre=True, rslot=9)
        self.stamp(5)
        a("""v_add_f32 v8, v104, v108
v_add_f32 v9, v105, v109
v_add_f32 v10, v112, v116
v_add_f32 v11, v113, v117
v_add_f32 v12, v120, v124
v_add_f32 v13, v121, v125
v_add_f32 v14, v128, v132
v_add_f32 v15, v129, v133
v_add_f32 v8, v8, v10
v_add_f32 v9, v9, v11
v_add_f32 v12, v12, v14
v_add_f32 v13, v13, v15
v_add_f32 v8, v8, v12
v_add_f32 v9, v9, v13
v_cvt_pk_bf16_f32 v8, v8, v9""")
        a(f"""v_lshrrev_b32 v9, 4, v0
v_lshlrev_b32 v9, 5, v9
v_add_u32 v9, v9, v5
v_lshlrev_b32 v9, 1, v9
ds_write_b16 v9, v8 offset:{QBUF}
ds_write_b16_d16_hi v9, v8 offset:{QBUF+32}""")
        self.stamp(6)

    def ffn_vectors(self):
        a = self.a
        self.srd(SRD_B, S_X, 1024)
        a(f"buffer_load_dwordx4 v[104:107], v1, {SRD_B}, 0 offen\ns_mov_b32 s56, {A2_OFF}")
        self.poll3([(f"buffer_load_dwordx4 v[{40+4*k}:{43+4*k}], v1, {SRD_WS}, s56 offen offset:{1024*k} sc1", range(40 + 4*k, 44 + 4*k), None) for k in range(4)], stag=4, sleep=4, mask0=8)
        a(f"""v_lshrrev_b32 v5, 3, v0
v_lshlrev_b32 v5, 6, v5
v_bfe_u32 v6, v0, 2, 1
v_lshl_add_u32 v5, v6, 5, v5
v_and_b32 v6, 3, v0
v_lshl_add_u32 v5, v6, 2, v5
v_lshlrev_b32 v5, 2, v5
v_lshlrev_b32 v9, 5, v0
s_waitcnt vmcnt(0)""")
        for e in range(4): a(f"v_lshlrev_b32 v{108+2*e}, 16, v{104+e}\nv_and_b32 v{109+2*e}, {S_HI}, v{104+e}")
        a(f"ds_write_b128 v9, v[108:111] offset:{XN}\nds_write_b128 v9, v[112:115] offset:{XN+16}")
        for k in range(4):
            r = 40 + 4 * k; lo = 120 + 8 * k; hi = lo + 4
            for e in range(4): a(f"v_lshlrev_b32 v{lo+e}, 16, v{r+e}\nv_and_b32 v{hi+e}, {S_HI}, v{r+e}")
            if k == 2:
                for e in range(8): a(f"v_add_f32 v{lo+e}, 1.0, v{lo+e}")
                for e in range(0, 8, 2): self.rbf2(f"v{lo+e}", f"v{lo+e+1}", f"v{lo+e}", f"v{lo+e+1}", "v10")
            base = [GA, SB, CB1, GBN][k]
            a(f"ds_write_b128 v5, v[{lo}:{lo+3}] offset:{base}\nds_write_b128 v5, v[{hi}:{hi+3}] offset:{base+64}")

    def wo_wave(self):
        a = self.a
        if "wod" in self.exp: self.stamp(3)
        a("s_lshr_b32 s61, s60, 3\ns_and_b32 s62, s60, 7")
        a("s_lshl_b32 s63, s61, 2\ns_add_u32 s63, s63, s3")
        a("v_and_b32 v7, 7, v0")
        self.srd(SRD_A, S_WO, 4096 * 1024)
        a("""v_lshrrev_b32 v4, 3, v0
v_lshlrev_b32 v4, 10, v4
v_and_b32 v5, 7, v0
v_lshl_add_u32 v4, v5, 4, v4
s_lshl_b32 s56, s62, 7
v_add_u32 v4, s56, v4
s_lshl_b32 s54, s63, 17""")
        self.tr_addr("v6", 128, "v8", "v9"); a("v_add_u32 v6, s59, v6")
        a(f"""v_lshlrev_b32 v7, 3, v7
s_lshl_b32 s56, s63, 6
s_add_u32 s56, s56, {ML_OFF}
s_lshl_b32 s57, s63, 12
s_add_u32 s57, s57, {O_OFF}
v_bfe_u32 v3, v0, 2, 2
v_lshlrev_b32 v3, 4, v3
v_lshrrev_b32 v5, 4, v0
v_lshl_add_u32 v3, v5, 2, v3
v_and_b32 v5, 3, v0
v_add_u32 v3, v3, v5
v_lshlrev_b32 v3, 3, v3
v_lshlrev_b32 v150, 2, v0
s_lshl_b32 s55, s3, 8
v_add_u32 v151, s55, v150
s_lshl_b32 s55, s60, 8
s_add_u32 s55, s55, {Y_OFF}""")
        self.lds_spin(ISSUED, "v_cmp_eq_u32", "8", 1, reg="v2", addr="v5")
        if "wod" in self.exp: self.stamp(4)
        self.dma_tile(SRD_A, "v4", 16, 8192, "s59", "s54")
        self.stamp(8)
        P = [8, 10, 12, 14, 16, 18, 20, 22]
        items = [(f"buffer_load_dwordx2 v[24:25], v7, {SRD_WS}, s56 offen sc1", [24, 25], None)] + \
                [(f"buffer_load_dwordx2 v[{P[i]}:{P[i]+1}], v3, {SRD_WS}, s57 offen offset:{512*i} sc1", [P[i], P[i] + 1], None) for i in range(8)]
        for txt, regs, m0 in items: a(txt)
        a("s_waitcnt vmcnt(9)")
        self.stamp(9)
        self.tr_frags(40, "v6", 0, 128, 4, 4)
        a("s_waitcnt vmcnt(0)")
        self.sentcheck([r for it in items for r in it[1]], "v2")
        Lg = self.lab("gate")
        a(f"s_cbranch_vccz {Lg}_all")
        a.label(Lg)
        a(f"""buffer_load_dwordx2 v[24:25], v7, {SRD_WS}, s56 offen sc1
s_waitcnt vmcnt(0)
v_max_u32 v2, v24, v25
v_cmp_eq_u32 vcc, -1, v2
s_and_b32 s52, vcc_lo, 0xff
s_bcnt1_i32_b32 s52, s52
s_cmp_le_u32 s52, {self.thr}
s_cbranch_scc1 {Lg}_ok
s_cmp_eq_u32 {SPIN}, 0
s_cbranch_scc1 {Lg}_ok
s_sub_u32 {SPIN}, {SPIN}, 1
s_sleep 2
s_branch {Lg}""")
        a.label(Lg + "_ok")
        self.poll3(items, rslot=2, mask0=8)
        a.label(Lg + "_all")
        a("s_waitcnt lgkmcnt(0)")
        self.stamp(6)
        m, l = "v24", "v25"
        a(f"v_mov_b32 v144, {m}")
        for ctl in ("row_half_mirror", "quad_perm:[2,3,0,1]", "quad_perm:[1,0,3,2]"): self.dpp("v_max_f32", "v144", "v144", "v144", ctl)
        a(f"v_sub_f32 v145, {m}, v144\nv_mul_f32 v145, {LOG2E}, v145\nv_exp_f32 v145, v145\nv_mov_b32 v152, 0\nv_mul_f32 v146, v145, {l}")
        for ctl in ("row_half_mirror", "quad_perm:[2,3,0,1]", "quad_perm:[1,0,3,2]"): self.dpp("v_add_f32", "v146", "v146", "v146", ctl)
        a("v_mov_b32 v153, 0\nv_rcp_f32 v147, v146")
        for j in range(8):
            a(f"v_fmac_f32_dpp v152, v145, v{P[j]} row_newbcast:{j} row_mask:0xf bank_mask:0xf")
            a(f"v_fmac_f32_dpp v153, v145, v{P[j]+1} row_newbcast:{j} row_mask:0xf bank_mask:0xf")
        self.stamp(10)
        a("""v_mul_f32 v154, v152, v147
v_mul_f32 v155, v153, v147
v_fma_f32 v156, -v154, v146, v152
v_fma_f32 v157, -v155, v146, v153
v_fma_f32 v154, v156, v147, v154
v_fma_f32 v155, v157, v147, v155
v_cvt_pk_bf16_f32 v148, v154, v155""")
        for k in range(4):
            for q in range(4): a(f"v_mov_b32_dpp v{108+4*k+q}, v148 row_newbcast:{4*k+q} row_mask:0xf bank_mask:0xf")
        self.mfma_tiles(124, 108, 40, 4, 4)
        a(f"""v_cndmask_b32 v158, v124, v128, {M_G1}
v_cndmask_b32 v158, v158, v132, {M_G2}
v_cndmask_b32 v158, v158, v136, {M_G3}
ds_write_b32 v151, v158 offset:{YP}
s_waitcnt lgkmcnt(0)
s_barrier""")
        a("s_cmp_lg_u32 s3, 0\ns_cbranch_scc1 L_wo_done")
        for w in range(4): a(f"ds_read_b32 v{160+w}, v150 offset:{YP + 256*w}")
        a(f"""s_waitcnt lgkmcnt(0)
v_add_f32 v160, v160, v161
v_add_f32 v162, v162, v163
v_add_f32 v160, v160, v162
buffer_store_dword v160, v150, {SRD_WS}, s55 offen sc1""")
        for r in range(1, self.ry): a(f"s_add_u32 s55, s55, 16384\nbuffer_store_dword v160, v150, {SRD_WS}, s55 offen sc1")
        self.stamp(11)
        a.label("L_wo_done")
        a("s_add_u32 s3, s3, 8")
        self.finish()

def generate(**kw):
    g = Gen(**kw)
    return g.build()

if __name__ == "__main__":
    import argparse
    p = argparse.ArgumentParser()
    p.add_argument("-o", default="k.s"); p.add_argument("-W", type=int, default=3); p.add_argument("--stamps", action="store_true")
    p.add_argument("--nohintA", action="store_true"); p.add_argument("--nohintB", action="store_true"); p.add_argument("--noprefetch", action="store_true")
    p.add_argument("--dbg", type=int, default=0); p.add_argument("--ry", type=int, default=1); p.add_argument("--d2", type=int, default=2); p.add_argument("--d3", type=int, default=2); p.add_argument("--stag2", type=int, default=8); p.add_argument("--stag3", type=int, default=8); p.add_argument("--slG", type=int, default=2); p.add_argument("--jt", type=int, default=26); p.add_argument("--early", action="store_true"); p.add_argument("--thr", type=int, default=2); p.add_argument("--single", action="store_true"); p.add_argument("--stag", type=int, default=8); p.add_argument("--novf", type=int, default=0); p.add_argument("--jb", type=int, default=31); p.add_argument("--budget", type=int, default=70); p.add_argument("--pfmax", type=int, default=256); p.add_argument("--nob0", action="store_true"); p.add_argument("--notouch", action="store_true"); p.add_argument("--exp", default=""); p.add_argument("--slA", type=int, default=4); p.add_argument("--slB", type=int, default=2); p.add_argument("--kv", default="nt"); p.add_argument("--wflag", default="nt")
    x = p.parse_args()
    open(x.o, "w").write(generate(W=x.W, stamps=x.stamps, hintA=not x.nohintA, hintB=not x.nohintB, prefetch=not x.noprefetch, kvflag=x.kv, wflag=x.wflag, exp=x.exp, slA=x.slA, slB=x.slB, pfmax=x.pfmax, b0=not x.nob0, touch=not x.notouch, dbg=x.dbg, novf=x.novf, jb=x.jb, budget=x.budget, single=x.single, stag=x.stag, thr=x.thr, jt=x.jt, early=x.early, ry=x.ry, d2=x.d2, d3=x.d3, stag2=x.stag2, stag3=x.stag3, slG=x.slG))
```

```python
import sys
from asmlib import Asm

NAME = "adaLN_cond__gqa_block_cached__dense_activation_relu__decode_kernel"

RDY_OFF = 0x1000; A2_OFF = 0x9000; ML_OFF = 0xD000; GATE_OFF = 0xE000; Y_OFF = 0x10000; AP_OFF = 0xD0000
B_OFF = 0x20000; O_OFF = 0x60000; F_OFF = 0xA0000; STAMP_OFF = 0x100000
F_TILE = 48 * 64
G_A2 = 64; G_COL_END = 96; G_FFN = 96; G_FFN_END = 139; G_WO = 192
CODE_PAD = 24576
QBUF = 0
MBUF = 256
LBUF = 288
STAT = 320
TRIG = 396
ISSUED = 400
ROLE = 392
CNT = 388
HINT = 384
ABUF = 512
OBUF = 4096
YP = 8192
FP = 9216
XN = 10240; GA = XN + 2048; SB = GA + 2048; CB1 = SB + 2048; GBN = CB1 + 2048; X1N = GBN + 2048
STG = 24576
OVF = STG + 32768
S_X, S_K, S_V, S_WQ, S_WO, S_W1, S_W2 = 8, 10, 12, 14, 16, 20, 22
S_C, S_WM, S_OUT, S_DBG, S_WS = 24, 26, 28, 30, 32
S_E = 34; T0, T1 = "s36", "s37"; SPIN = "s38"
SRD_WS = "s[40:43]"; SRD_A = "s[44:47]"; SRD_B = "s[48:51]"
M_B1 = "s[64:65]"; M_B0 = "s[66:67]"; M_G1 = "s[68:69]"; M_G2 = "s[70:71]"; M_G3 = "s[72:73]"
S_HI = "s74"
STAMP0 = 76
RING = 40
LOG2E = "0x3fb8aa3b"; SCALE = "0x3db504f3"

class Gen:
    def __init__(self, W=3, stamps=False, hintA=True, hintB=True, kvflag="nt", prefetch=True, wflag="nt", dbg=False, exp="", slA=4, slB=2, pfmax=256, b0=True, touch=True, novf=0, jb=31, budget=70, single=False, stag=8, thr=2, jt=26, early=False, ry=1, d2=2, d3=2, stag2=8, stag3=8, slG=2, diag=0, K=2):
        self.a = Asm(); self.W = W; self.stamps = stamps; self.hintA = hintA; self.hintB = hintB
        self.kv = kvflag; self.prefetch = prefetch; self.wflag = wflag; self.uid = 0; self.dbg = dbg; self.exp = exp.split(','); self.slA = slA; self.slB = slB; self.pfmax = pfmax; self.b0 = b0; self.touch = touch; self.novf = novf; self.jb = jb; self.budget = budget; self.single = single; self.stag = stag; self.thr = thr; self.jt = jt; self.early = early; self.ry = ry; self.d2 = d2; self.d3 = d3; self.stag2 = stag2; self.stag3 = stag3; self.slG = slG; self.diag = diag; self.K = K
    def lab(self, p):
        self.uid += 1; return f"L_{p}_{self.uid}"
    def stamp(self, i):
        if self.stamps: self.a(f"s_memrealtime s[{STAMP0+2*i}:{STAMP0+2*i+1}]")
    def finish(self):
        a = self.a
        if self.stamps:
            a("s_waitcnt lgkmcnt(0)\ns_mov_b64 exec, -1")
            a("v_mov_b32 v2, 0")
            for i in range(24): a(f"v_writelane_b32 v2, s{STAMP0+i}, {i}")
            a(f"s_mul_i32 s52, s2, 12\ns_add_u32 s52, s52, s3\ns_lshl_b32 s52, s52, 7\ns_add_u32 s52, s52, {STAMP_OFF}")
            a("v_lshlrev_b32 v3, 2, v0\ns_mov_b32 exec_hi, 0")
            a(f"buffer_store_dword v2, v3, {SRD_WS}, s52 offen")
        a("s_endpgm")
    def rbf(self, dst, src):
        self.a(f"v_cvt_pk_bf16_f32 {dst}, {src}, {src}\nv_and_b32 {dst}, {S_HI}, {dst}")
    def rbf2(self, d0, d1, s0, s1, tmp):
        self.a(f"v_cvt_pk_bf16_f32 {tmp}, {s0}, {s1}\nv_lshlrev_b32 {d0}, 16, {tmp}\nv_and_b32 {d1}, {S_HI}, {tmp}")
    def dpp(self, op, d, s0, s1, ctl, rm="0xf", bm="0xf"):
        self.a(f"{op}_dpp {d}, {s0}, {s1} {ctl} row_mask:{rm} bank_mask:{bm}")
    def row_reduce(self, op, v, steps=(8, 4, 2, 1)):
        for k in steps: self.dpp(op, v, v, v, f"row_ror:{k}")
    def wave_reduce_to_s(self, op, v, s):
        self.row_reduce(op, v)
        self.dpp(op, v, v, v, "row_bcast:15", rm="0xa")
        self.dpp(op, v, v, v, "row_bcast:31", rm="0xc")
        self.a(f"v_readlane_b32 {s}, {v}, 63")
    def xor32_add(self, v, t):
        self.a(f"v_mov_b32 {t}, {v}\nv_permlane32_swap_b32 {v}, {t}\nv_add_f32 {v}, {v}, {t}")
    def xor16_add(self, v, t):
        self.a(f"v_mov_b32 {t}, {v}\nv_permlane16_swap_b32 {v}, {t}\nv_add_f32 {v}, {v}, {t}")
    def tagcheck(self, regs, acc, first=True):
        a = self.a
        for r in regs:
            if first:
                a(f"v_xor_b32 {acc}, {T0}, v{r+2}"); first = False
            else:
                a(f"v_bitop3_b32 {acc}, {acc}, {T0}, v{r+2} bitop3:0xf6")
            a(f"v_bitop3_b32 {acc}, {acc}, {T1}, v{r+3} bitop3:0xf6")
    def poll(self, issue, regs, acc="v2", sleep=0, pre=False, rslot=None):
        a = self.a
        if rslot is not None and "rounds" in self.exp: a(f"s_mov_b32 s{STAMP0+2*rslot}, {SPIN}")
        L = self.lab("poll"); D = self.lab("pok")
        a.label(L)
        issue()
        a("s_waitcnt vmcnt(0)")
        self.tagcheck(regs, acc)
        a(f"v_cmp_ne_u32 vcc, 0, {acc}")
        if "nopoll" in self.exp and pre: a(f"s_branch {D}")
        a(f"s_cbranch_vccz {D}")
        a(f"s_cmp_eq_u32 {SPIN}, 0")
        a(f"s_cbranch_scc1 {D}")
        a(f"s_sub_u32 {SPIN}, {SPIN}, 1")
        if sleep: a(f"s_sleep {sleep}")
        a(f"s_branch {L}")
        a.label(D)
        if rslot is not None and "rounds" in self.exp: a(f"s_sub_u32 s{STAMP0+2*rslot}, s{STAMP0+2*rslot}, {SPIN}\ns_mov_b32 s{STAMP0+2*rslot+1}, 0")
    def sentcheck(self, regs, acc):
        a = self.a; regs = list(regs)
        if len(regs) == 1: a(f"v_cmp_eq_u32 vcc, -1, v{regs[0]}"); return
        if len(regs) == 2: a(f"v_max_u32 {acc}, v{regs[0]}, v{regs[1]}"); rest = []
        else: a(f"v_max3_u32 {acc}, v{regs[0]}, v{regs[1]}, v{regs[2]}"); rest = regs[3:]
        while rest:
            if len(rest) >= 2: a(f"v_max3_u32 {acc}, {acc}, v{rest[0]}, v{rest[1]}"); rest = rest[2:]
            else: a(f"v_max_u32 {acc}, {acc}, v{rest[0]}"); rest = []
        a(f"v_cmp_eq_u32 vcc, -1, {acc}")
    def poll2(self, issue, regs, nload, consume, acc="v2", rslot=None):
        a = self.a
        if rslot is not None and "rounds" in self.exp: a(f"s_mov_b32 s{STAMP0+2*rslot}, {SPIN}")
        L = self.lab("p2"); OA = L + "_a"; OB = L + "_b"; J = L + "_j"
        if self.single:
            a.label(L); issue(0); a("s_waitcnt vmcnt(0)"); self.sentcheck(regs(0), acc)
            a(f"s_cbranch_vccz {OA}\ns_cmp_eq_u32 {SPIN}, 0\ns_cbranch_scc1 {OA}\ns_sub_u32 {SPIN}, {SPIN}, 1\ns_branch {L}")
            a.label(OA); consume(0)
        else:
            issue(0); a(f"s_sleep {self.stag}"); issue(1)
            a.label(L)
            a(f"s_waitcnt vmcnt({nload})"); self.sentcheck(regs(0), acc); a(f"s_cbranch_vccz {OA}")
            issue(0)
            a(f"s_waitcnt vmcnt({nload})"); self.sentcheck(regs(1), acc); a(f"s_cbranch_vccz {OB}")
            issue(1)
            a(f"s_cmp_eq_u32 {SPIN}, 0\ns_cbranch_scc1 {OA}\ns_sub_u32 {SPIN}, {SPIN}, 1\ns_branch {L}")
            a.label(OB); consume(1); a(f"s_branch {J}")
            a.label(OA); consume(0)
            a.label(J)
        if rslot is not None and "rounds" in self.exp: a(f"s_sub_u32 s{STAMP0+2*rslot}, s{STAMP0+2*rslot}, {SPIN}\ns_mov_b32 s{STAMP0+2*rslot+1}, 0")
    def poll3(self, items, rslot=None, stag=None, sleep=0, mask0=8, depth=2):
        a = self.a; n = len(items)
        M = lambda i: f"s[{mask0+2*i}:{mask0+2*i+1}]"
        if rslot is not None and "rounds" in self.exp: a(f"s_mov_b32 s{STAMP0+2*rslot}, {SPIN}")
        for i, (txt, regs, m0) in enumerate(items):
            a(f"s_mov_b64 {M(i)}, {m0 if m0 is not None else -1}")
        def issue():
            for i, (txt, regs, m0) in enumerate(items): a(f"s_mov_b64 exec, {M(i)}\n{txt}")
            a("s_mov_b64 exec, -1")
        L = self.lab("p3"); D = L + "_d"
        if self.single: depth = 1
        for k in range(depth - 1): issue(); a(f"s_sleep {self.stag if stag is None else stag}")
        a.label(L)
        issue()
        a(f"s_waitcnt vmcnt({n * (depth - 1)})")
        for i, (txt, regs, m0) in enumerate(items):
            regs = list(regs)
            if len(regs) == 1: a(f"v_cmp_eq_u32 {M(i)}, -1, v{regs[0]}")
            else:
                if len(regs) == 2: a(f"v_max_u32 v2, v{regs[0]}, v{regs[1]}")
                else: a(f"v_max3_u32 v2, v{regs[0]}, v{regs[1]}, v{regs[2]}\nv_max_u32 v2, v2, v{regs[3]}")
                a(f"v_cmp_eq_u32 {M(i)}, -1, v2")
        a(f"s_or_b64 vcc, {M(0)}, {M(1)}" if n > 1 else f"s_mov_b64 vcc, {M(0)}")
        for i in range(2, n): a(f"s_or_b64 vcc, vcc, {M(i)}")
        a(f"s_cbranch_vccz {D}\ns_cmp_eq_u32 {SPIN}, 0\ns_cbranch_scc1 {D}\ns_sub_u32 {SPIN}, {SPIN}, 1")
        if sleep: a(f"s_sleep {sleep}")
        a(f"s_branch {L}")
        a.label(D)
        if rslot is not None and "rounds" in self.exp: a(f"s_sub_u32 s{STAMP0+2*rslot}, s{STAMP0+2*rslot}, {SPIN}\ns_mov_b32 s{STAMP0+2*rslot+1}, 0")
    def lds_spin(self, off, cmp_op, val, sleep, reg="v2", addr="v3"):
        a = self.a; L = self.lab("ls")
        a(f"v_mov_b32 {addr}, 0")
        a.label(L)
        a(f"""ds_read_b32 {reg}, {addr} offset:{off}
s_waitcnt lgkmcnt(0)
{cmp_op} vcc, {val}, {reg}
s_cbranch_vccnz {L}_ok
s_cmp_eq_u32 {SPIN}, 0
s_cbranch_scc1 {L}_ok
s_sub_u32 {SPIN}, {SPIN}, 1
s_sleep {sleep}
s_branch {L}""")
        a.label(L + "_ok")
    def srd(self, srd, base, size, add=None):
        n = int(srd[2:srd.index(':')])
        if add is None: self.a(f"s_mov_b32 s{n}, s{base}\ns_mov_b32 s{n+1}, s{base+1}")
        else: self.a(f"s_add_u32 s{n}, s{base}, {add}\ns_addc_u32 s{n+1}, s{base+1}, 0")
        self.a(f"s_mov_b32 s{n+2}, {size}\ns_mov_b32 s{n+3}, 0x20000")
    def consts(self):
        a = self.a
        a(f"s_mov_b32 {S_HI}, 0xffff0000\ns_mov_b32 {SPIN}, 0x40000")
        a("s_mov_b32 s64, 0xcccccccc\ns_mov_b32 s65, 0xcccccccc\ns_mov_b32 s66, 0xaaaaaaaa\ns_mov_b32 s67, 0xaaaaaaaa")
        a("s_mov_b32 s68, 0xffff0000\ns_mov_b32 s69, 0\ns_mov_b32 s70, 0\ns_mov_b32 s71, 0xffff\ns_mov_b32 s72, 0\ns_mov_b32 s73, 0xffff0000")
    def epoch(self):
        self.a(f"s_add_u32 s34, s34, 1\ns_addc_u32 s35, s35, 0\ns_xor_b32 {T0}, s34, 0x5bd1e995\ns_xor_b32 {T1}, s35, 0x9e3779b9")
    def dma_tile(self, srd, voff, n, step, lds_base, soff0="0"):
        a = self.a
        a(f"s_mov_b32 s53, {soff0}\ns_mov_b32 m0, {lds_base}")
        for i in range(n):
            a(f"buffer_load_dwordx4 {voff}, {srd}, s53 offen {self.wflag} lds")
            if i < n - 1: a(f"s_add_u32 s53, s53, {step}\ns_add_u32 m0, m0, 1024")
    def tr_addr(self, dst, rowbytes, t0, t1):
        sh = rowbytes.bit_length() - 1
        self.a(f"""v_lshrrev_b32 {t0}, 4, v0
v_bfe_u32 {t1}, v0, 2, 2
v_lshl_add_u32 {t0}, {t0}, 3, {t1}
v_lshlrev_b32 {t0}, {sh}, {t0}
v_and_b32 {t1}, 3, v0
v_lshl_add_u32 {dst}, {t1}, 3, {t0}""")
    def tr_frags(self, base_reg, vaddr, lds_base, rowbytes, nsteps, ntiles):
        for s in range(nsteps):
            for t in range(ntiles):
                r = base_reg + 4 * (s * ntiles + t)
                for h in range(2):
                    off = lds_base + (32 * s + 4 * h) * rowbytes + t * 32
                    self.a(f"ds_read_b64_tr_b16 v[{r+2*h}:{r+2*h+1}], {vaddr} offset:{off}")
    def mfma_tiles(self, dbase, abase, bbase, nsteps, ntiles, zero_first=True):
        for s in range(nsteps):
            for t in range(ntiles):
                d = f"v[{dbase+4*t}:{dbase+4*t+3}]"
                c = "0" if (s == 0 and zero_first) else d
                b = bbase + 4 * (s * ntiles + t)
                self.a(f"v_mfma_f32_16x16x32_bf16 {d}, v[{abase+4*s}:{abase+4*s+3}], v[{b}:{b+3}], {c}")

    def build(self):
        a = self.a; W = self.W
        a.raw(f"; @launch grid=(256,1,1) block=(768,1,1) lds={max(STG + 65536, OVF + 8192 * self.novf)}")
        a.raw('.amdgcn_target "amdgcn-amd-amdhsa--gfx950"')
        a.raw(".text"); a.raw(f".globl {NAME}"); a.raw(".p2align 8"); a.raw(f".type {NAME},@function"); a.raw(f"{NAME}:")
        a("s_cmp_ge_u32 s2, 256\ns_cbranch_scc1 L_exit")
        self.stamp(0)
        if self.diag: a("s_memrealtime s[100:101]")
        a("""s_load_dwordx16 s[8:23], s[0:1], 0
s_load_dwordx8 s[24:31], s[0:1], 64
s_load_dwordx2 s[32:33], s[0:1], 96
v_lshrrev_b32 v1, 6, v0
v_and_b32 v0, 63, v0
v_readfirstlane_b32 s3, v1""")
        if self.prefetch:
            a(f"s_cmp_lg_u32 s3, 11\ns_cbranch_scc1 L_nopf")
            if self.pfmax < 256: a(f"s_cmp_ge_u32 s2, {self.pfmax}\ns_cbranch_scc1 L_nopf")
            a("s_getpc_b64 s[52:53]")
            a.label("L_pc")
            a(f"s_sub_u32 s52, s52, L_pc-{NAME}\ns_subb_u32 s53, s53, 0\nv_lshlrev_b32 v2, 7, v0")
            for i in range(CODE_PAD // 8192):
                a(f"global_load_dword v{4+i}, v2, s[52:53]")
                if i < CODE_PAD // 8192 - 1: a("v_add_u32 v2, 0x2000, v2")
            a.label("L_nopf")
        a("s_cmp_ge_u32 s3, 8\ns_cbranch_scc1 L_ctl")
        self.stream_wave()
        a.label("L_ctl")
        self.ctl_waves()
        a.label("L_exit")
        a("s_endpgm")
        a.raw(f".fill ({CODE_PAD} - (. - {NAME})) / 4, 4, 0xbf800000")
        a.raw("L_code_end:")
        a.raw('.section .rodata,"a"'); a.raw(".p2align 6"); a.raw(f".amdhsa_kernel {NAME}")
        for l in ["  .amdhsa_next_free_vgpr 168", "  .amdhsa_next_free_sgpr 102", "  .amdhsa_accum_offset 168",
                  "  .amdhsa_group_segment_fixed_size 0", "  .amdhsa_kernarg_size 104", "  .amdhsa_user_sgpr_count 2",
                  "  .amdhsa_user_sgpr_kernarg_segment_ptr 1", "  .amdhsa_system_sgpr_workgroup_id_x 1", ".end_amdhsa_kernel"]:
            a.raw(l)
        return a.text()

    def stream_wave(self):
        a = self.a; W = self.W; kv = self.kv; n = self.novf
        ring = lambda j: RING + 4 * j
        a("""s_lshl_b32 s52, s2, 3
s_add_u32 s52, s52, s3
s_lshl_b32 s52, s52, 15
v_lshlrev_b32 v1, 4, v0
s_lshl_b32 s54, s3, 2
s_add_u32 s54, s54, s2
s_and_b32 s54, s54, 31
s_lshl_b32 s54, s54, 10
s_waitcnt lgkmcnt(0)""")
        self.srd(SRD_A, S_K, 32768, "s52")
        if self.b0: a("s_barrier")
        st = dict(issued=0, known=-1)
        def issue():
            i = st["issued"]
            if i < 32:
                r = ring(i); a(f"buffer_load_dwordx4 v[{r}:{r+3}], v1, {SRD_A}, s54 offen {kv}")
            elif i < 32 + n:
                a(f"buffer_load_dwordx4 v1, {SRD_B}, s54 offen {kv} lds")
            else:
                r = ring(i - 32 - n); a(f"buffer_load_dwordx4 v[{r}:{r+3}], v1, {SRD_B}, s54 offen {kv}")
            a("s_add_u32 s54, s54, 1024\ns_and_b32 s54, s54, 0x7fff")
            if 32 <= i < 31 + n: a("s_add_u32 m0, m0, 1024")
            st["issued"] = i + 1
        def tick():
            i = st["issued"]
            if i >= W:
                a(f"s_waitcnt vmcnt({W-1})"); st["known"] = max(st["known"], i - W)
            issue()
        def need(idx):
            if st["known"] < idx:
                a(f"s_waitcnt vmcnt({st['issued'] - 1 - idx})"); st["known"] = idx
        for j in range(W): issue()
        a(f"s_load_dwordx2 s[34:35], s[{S_WS}:{S_WS+1}], 0")
        self.srd(SRD_B, S_V, 32768, "s52")
        self.srd(SRD_WS, S_WS, 0x200000 if self.stamps else 0x100000)
        self.consts()
        if n:
            a(f"s_mul_i32 s57, s3, {n*1024}\ns_add_u32 s57, s57, {OVF}\ns_mov_b32 m0, s57\nv_add_u32 v3, s57, v1")
        while st["issued"] < 32 + n:
            j = st["issued"]
            tick()
            if j == W: self.stamp(11)
            if j == W + 1:
                a("s_waitcnt lgkmcnt(0)"); self.epoch()
        self.stamp(1)
        if self.stamps: a(f"s_mov_b32 s{STAMP0+12}, 0\ns_mov_b32 s{STAMP0+13}, 0")
        a("v_and_b32 v2, 15, v0\nv_lshlrev_b32 v2, 4, v2")
        a("s_barrier")
        self.stamp(2)
        a(f"ds_read_b128 v[4:7], v2 offset:{QBUF}\ns_waitcnt lgkmcnt(0)")
        t = [10, 11, 12, 13]; ra, rb = 14, 15; u = [16, 17, 18, 19]; x, y = 20, 21; S = [8, 9]
        def group(k):
            need(4 * k + 3)
            js = [4 * k + b for b in range(4)]
            for e in range(4):
                for b in range(4):
                    c = "0" if e == 0 else f"v{t[b]}"
                    a(f"v_dot2_f32_bf16 v{t[b]}, v{ring(js[b])+e}, v{4+e}, {c}")
            self.dpp("v_add_f32", f"v{ra}", f"v{t[0]}", f"v{t[0]}", "row_ror:8", bm="0x3")
            self.dpp("v_add_f32", f"v{rb}", f"v{t[2]}", f"v{t[2]}", "row_ror:8", bm="0x3")
            self.dpp("v_add_f32", f"v{ra}", f"v{t[1]}", f"v{t[1]}", "row_ror:8", bm="0xc")
            self.dpp("v_add_f32", f"v{rb}", f"v{t[3]}", f"v{t[3]}", "row_ror:8", bm="0xc")
            uk = u[k & 3]
            self.dpp("v_add_f32", f"v{uk}", f"v{ra}", f"v{ra}", "row_half_mirror", bm="0x5")
            self.dpp("v_add_f32", f"v{uk}", f"v{rb}", f"v{rb}", "row_half_mirror", bm="0xa")
            if (k & 3) == 3:
                def merge(dst, p, q, ctl, mask):
                    self.dpp("v_add_f32", f"v{x}", f"v{p}", f"v{p}", ctl)
                    self.dpp("v_add_f32", f"v{y}", f"v{q}", f"v{q}", ctl)
                    a(f"v_cndmask_b32 v{dst}, v{x}, v{y}, {mask}")
                merge(u[0], u[0], u[1], "quad_perm:[2,3,0,1]", M_B1)
                merge(u[2], u[2], u[3], "quad_perm:[2,3,0,1]", M_B1)
                merge(S[k >> 2], u[0], u[2], "quad_perm:[1,0,3,2]", M_B0)
        acc = list(range(10, 18)); un = list(range(18, 26)); pb = 26
        def softmax():
            self.stamp(3)
            self.rbf2("v8", "v9", "v8", "v9", "v10")
            a(f"v_mul_f32 v8, {SCALE}, v8\nv_mul_f32 v9, {SCALE}, v9")
            self.rbf2("v8", "v9", "v8", "v9", "v10")
            a("v_max_f32 v10, v8, v9")
            self.wave_reduce_to_s("v_max_f32", "v10", "s55")
            a(f"""v_subrev_f32 v8, s55, v8
v_subrev_f32 v9, s55, v9
v_mul_f32 v8, {LOG2E}, v8
v_mul_f32 v9, {LOG2E}, v9
v_exp_f32 v8, v8
v_exp_f32 v9, v9
v_mov_b32 v11, s55
s_lshl_b32 s56, s3, 2
v_mov_b32 v12, s56
s_mov_b64 exec, 1
ds_write_b32 v12, v11 offset:{MBUF}
s_mov_b64 exec, -1
v_add_f32 v10, v8, v9""")
            self.wave_reduce_to_s("v_add_f32", "v10", "s56")
            for e in acc: a(f"v_mov_b32 v{e}, 0")
        def lane_of(j):
            jj = j & 15; ga_, b = jj >> 2, jj & 3
            return ((b & 1) << 3) | ((b >> 1) << 2) | ((ga_ & 1) << 1) | (ga_ >> 1)
        TQ = [28, 32]
        def lds_read(j):
            need(32 + j)
            r = TQ[j & 1]
            a(f"ds_read_b128 v[{r}:{r+3}], v3 offset:{1024*j}")
        def cu_max():
            L = self.lab("mx")
            a("v_mov_b32 v27, 0")
            a.label(L)
            a(f"""ds_read_b128 v[28:31], v27 offset:{MBUF}
ds_read_b128 v[32:35], v27 offset:{MBUF+16}
s_waitcnt lgkmcnt(0)
v_max3_u32 v36, v28, v29, v30
v_max3_u32 v36, v36, v31, v32
v_max3_u32 v36, v36, v33, v34
v_max_u32 v36, v36, v35
v_cmp_eq_u32 vcc, -1, v36
s_cbranch_vccz {L}_ok
s_cmp_eq_u32 {SPIN}, 0
s_cbranch_scc1 {L}_ok
s_sub_u32 {SPIN}, {SPIN}, 1
s_branch {L}""")
            a.label(L + "_ok")
            a(f"""v_max3_f32 v36, v28, v29, v30
v_max3_f32 v36, v36, v31, v32
v_max3_f32 v36, v36, v33, v34
v_max_f32 v36, v36, v35
v_sub_f32 v37, s55, v36
v_mul_f32 v37, {LOG2E}, v37
v_exp_f32 v37, v37""")
        def consume(j):
            if j < n:
                if j == 0: lds_read(0)
                a("s_waitcnt lgkmcnt(0)")
                if j + 1 < n: lds_read(j + 1)
                r = TQ[j & 1]
            else:
                need(32 + j)
                r = ring(j - n)
            if j == max(20, n):
                cu_max()
                a("v_mov_b32 v38, 1")
            if j == max(20, n, self.jt):
                a(f"ds_write_b32 v27, v38 offset:{TRIG}")
            a(f"v_mov_b32_dpp v{pb}, v{8 + (j >> 4)} row_newbcast:{lane_of(j)} row_mask:0xf bank_mask:0xf")
            for e in range(4):
                a(f"v_lshlrev_b32 v{un[2*e]}, 16, v{r+e}\nv_and_b32 v{un[2*e+1]}, {S_HI}, v{r+e}")
            for e in range(8):
                a(f"v_fmac_f32 v{acc[e]}, v{pb}, v{un[e]}")
        work = [("G", k, 30) for k in range(8)] + [("S", 0, 80)] + [("C", j, 20) for j in range(32)]
        groups_done = 0; consumed = 0
        def can_issue():
            i = st["issued"]
            if i >= 64: return False
            slot = i - 32 - n
            return slot < 0 or groups_done > slot // 4
        BUDGET = self.budget
        while work:
            issued_now = False
            if can_issue():
                tick(); issued_now = True
                if st["issued"] == 64 and self.early:
                    assert consumed > max(20, n)
                    a(f"s_mov_b64 exec, 1\nds_add_u32 v27, v38 offset:{ISSUED}\ns_mov_b64 exec, -1")
            cost = 0
            while work and (cost < BUDGET or not can_issue()):
                kind, k, c = work[0]
                if kind == "C":
                    req = 32 + min(k + 1, n - 1) if k < n else 32 + k
                    if can_issue() and st["known"] < req: break
                work.pop(0); cost += c
                if kind == "G": group(k); groups_done = k + 1
                elif kind == "S": softmax()
                else: consume(k); consumed = k + 1
        assert st["issued"] == 64
        self.stamp(4)
        for e in range(4): a(f"v_permlane32_swap_b32 v{acc[e]}, v{acc[e+4]}")
        for e in range(4): a(f"v_add_f32 v{acc[e]}, v{acc[e]}, v{acc[e+4]}")
        for e in range(2): a(f"v_permlane16_swap_b32 v{acc[e]}, v{acc[e+2]}")
        for e in range(2): a(f"v_add_f32 v{acc[e]}, v{acc[e]}, v{acc[e+2]}")
        a(f"""v_mul_f32 v10, v10, v37
v_mul_f32 v11, v11, v37
v_mul_f32 v12, s56, v37
v_and_b32 v13, 15, v0
v_lshrrev_b32 v14, 4, v0
v_lshl_add_u32 v13, v13, 2, v14
v_lshlrev_b32 v13, 3, v13
s_lshl_b32 s57, s3, 9
v_add_u32 v13, s57, v13
s_lshl_b32 s57, s3, 2
v_mov_b32 v14, s57
ds_write_b64 v13, v[10:11] offset:{OBUF}
ds_write_b32 v14, v12 offset:{LBUF}
v_mov_b32 v15, 1
s_waitcnt lgkmcnt(0)
s_mov_b64 exec, 1
ds_add_rtn_u32 v15, v27, v15 offset:{CNT}
s_mov_b64 exec, -1
v_lshlrev_b32 v13, 3, v0
s_waitcnt lgkmcnt(0)
v_readfirstlane_b32 s57, v15""")
        self.stamp(5)
        a("s_cmp_lg_u32 s57, 7\ns_cbranch_scc1 L_s_pub_done")
        for w in range(8): a(f"ds_read_b64 v[{40+2*w}:{41+2*w}], v13 offset:{OBUF+512*w}")
        a(f"ds_read_b128 v[56:59], v27 offset:{LBUF}\nds_read_b128 v[60:63], v27 offset:{LBUF+16}")
        a(f"s_lshl_b32 s57, s2, 9\ns_add_u32 s57, s57, {O_OFF}\ns_lshl_b32 s58, s2, 3\ns_add_u32 s58, s58, {ML_OFF}\nv_mov_b32 v68, v36")
        a("s_waitcnt lgkmcnt(0)")
        a("""v_add_f32 v64, v40, v42
v_add_f32 v65, v41, v43
v_add_f32 v72, v44, v46
v_add_f32 v73, v45, v47
v_add_f32 v74, v48, v50
v_add_f32 v75, v49, v51
v_add_f32 v76, v52, v54
v_add_f32 v77, v53, v55
v_add_f32 v64, v64, v72
v_add_f32 v65, v65, v73
v_add_f32 v74, v74, v76
v_add_f32 v75, v75, v77
v_add_f32 v64, v64, v74
v_add_f32 v65, v65, v75""")
        a(f"buffer_store_dwordx2 v[64:65], v13, {SRD_WS}, s57 offen sc1")
        a("""v_add_f32 v56, v56, v57
v_add_f32 v58, v58, v59
v_add_f32 v60, v60, v61
v_add_f32 v62, v62, v63
v_add_f32 v56, v56, v58
v_add_f32 v60, v60, v62
v_add_f32 v69, v56, v60
s_mov_b64 exec, 1""")
        a(f"buffer_store_dwordx2 v[68:69], v27, {SRD_WS}, s58 offen sc1")
        a(f"s_lshl_b32 s58, s2, 2\ns_add_u32 s58, s58, {GATE_OFF}\ns_mov_b64 exec, 0xf\nv_lshlrev_b32 v14, 10, v0\nbuffer_store_dword v36, v14, {SRD_WS}, s58 offen sc1\ns_mov_b64 exec, -1")
        if not self.early: a(f"v_mov_b32 v15, 8\nds_write_b32 v27, v15 offset:{ISSUED}")
        self.stamp(6)
        a.label("L_s_pub_done")
        self.role("L_s_exit", "L_s_exit", "L_s_ffn", tick=True)
        a.label("L_s_ffn")
        a("s_barrier")
        self.ffn_wave()
        a.label("L_s_exit")
        self.finish()

    def role(self, l_none, l_wo, l_ffn, tick=False):
        a = self.a
        self.lds_spin(ROLE, "v_cmp_ne_u32", "-1", 2)
        a(f"""s_lshr_b32 s57, s2, 3
s_and_b32 s57, s57, 1
v_readfirstlane_b32 s56, v2
{"s_mov_b32 s%d, s56" % (STAMP0 + 22) if (self.stamps and tick) else ""}
{"s_mov_b32 s%d, 0" % (STAMP0 + 23) if (self.stamps and tick) else ""}
s_lshl_b32 s60, s57, 5
s_add_u32 s60, s60, s56
s_cmp_lt_u32 s56, 32
s_cbranch_scc1 {l_wo}
s_sub_u32 s60, 54, s57
s_cmp_ge_u32 s56, s60
s_cbranch_scc1 {l_none}
s_mul_i32 s60, s57, 22
s_add_u32 s60, s60, s56
s_sub_u32 s60, s60, 32
s_branch {l_ffn}""")

    def ffn_wave(self):
        a = self.a
        a(f"s_lshl_b32 s59, s3, 13\ns_add_u32 s59, s59, {STG}")
        a(f"""v_lshrrev_b32 v4, 4, v0
v_lshlrev_b32 v4, 3, v4
v_and_b32 v5, 7, v0
v_add_u32 v4, v4, v5
v_mov_b32 v30, v4
v_bfe_u32 v5, v0, 3, 1
v_lshl_add_u32 v4, v5, 5, v4
s_lshl_b32 s61, s3, 6
v_add_u32 v5, s61, v4
v_lshlrev_b32 v5, 2, v5
v_lshlrev_b32 v30, 2, v30
v_lshlrev_b32 v8, 2, v4
s_lshl_b32 s61, s3, 8
v_add_u32 v8, s61, v8""")
        self.tr_addr("v6", 64, "v9", "v10"); a("v_add_u32 v6, s59, v6")
        self.tr_addr("v7", 128, "v9", "v10"); a("v_add_u32 v7, s59, v7")
        a(f"""v_and_b32 v31, 31, v0
v_lshlrev_b32 v31, 2, v31
s_lshl_b32 s61, s3, 7
v_add_u32 v31, s61, v31
s_lshl_b32 s61, s3, 3
v_mov_b32 v32, s61
v_and_b32 v33, 7, v0
v_lshlrev_b32 v33, 3, v33
v_mov_b32 v34, 0
v_lshrrev_b32 v35, 4, v0
s_lshl_b32 s61, s3, 2
v_add_u32 v35, s61, v35
v_mul_u32_u24 v35, {F_TILE}, v35
v_and_b32 v36, 15, v0
v_lshl_add_u32 v35, v36, 2, v35
s_lshl_b32 s63, s60, 6
s_add_u32 s63, s63, {F_OFF}
s_and_b32 s52, s60, {self.ry - 1}
s_lshl_b32 s52, s52, 14
s_add_u32 s52, s52, {Y_OFF}
s_add_u32 s53, s52, 4096
s_add_u32 s54, s52, 8192
s_add_u32 s55, s52, 12288
s_barrier""")
        self.stamp(7)
        a(f"ds_read_b32 v40, v5 offset:{XN}\nds_read_b32 v41, v5 offset:{GA}\nds_read_b32 v42, v5 offset:{SB}\nds_read_b32 v43, v5 offset:{CB1}")
        B1f, B2f = 64, 80
        self.tr_frags(B1f, "v6", 0, 64, 2, 2)
        for t in range(4):
            for h in range(2):
                a(f"ds_read_b64_tr_b16 v[{B2f+4*t+2*h}:{B2f+4*t+2*h+1}], v7 offset:{4096 + 4*h*128 + t*32}")
        a("s_waitcnt lgkmcnt(0)")
        r = 96
        self.poll3([(f"buffer_load_dword v{r+i}, v8, {SRD_WS}, s{52 + (i >> 1)} offen offset:{2048*(i&1)} sc1", [r + i], None) for i in range(8)], rslot=1, depth=self.d2, stag=self.stag2)
        a(f"""v_add_f32 v10, v{r}, v{r+1}
v_add_f32 v11, v{r+2}, v{r+3}
v_add_f32 v12, v{r+4}, v{r+5}
v_add_f32 v13, v{r+6}, v{r+7}
v_add_f32 v10, v10, v11
v_add_f32 v12, v12, v13
v_add_f32 v10, v10, v12""")
        self.stamp(8)
        self.rbf("v10", "v10")
        a("v_mul_f32 v10, v41, v10"); self.rbf("v10", "v10")
        a("v_add_f32 v10, v40, v10"); self.rbf("v10", "v10")
        a(f"v_readfirstlane_b32 s61, v10\nds_write_b32 v5, v10 offset:{X1N}\nv_subrev_f32 v12, s61, v10\nv_mul_f32 v13, v12, v12")
        for k in (8, 4, 2, 1):
            self.dpp("v_add_f32", "v12", "v12", "v12", f"row_ror:{k}"); self.dpp("v_add_f32", "v13", "v13", "v13", f"row_ror:{k}")
        self.dpp("v_add_f32", "v12", "v12", "v12", "row_bcast:15", rm="0xa"); self.dpp("v_add_f32", "v13", "v13", "v13", "row_bcast:15", rm="0xa")
        self.dpp("v_add_f32", "v12", "v12", "v12", "row_bcast:31", rm="0xc"); self.dpp("v_add_f32", "v13", "v13", "v13", "row_bcast:31", rm="0xc")
        a(f"""v_mul_f32 v14, 0x3c800000, v12
v_fma_f32 v15, -v14, v12, v13
v_add_f32 v14, s61, v14
s_mov_b32 exec_lo, 0
s_mov_b32 exec_hi, 0x80000000
ds_write_b64 v32, v[14:15] offset:{STAT}
s_mov_b64 exec, -1
s_waitcnt lgkmcnt(0)
s_barrier""")
        a(f"""ds_read_b64 v[18:19], v33 offset:{STAT}
ds_read_b32 v20, v34 offset:{STAT}
s_waitcnt lgkmcnt(0)
v_sub_f32 v18, v18, v20
v_mul_f32 v21, v18, v18
v_fmac_f32 v19, 0x42800000, v21""")
        for ctl in ("row_half_mirror", "quad_perm:[2,3,0,1]", "quad_perm:[1,0,3,2]"):
            self.dpp("v_add_f32", "v18", "v18", "v18", ctl); self.dpp("v_add_f32", "v19", "v19", "v19", ctl)
        a("""v_mul_f32 v21, v18, v18
v_fmac_f32 v20, 0x3e000000, v18
v_fmac_f32 v19, 0xc1000000, v21
v_mul_f32 v19, 0x3b000000, v19
v_max_f32 v19, 0, v19""")
        self.ln_tail1("v20", "v19", "v10", "v22", "v21", "v24", "v25")
        a("v_mul_f32 v22, v22, v43"); self.rbf("v22", "v22")
        a("v_add_f32 v22, v22, v42")
        a("v_mov_b32_dpp v23, v22 quad_perm:[1,1,3,3] row_mask:0xf bank_mask:0xf\nv_cvt_pk_bf16_f32 v24, v22, v23")
        for k in range(2):
            for q in range(4): a(f"v_mov_b32_dpp v{112+4*k+q}, v24 row_newbcast:{8*k+2*q} row_mask:0xf bank_mask:0xf")
        self.mfma_tiles(120, 112, B1f, 2, 2)
        a(f"""v_cndmask_b32 v29, v120, v124, {M_G1}
s_mov_b32 exec_hi, 0
ds_write_b32 v31, v29 offset:{FP}
s_mov_b64 exec, -1
s_waitcnt lgkmcnt(0)
s_barrier""")
        for w in range(8): a(f"ds_read_b32 v{44+w}, v30 offset:{FP+128*w}")
        a("""s_waitcnt lgkmcnt(0)
v_add_f32 v44, v44, v45
v_add_f32 v46, v46, v47
v_add_f32 v48, v48, v49
v_add_f32 v50, v50, v51
v_add_f32 v44, v44, v46
v_add_f32 v48, v48, v50
v_add_f32 v44, v44, v48
v_max_f32 v44, 0, v44
v_mov_b32_dpp v45, v44 quad_perm:[1,1,3,3] row_mask:0xf bank_mask:0xf
v_cvt_pk_bf16_f32 v46, v44, v45""")
        for q in range(4): a(f"v_mov_b32_dpp v{112+q}, v46 row_newbcast:{2*q} row_mask:0xf bank_mask:0xf")
        self.mfma_tiles(120, 112, B2f, 1, 4)
        a(f"""v_cndmask_b32 v40, v120, v124, {M_G1}
v_cndmask_b32 v40, v40, v128, {M_G2}
v_cndmask_b32 v40, v40, v132, {M_G3}
buffer_store_dword v40, v35, {SRD_WS}, s63 offen sc1""")
        self.stamp(9)
        a("s_cmp_lg_u32 s3, 0\ns_cbranch_scc1 L_s_exit\ns_cmp_ge_u32 s60, 32\ns_cbranch_scc1 L_s_exit")
        a(f"""v_lshlrev_b32 v8, 3, v0
s_mul_i32 s61, s60, {F_TILE}
s_add_u32 s61, s61, {F_OFF}
v_and_b32 v9, 7, v0
s_lshl_b32 s62, s60, 6
v_lshl_add_u32 v9, v9, 3, s62
ds_read_b64 v[10:11], v9 offset:{X1N}
ds_read_b64 v[12:13], v9 offset:{GBN}
v_mov_b32 v58, 0
v_mov_b32 v59, 0
v_mov_b32 v74, 0
v_mov_b32 v75, 0
v_and_b32 v14, 7, v0
v_lshlrev_b32 v14, 2, v14
s_lshl_b32 s62, s60, 5
s_mov_b32 s44, s{S_OUT}
s_mov_b32 s45, s{S_OUT+1}
s_mov_b32 s46, 1024
s_mov_b32 s47, 0x20000""")
        r = 48
        self.poll3([(f"buffer_load_dwordx2 v[{r+2*i}:{r+2*i+1}], v8, {SRD_WS}, s61 offen offset:{512*i} sc1", [r + 2*i, r + 2*i + 1], None if i < 5 else "0xffffff") for i in range(6)], rslot=2, depth=self.d3, stag=self.stag3)
        a(f"""v_add_f32 v80, v{r}, v{r+2}
v_add_f32 v81, v{r+1}, v{r+3}
v_add_f32 v82, v{r+4}, v{r+6}
v_add_f32 v83, v{r+5}, v{r+7}
v_add_f32 v84, v{r+8}, v{r+10}
v_add_f32 v85, v{r+9}, v{r+11}
v_add_f32 v80, v80, v82
v_add_f32 v81, v81, v83
v_add_f32 v80, v80, v84
v_add_f32 v81, v81, v85""")
        self.stamp(10)
        self.dpp("v_add_f32", "v80", "v80", "v80", "row_ror:8"); self.dpp("v_add_f32", "v81", "v81", "v81", "row_ror:8")
        a("v_mov_b32 v82, v80\nv_mov_b32 v83, v81\nv_permlane16_swap_b32 v80, v82\nv_permlane16_swap_b32 v81, v83\nv_add_f32 v80, v80, v82\nv_add_f32 v81, v81, v83")
        a("v_mov_b32 v82, v80\nv_mov_b32 v83, v81\nv_permlane32_swap_b32 v80, v82\nv_permlane32_swap_b32 v81, v83\nv_add_f32 v80, v80, v82\nv_add_f32 v81, v81, v83")
        a("s_waitcnt lgkmcnt(0)")
        self.rbf2("v80", "v81", "v80", "v81", "v82")
        a("v_mul_f32 v80, v12, v80\nv_mul_f32 v81, v13, v81")
        self.rbf2("v80", "v81", "v80", "v81", "v82")
        a(f"""v_add_f32 v80, v10, v80
v_add_f32 v81, v11, v81
v_cvt_pk_bf16_f32 v82, v80, v81
s_mov_b64 exec, 0xff
buffer_store_dword v82, v14, {SRD_A}, s62 offen""")
        if self.diag:
            Ld = self.lab("diag")
            a(f"s_cmp_lg_u32 s60, 0\ns_cbranch_scc1 L_s_exit\ns_mov_b64 exec, -1\ns_memrealtime s[4:5]\ns_mov_b32 s56, {RDY_OFF}\ns_mov_b32 s57, {RDY_OFF+2048}")
            a(f"buffer_load_dwordx4 v[100:103], v1, {SRD_WS}, s56 offen sc1\nbuffer_load_dwordx4 v[104:107], v1, {SRD_WS}, s56 offen offset:1024 sc1")
            a(f"buffer_load_dwordx4 v[108:111], v1, {SRD_WS}, s57 offen sc1\nbuffer_load_dwordx4 v[112:115], v1, {SRD_WS}, s57 offen offset:1024 sc1")
            a("s_waitcnt vmcnt(0) lgkmcnt(0)")
            for r in (100, 104, 108, 112): a(f"v_sub_u32 v{r}, s4, v{r}")
            a("v_max_u32 v116, v100, v104\nv_max3_u32 v116, v116, v108, v112\nv_min_u32 v117, v100, v104\nv_min3_u32 v117, v117, v108, v112")
            self.wave_reduce_to_s("v_max_u32", "v116", "s6"); self.wave_reduce_to_s("v_min_u32", "v117", "s7")
            if self.diag == 2: a("s_sub_u32 s6, s6, s7")
            a(f"s_min_u32 s6, s6, 10000\ns_mul_i32 s6, s6, {self.K}\ns_add_u32 s6, s6, s4")
            a.label(Ld)
            a(f"s_memrealtime s[4:5]\ns_waitcnt lgkmcnt(0)\ns_sub_u32 s7, s4, s6\ns_cmp_lt_i32 s7, 0\ns_cbranch_scc1 {Ld}")
        a(f"""s_cmp_lg_u32 s60, 0
s_cbranch_scc1 L_s_exit
s_mov_b64 exec, 1
v_mov_b32 v52, s34
v_mov_b32 v53, s35
v_mov_b32 v54, 0
buffer_store_dwordx2 v[52:53], v54, {SRD_WS}, 0 offen sc1""")

    def ln_tail1(self, mean, var, x, out, t0, sd, rs):
        a = self.a
        self.rbf2(mean, var, mean, var, t0)
        a(f"v_add_f32 {var}, 0x3727c5ac, {var}\nv_sub_f32 {out}, {x}, {mean}")
        self.rbf(var, var)
        a(f"v_sqrt_f32 {sd}, {var}")
        self.rbf(out, out)
        self.rbf(sd, sd)
        a(f"v_rcp_f32 {rs}, {sd}")
        a(f"v_mul_f32 {t0}, {out}, {rs}\nv_fma_f32 {out}, -{t0}, {sd}, {out}\nv_fma_f32 {out}, {out}, {rs}, {t0}")
        self.rbf(out, out)

    def layernorm_tail(self, mean, var, xs, outs, t0, sd, rs):
        a = self.a
        self.rbf2(mean, var, mean, var, t0)
        a(f"v_add_f32 {var}, 0x3727c5ac, {var}")
        self.rbf(var, var)
        a(f"v_sqrt_f32 {sd}, {var}")
        self.rbf(sd, sd)
        a(f"v_rcp_f32 {rs}, {sd}")
        for x, o in zip(xs, outs): a(f"v_sub_f32 {o}, {x}, {mean}")
        self.rbf2(outs[0], outs[1], outs[0], outs[1], t0)
        for o in outs:
            a(f"v_mul_f32 {t0}, {o}, {rs}\nv_fma_f32 {o}, -{t0}, {sd}, {o}\nv_fma_f32 {o}, {o}, {rs}, {t0}")
        self.rbf2(outs[0], outs[1], outs[0], outs[1], t0)

    def tile128x64_load(self, srd, voff, rowstride, lds_base, soff0):
        self.dma_tile(srd, voff, 16, 8 * rowstride, lds_base, soff0)

    def ctl_waves(self):
        a = self.a
        b0 = (lambda: a("s_barrier")) if self.b0 else (lambda: None)
        a("v_lshlrev_b32 v1, 4, v0\ns_sub_u32 s3, s3, 8")
        a(f"s_lshl_b32 s59, s3, 14\ns_add_u32 s59, s59, {STG}")
        a(f"s_lshl_b32 s58, s3, 8\ns_add_u32 s58, s58, {ABUF + 8*256}")
        a("s_cmp_eq_u32 s3, 1\ns_cbranch_scc1 L_c1")
        self.ctl_common()
        b0()
        a("s_cmp_eq_u32 s3, 0\ns_cbranch_scc1 L_c0")
        a("s_cmp_eq_u32 s3, 2\ns_cbranch_scc0 L_c3")
        a(f"v_mov_b32 v2, -1\nv_lshlrev_b32 v3, 2, v0\ns_mov_b64 exec, 0xff\nds_write_b32 v3, v2 offset:{MBUF}\ns_mov_b64 exec, 1\nv_mov_b32 v2, 0\nds_write_b32 v2, v2 offset:{CNT}\nds_write_b32 v2, v2 offset:{TRIG}\nds_write_b32 v2, v2 offset:{ISSUED}\nv_mov_b32 v3, -1\nds_write_b32 v2, v3 offset:{ROLE}\ns_mov_b64 exec, -1")
        self.clear_slots()
        a(f"s_cmp_lt_u32 s2, {G_A2}\ns_cbranch_scc1 L_c_b1\ns_cmp_ge_u32 s2, {G_COL_END}\ns_cbranch_scc1 L_c_b1")
        self.collect()
        a("s_branch L_c_b1")
        a.label("L_c3")
        if self.touch:
            a(f"""v_and_b32 v2, 7, v0
s_lshl_b32 s52, s2, 3
v_add_u32 v2, s52, v2
v_lshlrev_b32 v2, 15, v2
global_load_dword v8, v2, s[{S_V}:{S_V+1}]""")
        a("s_branch L_c_b1")
        a.label("L_c1")
        self.c1()
        a.label("L_c0")
        self.c0()
        a.label("L_c_b1")
        a("s_waitcnt vmcnt(0) lgkmcnt(0)")
        self.epoch_once()
        self.stamp(7)
        a("s_barrier")
        a("s_cmp_eq_u32 s3, 3\ns_cbranch_scc0 L_c_b2")
        a(f"s_mov_b32 s56, {RDY_OFF}\ns_mov_b32 s57, {RDY_OFF + 2048}")
        def issue_r2():
            a(f"buffer_load_dwordx4 v[8:11], v1, {SRD_WS}, s56 offen sc1\nbuffer_load_dwordx4 v[12:15], v1, {SRD_WS}, s56 offen offset:1024 sc1")
            a(f"buffer_load_dwordx4 v[16:19], v1, {SRD_WS}, s57 offen sc1\nbuffer_load_dwordx4 v[20:23], v1, {SRD_WS}, s57 offen offset:1024 sc1")
        self.poll(issue_r2, [8, 12, 16, 20], sleep=16)
        self.lds_spin(TRIG, "v_cmp_ne_u32", "0", 8)
        a(f"""s_mov_b32 s44, s{S_DBG}
s_mov_b32 s45, s{S_DBG+1}
s_mov_b32 s46, 256
s_mov_b32 s47, 0x20000
s_lshr_b32 s57, s2, 3
s_and_b32 s57, s57, 1
s_lshl_b32 s57, s57, 7
v_mov_b32 v15, 1
v_mov_b32 v16, 0
s_mov_b64 exec, 1
buffer_atomic_add v15, v16, {SRD_A}, s57 offen sc0
s_waitcnt vmcnt(0)
ds_write_b32 v16, v15 offset:{ROLE}
s_mov_b64 exec, -1""")
        a.label("L_c_b2")
        a("s_waitcnt vmcnt(0) lgkmcnt(0)")
        self.role("L_c_fin", "L_c_wo", "L_c_ffn")
        a.label("L_c_fin")
        a("s_add_u32 s3, s3, 8")
        self.finish()
        a.label("L_c_ffn")
        self.ffn_weights()
        a.label("L_c_wo")
        self.wo_wave()

    def clear_slots(self):
        a = self.a
        a(f"""v_mov_b32 v8, -1
v_mov_b32 v9, -1
v_mov_b32 v10, -1
v_mov_b32 v11, -1
s_lshl_b32 s56, s2, 9
s_add_u32 s56, s56, {O_OFF}
s_lshl_b32 s57, s2, 3
s_add_u32 s57, s57, {ML_OFF}
v_mov_b32 v12, 0
s_mov_b32 exec_hi, 0
buffer_store_dwordx4 v[8:11], v1, {SRD_WS}, s56 offen sc1
s_mov_b64 exec, 1
buffer_store_dwordx2 v[8:9], v12, {SRD_WS}, s57 offen sc1
s_mov_b64 exec, -1""")
        a(f"s_lshl_b32 s56, s2, 2\ns_add_u32 s56, s56, {GATE_OFF}\nv_lshlrev_b32 v13, 10, v0\ns_mov_b64 exec, 0xf\nbuffer_store_dword v8, v13, {SRD_WS}, s56 offen sc1\ns_mov_b64 exec, -1")
        L1 = self.lab("clr"); L2 = self.lab("clr"); L3 = self.lab("clr")
        a(f"s_cmp_ge_u32 s2, 64\ns_cbranch_scc1 {L1}")
        a(f"s_lshl_b32 s56, s2, 8\ns_add_u32 s56, s56, {Y_OFF}\ns_mov_b64 exec, 0xffff")
        for r in range(self.ry):
            a(f"buffer_store_dwordx4 v[8:11], v1, {SRD_WS}, s56 offen sc1")
            if r < self.ry - 1: a("s_add_u32 s56, s56, 16384")
        a("s_mov_b64 exec, -1")
        a.label(L1)
        a(f"s_cmp_lt_u32 s2, {G_A2}\ns_cbranch_scc1 {L3}\ns_cmp_ge_u32 s2, {G_COL_END}\ns_cbranch_scc1 {L3}")
        a(f"s_sub_u32 s56, s2, {G_A2}\ns_lshl_b32 s56, s56, 7\ns_add_u32 s56, s56, {A2_OFF}\ns_mov_b64 exec, 0xff\nbuffer_store_dwordx4 v[8:11], v1, {SRD_WS}, s56 offen sc1\ns_mov_b64 exec, -1")
        a.label(L3)
        a(f"s_cmp_ge_u32 s2, 43\ns_cbranch_scc1 {L2}")
        a(f"""v_lshrrev_b32 v13, 2, v0
v_mul_u32_u24 v13, {F_TILE}, v13
v_and_b32 v14, 3, v0
v_lshl_add_u32 v13, v14, 4, v13
s_lshl_b32 s56, s2, 6
s_add_u32 s56, s56, {F_OFF}
s_add_u32 s57, s56, {16*F_TILE}
buffer_store_dwordx4 v[8:11], v13, {SRD_WS}, s56 offen sc1
buffer_store_dwordx4 v[8:11], v13, {SRD_WS}, s57 offen sc1""")
        a.label(L2)
        a("s_waitcnt vmcnt(0) lgkmcnt(0)")
        self.epoch_once()
        a(f"""v_mov_b32 v16, {"s100" if self.diag else "0"}
v_mov_b32 v17, 0
v_mov_b32 v18, {T0}
v_mov_b32 v19, {T1}
s_lshl_b32 s56, s2, 4
s_add_u32 s56, s56, {RDY_OFF}
s_mov_b64 exec, 1
buffer_store_dwordx4 v[16:19], v12, {SRD_WS}, s56 offen sc1
s_mov_b64 exec, -1""")

    def ffn_weights(self):
        a = self.a
        Lv = self.lab("vec")
        a("s_barrier")
        a(f"s_cmp_eq_u32 s3, 0\ns_cbranch_scc0 {Lv}")
        self.ffn_vectors()
        a.label(Lv)
        self.srd(SRD_A, S_W1, 512 * 2752)
        self.srd(SRD_B, S_W2, 1376 * 1024)
        a(f"""v_lshrrev_b32 v2, 2, v0
v_mul_u32_u24 v2, 2752, v2
v_and_b32 v3, 3, v0
v_lshl_add_u32 v2, v3, 4, v2
s_lshl_b32 s61, s60, 6
v_add_u32 v2, s61, v2
v_lshrrev_b32 v3, 3, v0
s_lshl_b32 s61, s60, 5
v_add_u32 v3, s61, v3
v_lshlrev_b32 v3, 10, v3
v_and_b32 v4, 7, v0
v_lshl_add_u32 v3, v4, 4, v3
s_lshl_b32 s61, s3, 14
s_add_u32 s61, s61, {STG}
s_mul_i32 s62, s3, {128*2752}
s_lshl_b32 s63, s3, 8""")
        a("s_mov_b32 m0, s61")
        for k in range(2):
            for i in range(4):
                a(f"buffer_load_dwordx4 v2, {SRD_A}, s62 offen {self.wflag} lds\ns_add_u32 s62, s62, {16*2752}\ns_add_u32 m0, m0, 1024")
            a("s_mov_b32 s56, s63")
            for i in range(4):
                a(f"buffer_load_dwordx4 v3, {SRD_B}, s56 offen {self.wflag} lds\ns_add_u32 s56, s56, 8192")
                if not (k == 1 and i == 3): a("s_add_u32 m0, m0, 1024")
            a("s_add_u32 s63, s63, 128")
        Lg = self.lab("gate")
        a(f"s_cmp_eq_u32 s3, 3\ns_cbranch_scc0 {Lg}")
        a(f"s_waitcnt vmcnt(0)\ns_and_b32 s56, s60, 3\ns_lshl_b32 s56, s56, 10\ns_add_u32 s56, s56, {GATE_OFF}")
        self.poll3([(f"buffer_load_dwordx4 v[8:11], v1, {SRD_WS}, s56 offen sc1", range(8, 12), None)], stag=4, sleep=self.slG)
        self.stamp(9)
        a.label(Lg)
        a("s_waitcnt vmcnt(0) lgkmcnt(0)\ns_barrier")
        a("s_branch L_c_fin")

    def ctl_common(self):
        a = self.a
        a("s_waitcnt lgkmcnt(0)")
        a(f"s_load_dwordx2 s[34:35], s[{S_WS}:{S_WS+1}], 0")
        self.srd(SRD_WS, S_WS, 0x200000 if self.stamps else 0x100000)
        self.consts()
        a("s_mov_b32 s75, 0")

    def collect(self):
        a = self.a
        a(f"s_sub_u32 s60, s2, {G_A2}\ns_lshl_b32 s56, s60, 11\ns_add_u32 s56, s56, {AP_OFF + G_A2 * 512}")
        a(f"s_lshl_b32 s57, s60, 7\ns_add_u32 s57, s57, {A2_OFF}")
        def issue():
            a(f"buffer_load_dwordx4 v[8:11], v1, {SRD_WS}, s56 offen sc1\nbuffer_load_dwordx4 v[12:15], v1, {SRD_WS}, s56 offen offset:1024 sc1")
        self.poll(issue, [8, 12], sleep=16)
        a("v_add_f32 v16, v8, v12\nv_add_f32 v17, v9, v13")
        self.xor32_add("v16", "v20"); self.xor32_add("v17", "v21")
        a(f"""v_cvt_pk_bf16_f32 v18, v16, v17
v_lshlrev_b32 v19, 2, v0
s_mov_b32 exec_hi, 0
buffer_store_dword v18, v19, {SRD_WS}, s57 offen sc1
s_mov_b64 exec, -1""")
        self.stamp(2)

    def epoch_once(self):
        a = self.a
        L = self.lab("ep")
        a(f"s_cmp_eq_u32 s75, 1\ns_cbranch_scc1 {L}")
        self.epoch()
        a("s_mov_b32 s75, 1")
        a.label(L)

    def c1(self):
        a = self.a
        a(f"s_mov_b32 s39, 0\ns_cmp_lt_u32 s2, {G_A2}\ns_cbranch_scc1 L_unit")
        self.ctl_common()
        if self.b0: a("s_barrier")
        a(f"s_cmp_ge_u32 s2, {G_WO}\ns_cbranch_scc1 L_c_b1")
        Lh = self.lab("hint")
        a("s_waitcnt lgkmcnt(0)")
        self.epoch_once()
        a("v_mov_b32 v9, 0")
        a.label(Lh)
        a(f"""ds_read_b32 v8, v9 offset:{HINT}
s_waitcnt lgkmcnt(0)
v_cmp_eq_u32 vcc, {T0}, v8
s_cbranch_vccnz {Lh}_ok
s_cmp_eq_u32 {SPIN}, 0
s_cbranch_scc1 {Lh}_ok
s_sub_u32 {SPIN}, {SPIN}, 1
s_sleep 8
s_branch {Lh}""")
        a.label(Lh + "_ok")
        a("s_mov_b32 s39, 1")
        a.label("L_unit")
        a("""s_lshr_b32 s61, s2, 2
s_lshl_b32 s61, s61, 7
s_and_b32 s60, s2, 3
s_lshl_b32 s60, s60, 7
v_lshrrev_b32 v4, 3, v0
v_mul_u32_u24 v4, 6144, v4
v_and_b32 v5, 7, v0
v_lshl_add_u32 v4, v5, 4, v4
v_add_u32 v4, s61, v4
v_lshlrev_b32 v5, 2, v0
s_lshl_b32 s56, s60, 1
s_mul_i32 s57, s60, 6144
s_waitcnt lgkmcnt(0)""")
        self.srd(SRD_A, S_WM, 512 * 6144)
        self.srd(SRD_B, S_C, 1024)
        a(f"buffer_load_dword v10, v5, {SRD_B}, s56 offen")
        self.dma_tile(SRD_A, "v4", 16, 8 * 6144, "s59", "s57")
        a("s_cmp_eq_u32 s39, 1\ns_cbranch_scc1 L_unit_go")
        if self.b0: a("s_barrier")
        self.ctl_common()
        a.label("L_unit_go")
        self.tr_addr("v6", 128, "v8", "v9"); a("v_add_u32 v6, s59, v6")
        a("v_lshrrev_b32 v7, 4, v0\nv_lshl_add_u32 v7, v7, 4, s58\nv_lshl_add_u32 v12, v0, 2, s58")
        a("s_waitcnt vmcnt(16)")
        a(f"v_lshlrev_b32 v8, 16, v10\nv_and_b32 v9, {S_HI}, v10")
        a(f"""v_mul_f32 v10, 0xbfb8aa3b, v8
v_mul_f32 v11, 0xbfb8aa3b, v9
v_exp_f32 v10, v10
v_exp_f32 v11, v11
v_add_f32 v10, 1.0, v10
v_add_f32 v11, 1.0, v11
v_min_f32 v10, 0x7f7fffff, v10
v_min_f32 v11, 0x7f7fffff, v11
v_rcp_f32 v13, v10
v_rcp_f32 v14, v11""")
        a("""v_mul_f32 v15, v8, v13
v_mul_f32 v16, v9, v14
v_fma_f32 v17, -v15, v10, v8
v_fma_f32 v18, -v16, v11, v9
v_fma_f32 v17, v17, v13, v15
v_fma_f32 v18, v18, v14, v16
v_cvt_pk_bf16_f32 v10, v17, v18
ds_write_b32 v12, v10
s_waitcnt lgkmcnt(0)""")
        for k in range(4): a(f"ds_read_b128 v[{108+4*k}:{111+4*k}], v7 offset:{64*k}")
        a("s_waitcnt vmcnt(0)")
        self.tr_frags(40, "v6", 0, 128, 4, 4)
        a("s_waitcnt lgkmcnt(0)")
        self.mfma_tiles(124, 108, 40, 4, 4)
        self.epoch_once()
        a(f"""s_lshl_b32 s63, s2, 9
s_add_u32 s63, s63, {AP_OFF}
v_cndmask_b32 v140, v124, v132, {M_G1}
v_cndmask_b32 v141, v128, v136, {M_G1}
v_mov_b32 v142, {T0}
v_mov_b32 v143, {T1}
s_mov_b32 exec_hi, 0
buffer_store_dwordx4 v[140:143], v1, {SRD_WS}, s63 offen sc1
s_mov_b64 exec, -1""")
        self.stamp(1)
        a("s_branch L_c_b1")

    def c0(self):
        a = self.a
        if "noc0" in self.exp: a("s_branch L_c_b1")
        a("s_lshr_b32 s60, s2, 3\ns_and_b32 s61, s2, 7")
        self.srd(SRD_A, S_WQ, 512 * 8192)
        self.srd(SRD_B, S_X, 1024)
        a("""v_lshrrev_b32 v4, 4, v0
s_lshl_b32 s56, s61, 6
v_add_u32 v4, s56, v4
v_lshlrev_b32 v4, 13, v4
v_and_b32 v5, 15, v0
v_lshl_add_u32 v4, v5, 4, v4
s_lshl_b32 s56, s60, 8
v_add_u32 v4, s56, v4""")
        a(f"buffer_load_dwordx4 v[24:27], v1, {SRD_B}, 0 offen")
        a("""v_bfe_u32 v6, v0, 4, 1
v_lshlrev_b32 v6, 5, v6
v_add_u32 v6, v6, v5
s_lshl_b32 s56, s61, 7
v_lshl_add_u32 v7, v6, 1, s56""")
        a(f"buffer_load_ushort v28, v7, {SRD_B}, 0 offen\nbuffer_load_ushort v29, v7, {SRD_B}, 0 offen offset:32")
        self.dma_tile(SRD_A, "v4", 16, 4 * 8192, "s59")
        a("s_waitcnt vmcnt(16)")
        self.stamp(1)
        for e in range(4): a(f"v_lshlrev_b32 v{8+2*e}, 16, v{24+e}\nv_and_b32 v{9+2*e}, {S_HI}, v{24+e}")
        a("""v_add_f32 v16, v8, v9
v_add_f32 v17, v10, v11
v_add_f32 v18, v12, v13
v_add_f32 v19, v14, v15
v_add_f32 v16, v16, v17
v_add_f32 v18, v18, v19
v_add_f32 v16, v16, v18""")
        self.wave_reduce_to_s("v_add_f32", "v16", "s56")
        a("v_mov_b32 v20, s56\nv_mul_f32 v20, 0x3b000000, v20")
        for e in range(8): a(f"v_sub_f32 v{8+e}, v{8+e}, v20")
        a("v_mul_f32 v16, v8, v8")
        for e in range(1, 8): a(f"v_fmac_f32 v16, v{8+e}, v{8+e}")
        self.wave_reduce_to_s("v_add_f32", "v16", "s56")
        a("v_mov_b32 v19, s56\nv_mul_f32 v19, 0x3b000000, v19")
        a("v_lshlrev_b32 v28, 16, v28\nv_lshlrev_b32 v29, 16, v29")
        self.layernorm_tail("v20", "v19", ["v28", "v29"], ["v30", "v31"], "v21", "v22", "v23")
        a("s_waitcnt lgkmcnt(0)")
        self.epoch(); a("s_mov_b32 s75, 1")
        self.tr_addr("v144", 256, "v8", "v9"); a("v_add_u32 v144, s59, v144")
        a("s_waitcnt vmcnt(0)")
        self.tr_frags(40, "v144", 0, 256, 2, 8)
        a(f"""v_lshrrev_b32 v8, 5, v0
v_lshlrev_b32 v8, 14, v8
v_and_b32 v9, 31, v0
v_lshl_add_u32 v8, v9, 4, v8
s_lshl_b32 s56, s61, 11
s_add_u32 s56, s56, {AP_OFF}
v_add_u32 v8, s56, v8
s_waitcnt lgkmcnt(0)""")
        self.stamp(2)
        G = [104, 108, 112, 116]
        if self.hintA:
            self.poll(lambda: a(f"buffer_load_dwordx4 v[116:119], v8, {SRD_WS}, 0 offen offset:1536 sc1"), [116], sleep=self.slA, pre=True)
        def issueA():
            for i in range(4): a(f"buffer_load_dwordx4 v[{G[i]}:{G[i]+3}], v8, {SRD_WS}, 0 offen offset:{512*i} sc1")
        self.poll(issueA, G, sleep=self.slA, pre=True, rslot=8)
        self.stamp(3)
        a(f"v_mov_b32 v8, {T0}\nv_mov_b32 v9, 0\nds_write_b32 v9, v8 offset:{HINT}")
        a("""v_add_f32 v8, v104, v108
v_add_f32 v9, v105, v109
v_add_f32 v10, v112, v116
v_add_f32 v11, v113, v117
v_add_f32 v8, v8, v10
v_add_f32 v9, v9, v11""")
        self.rbf2("v8", "v9", "v8", "v9", "v10")
        a("v_mov_b32 v10, v8\nv_mov_b32 v11, v9\nv_permlane32_swap_b32 v8, v10\nv_permlane32_swap_b32 v9, v11")
        a("v_add_f32 v10, 1.0, v10\nv_add_f32 v11, 1.0, v11")
        self.rbf2("v10", "v11", "v10", "v11", "v12")
        a("v_mul_f32 v10, v30, v10\nv_mul_f32 v11, v31, v11")
        self.rbf2("v10", "v11", "v10", "v11", "v12")
        a("v_add_f32 v10, v10, v8\nv_add_f32 v11, v11, v9\nv_cvt_pk_bf16_f32 v12, v10, v11")
        a("""v_lshl_add_u32 v13, v6, 1, s58
ds_write_b16 v13, v12
ds_write_b16_d16_hi v13, v12 offset:32
v_lshrrev_b32 v14, 4, v0
v_lshl_add_u32 v14, v14, 4, s58
s_waitcnt lgkmcnt(0)
ds_read_b128 v[136:139], v14
ds_read_b128 v[140:143], v14 offset:64
s_waitcnt lgkmcnt(0)""")
        self.mfma_tiles(104, 136, 40, 2, 8)
        a(f"""v_cndmask_b32 v8, v104, v112, {M_G1}
v_cndmask_b32 v9, v108, v116, {M_G1}
v_cndmask_b32 v8, v8, v120, {M_G2}
v_cndmask_b32 v9, v9, v124, {M_G2}
v_cndmask_b32 v8, v8, v128, {M_G3}
v_cndmask_b32 v9, v9, v132, {M_G3}
v_mov_b32 v10, {T0}
v_mov_b32 v11, {T1}
s_lshl_b32 s56, s2, 10
s_add_u32 s56, s56, {B_OFF}
buffer_store_dwordx4 v[8:11], v1, {SRD_WS}, s56 offen sc1""")
        self.stamp(4)
        a(f"s_lshl_b32 s56, s60, 13\ns_add_u32 s56, s56, {B_OFF}\ns_add_u32 s57, s56, 4096")
        G = [104 + 4 * i for i in range(8)]
        if self.hintB:
            a("v_and_b32 v15, 7, v0\nv_lshlrev_b32 v15, 10, v15\nv_add_u32 v15, 1008, v15")
            self.poll(lambda: a(f"buffer_load_dwordx4 v[104:107], v15, {SRD_WS}, s56 offen sc1"), [104], sleep=self.slB, pre=True)
        def issueB():
            for i in range(8):
                a(f"buffer_load_dwordx4 v[{G[i]}:{G[i]+3}], v1, {SRD_WS}, {'s56' if i < 4 else 's57'} offen offset:{1024*(i&3)} sc1")
        self.poll(issueB, G, sleep=self.slB, pre=True, rslot=9)
        self.stamp(5)
        a("""v_add_f32 v8, v104, v108
v_add_f32 v9, v105, v109
v_add_f32 v10, v112, v116
v_add_f32 v11, v113, v117
v_add_f32 v12, v120, v124
v_add_f32 v13, v121, v125
v_add_f32 v14, v128, v132
v_add_f32 v15, v129, v133
v_add_f32 v8, v8, v10
v_add_f32 v9, v9, v11
v_add_f32 v12, v12, v14
v_add_f32 v13, v13, v15
v_add_f32 v8, v8, v12
v_add_f32 v9, v9, v13
v_cvt_pk_bf16_f32 v8, v8, v9""")
        a(f"""v_lshrrev_b32 v9, 4, v0
v_lshlrev_b32 v9, 5, v9
v_add_u32 v9, v9, v5
v_lshlrev_b32 v9, 1, v9
ds_write_b16 v9, v8 offset:{QBUF}
ds_write_b16_d16_hi v9, v8 offset:{QBUF+32}""")
        self.stamp(6)

    def ffn_vectors(self):
        a = self.a
        self.srd(SRD_B, S_X, 1024)
        a(f"buffer_load_dwordx4 v[104:107], v1, {SRD_B}, 0 offen\ns_mov_b32 s56, {A2_OFF}")
        self.poll3([(f"buffer_load_dwordx4 v[{40+4*k}:{43+4*k}], v1, {SRD_WS}, s56 offen offset:{1024*k} sc1", range(40 + 4*k, 44 + 4*k), None) for k in range(4)], stag=4, sleep=4, mask0=8)
        a(f"""v_lshrrev_b32 v5, 3, v0
v_lshlrev_b32 v5, 6, v5
v_bfe_u32 v6, v0, 2, 1
v_lshl_add_u32 v5, v6, 5, v5
v_and_b32 v6, 3, v0
v_lshl_add_u32 v5, v6, 2, v5
v_lshlrev_b32 v5, 2, v5
v_lshlrev_b32 v9, 5, v0
s_waitcnt vmcnt(0)""")
        for e in range(4): a(f"v_lshlrev_b32 v{108+2*e}, 16, v{104+e}\nv_and_b32 v{109+2*e}, {S_HI}, v{104+e}")
        a(f"ds_write_b128 v9, v[108:111] offset:{XN}\nds_write_b128 v9, v[112:115] offset:{XN+16}")
        for k in range(4):
            r = 40 + 4 * k; lo = 120 + 8 * k; hi = lo + 4
            for e in range(4): a(f"v_lshlrev_b32 v{lo+e}, 16, v{r+e}\nv_and_b32 v{hi+e}, {S_HI}, v{r+e}")
            if k == 2:
                for e in range(8): a(f"v_add_f32 v{lo+e}, 1.0, v{lo+e}")
                for e in range(0, 8, 2): self.rbf2(f"v{lo+e}", f"v{lo+e+1}", f"v{lo+e}", f"v{lo+e+1}", "v10")
            base = [GA, SB, CB1, GBN][k]
            a(f"ds_write_b128 v5, v[{lo}:{lo+3}] offset:{base}\nds_write_b128 v5, v[{hi}:{hi+3}] offset:{base+64}")

    def wo_wave(self):
        a = self.a
        if "wod" in self.exp: self.stamp(3)
        a("s_lshr_b32 s61, s60, 3\ns_and_b32 s62, s60, 7")
        a("s_lshl_b32 s63, s61, 2\ns_add_u32 s63, s63, s3")
        a("v_and_b32 v7, 7, v0")
        self.srd(SRD_A, S_WO, 4096 * 1024)
        a("""v_lshrrev_b32 v4, 3, v0
v_lshlrev_b32 v4, 10, v4
v_and_b32 v5, 7, v0
v_lshl_add_u32 v4, v5, 4, v4
s_lshl_b32 s56, s62, 7
v_add_u32 v4, s56, v4
s_lshl_b32 s54, s63, 17""")
        self.tr_addr("v6", 128, "v8", "v9"); a("v_add_u32 v6, s59, v6")
        a(f"""v_lshlrev_b32 v7, 3, v7
s_lshl_b32 s56, s63, 6
s_add_u32 s56, s56, {ML_OFF}
s_lshl_b32 s57, s63, 12
s_add_u32 s57, s57, {O_OFF}
v_bfe_u32 v3, v0, 2, 2
v_lshlrev_b32 v3, 4, v3
v_lshrrev_b32 v5, 4, v0
v_lshl_add_u32 v3, v5, 2, v3
v_and_b32 v5, 3, v0
v_add_u32 v3, v3, v5
v_lshlrev_b32 v3, 3, v3
v_lshlrev_b32 v150, 2, v0
s_lshl_b32 s55, s3, 8
v_add_u32 v151, s55, v150
s_lshl_b32 s55, s60, 8
s_add_u32 s55, s55, {Y_OFF}""")
        self.lds_spin(ISSUED, "v_cmp_eq_u32", "8", 1, reg="v2", addr="v5")
        if "wod" in self.exp: self.stamp(4)
        self.dma_tile(SRD_A, "v4", 16, 8192, "s59", "s54")
        self.stamp(8)
        P = [8, 10, 12, 14, 16, 18, 20, 22]
        items = [(f"buffer_load_dwordx2 v[24:25], v7, {SRD_WS}, s56 offen sc1", [24, 25], None)] + \
                [(f"buffer_load_dwordx2 v[{P[i]}:{P[i]+1}], v3, {SRD_WS}, s57 offen offset:{512*i} sc1", [P[i], P[i] + 1], None) for i in range(8)]
        for txt, regs, m0 in items: a(txt)
        a("s_waitcnt vmcnt(9)")
        self.stamp(9)
        self.tr_frags(40, "v6", 0, 128, 4, 4)
        a("s_waitcnt vmcnt(0)")
        self.sentcheck([r for it in items for r in it[1]], "v2")
        Lg = self.lab("gate")
        a(f"s_cbranch_vccz {Lg}_all")
        a.label(Lg)
        a(f"""buffer_load_dwordx2 v[24:25], v7, {SRD_WS}, s56 offen sc1
s_waitcnt vmcnt(0)
v_max_u32 v2, v24, v25
v_cmp_eq_u32 vcc, -1, v2
s_and_b32 s52, vcc_lo, 0xff
s_bcnt1_i32_b32 s52, s52
s_cmp_le_u32 s52, {self.thr}
s_cbranch_scc1 {Lg}_ok
s_cmp_eq_u32 {SPIN}, 0
s_cbranch_scc1 {Lg}_ok
s_sub_u32 {SPIN}, {SPIN}, 1
s_sleep 2
s_branch {Lg}""")
        a.label(Lg + "_ok")
        self.poll3(items, rslot=2, mask0=8)
        a.label(Lg + "_all")
        a("s_waitcnt lgkmcnt(0)")
        self.stamp(6)
        m, l = "v24", "v25"
        a(f"v_mov_b32 v144, {m}")
        for ctl in ("row_half_mirror", "quad_perm:[2,3,0,1]", "quad_perm:[1,0,3,2]"): self.dpp("v_max_f32", "v144", "v144", "v144", ctl)
        a(f"v_sub_f32 v145, {m}, v144\nv_mul_f32 v145, {LOG2E}, v145\nv_exp_f32 v145, v145\nv_mov_b32 v152, 0\nv_mul_f32 v146, v145, {l}")
        for ctl in ("row_half_mirror", "quad_perm:[2,3,0,1]", "quad_perm:[1,0,3,2]"): self.dpp("v_add_f32", "v146", "v146", "v146", ctl)
        a("v_mov_b32 v153, 0\nv_rcp_f32 v147, v146")
        for j in range(8):
            a(f"v_fmac_f32_dpp v152, v145, v{P[j]} row_newbcast:{j} row_mask:0xf bank_mask:0xf")
            a(f"v_fmac_f32_dpp v153, v145, v{P[j]+1} row_newbcast:{j} row_mask:0xf bank_mask:0xf")
        self.stamp(10)
        a("""v_mul_f32 v154, v152, v147
v_mul_f32 v155, v153, v147
v_fma_f32 v156, -v154, v146, v152
v_fma_f32 v157, -v155, v146, v153
v_fma_f32 v154, v156, v147, v154
v_fma_f32 v155, v157, v147, v155
v_cvt_pk_bf16_f32 v148, v154, v155""")
        for k in range(4):
            for q in range(4): a(f"v_mov_b32_dpp v{108+4*k+q}, v148 row_newbcast:{4*k+q} row_mask:0xf bank_mask:0xf")
        self.mfma_tiles(124, 108, 40, 4, 4)
        a(f"""v_cndmask_b32 v158, v124, v128, {M_G1}
v_cndmask_b32 v158, v158, v132, {M_G2}
v_cndmask_b32 v158, v158, v136, {M_G3}
ds_write_b32 v151, v158 offset:{YP}
s_waitcnt lgkmcnt(0)
s_barrier""")
        a("s_cmp_lg_u32 s3, 0\ns_cbranch_scc1 L_wo_done")
        for w in range(4): a(f"ds_read_b32 v{160+w}, v150 offset:{YP + 256*w}")
        a(f"""s_waitcnt lgkmcnt(0)
v_add_f32 v160, v160, v161
v_add_f32 v162, v162, v163
v_add_f32 v160, v160, v162
buffer_store_dword v160, v150, {SRD_WS}, s55 offen sc1""")
        for r in range(1, self.ry): a(f"s_add_u32 s55, s55, 16384\nbuffer_store_dword v160, v150, {SRD_WS}, s55 offen sc1")
        self.stamp(11)
        a.label("L_wo_done")
        a("s_add_u32 s3, s3, 8")
        self.finish()

def generate(**kw):
    g = Gen(**kw)
    return g.build()

if __name__ == "__main__":
    import argparse
    p = argparse.ArgumentParser()
    p.add_argument("-o", default="k.s"); p.add_argument("-W", type=int, default=3); p.add_argument("--stamps", action="store_true")
    p.add_argument("--nohintA", action="store_true"); p.add_argument("--nohintB", action="store_true"); p.add_argument("--noprefetch", action="store_true")
    p.add_argument("--dbg", type=int, default=0); p.add_argument("--diag", type=int, default=0); p.add_argument("--K", type=int, default=2); p.add_argument("--ry", type=int, default=1); p.add_argument("--d2", type=int, default=2); p.add_argument("--d3", type=int, default=2); p.add_argument("--stag2", type=int, default=8); p.add_argument("--stag3", type=int, default=8); p.add_argument("--slG", type=int, default=2); p.add_argument("--jt", type=int, default=26); p.add_argument("--early", action="store_true"); p.add_argument("--thr", type=int, default=2); p.add_argument("--single", action="store_true"); p.add_argument("--stag", type=int, default=8); p.add_argument("--novf", type=int, default=0); p.add_argument("--jb", type=int, default=31); p.add_argument("--budget", type=int, default=70); p.add_argument("--pfmax", type=int, default=256); p.add_argument("--nob0", action="store_true"); p.add_argument("--notouch", action="store_true"); p.add_argument("--exp", default=""); p.add_argument("--slA", type=int, default=4); p.add_argument("--slB", type=int, default=2); p.add_argument("--kv", default="nt"); p.add_argument("--wflag", default="nt")
    x = p.parse_args()
    open(x.o, "w").write(generate(W=x.W, stamps=x.stamps, hintA=not x.nohintA, hintB=not x.nohintB, prefetch=not x.noprefetch, kvflag=x.kv, wflag=x.wflag, exp=x.exp, slA=x.slA, slB=x.slB, pfmax=x.pfmax, b0=not x.nob0, touch=not x.notouch, dbg=x.dbg, novf=x.novf, jb=x.jb, budget=x.budget, single=x.single, stag=x.stag, thr=x.thr, jt=x.jt, early=x.early, ry=x.ry, d2=x.d2, d3=x.d3, stag2=x.stag2, stag3=x.stag3, slG=x.slG, diag=x.diag, K=x.K))
```

```python
import sys
from asmlib import Asm

NAME = "adaLN_cond__gqa_block_cached__dense_activation_relu__decode_kernel"

RDY_OFF = 0x1000; A2_OFF = 0x9000; ML_OFF = 0xD000; GATE_OFF = 0x18000; Y_OFF = 0x10000; AP_OFF = 0xD0000
B_OFF = 0x20000; O_OFF = 0x60000; F_OFF = 0xA0000; STAMP_OFF = 0x100000
F_TILE = 48 * 64
G_A2 = 64; G_COL_END = 96; G_FFN = 96; G_FFN_END = 139; G_WO = 192
CODE_PAD = 24576
QBUF = 0
MBUF = 256
LBUF = 288
STAT = 320
TRIG = 396
ISSUED = 400
ROLE = 392
CNT = 388
HINT = 384
ABUF = 512
OBUF = 4096
YP = 8192
FP = 9216
XN = 10240; GA = XN + 2048; SB = GA + 2048; CB1 = SB + 2048; GBN = CB1 + 2048; X1N = GBN + 2048
STG = 24576
OVF = STG + 32768
S_X, S_K, S_V, S_WQ, S_WO, S_W1, S_W2 = 8, 10, 12, 14, 16, 20, 22
S_C, S_WM, S_OUT, S_DBG, S_WS = 24, 26, 28, 30, 32
S_E = 34; T0, T1 = "s36", "s37"; SPIN = "s38"
SRD_WS = "s[40:43]"; SRD_A = "s[44:47]"; SRD_B = "s[48:51]"
M_B1 = "s[64:65]"; M_B0 = "s[66:67]"; M_G1 = "s[68:69]"; M_G2 = "s[70:71]"; M_G3 = "s[72:73]"
S_HI = "s74"
STAMP0 = 76
RING = 40
LOG2E = "0x3fb8aa3b"; SCALE = "0x3db504f3"

class Gen:
    def __init__(self, W=3, stamps=False, hintA=True, hintB=True, kvflag="nt", prefetch=True, wflag="nt", dbg=False, exp="", slA=4, slB=2, pfmax=256, b0=True, touch=True, novf=0, jb=31, budget=70, single=False, stag=8, thr=2, jt=26, early=False, ry=1, d2=2, d3=2, stag2=8, stag3=8, slG=2, diag=0, K=2, Wv=None, Wz=None, jw=64, wgate=False, dG=2, rg=4, slW=2, keepm=False, sf2=False, prio=0):
        self.a = Asm(); self.W = W; self.stamps = stamps; self.hintA = hintA; self.hintB = hintB
        self.kv = kvflag; self.prefetch = prefetch; self.wflag = wflag; self.uid = 0; self.dbg = dbg; self.exp = exp.split(','); self.slA = slA; self.slB = slB; self.pfmax = pfmax; self.b0 = b0; self.touch = touch; self.novf = novf; self.jb = jb; self.budget = budget; self.single = single; self.stag = stag; self.thr = thr; self.jt = jt; self.early = early; self.ry = ry; self.d2 = d2; self.d3 = d3; self.stag2 = stag2; self.stag3 = stag3; self.slG = slG; self.diag = diag; self.K = K; self.Wv = Wv or W; self.Wz = Wz or self.Wv; self.jw = jw; self.wgate = wgate; self.dG = dG; self.rg = rg; self.slW = slW; self.keepm = keepm; self.sf2 = sf2; self.prio = prio
    def lab(self, p):
        self.uid += 1; return f"L_{p}_{self.uid}"
    def stamp(self, i):
        if self.stamps: self.a(f"s_memrealtime s[{STAMP0+2*i}:{STAMP0+2*i+1}]")
    def finish(self):
        a = self.a
        if self.stamps:
            a("s_waitcnt lgkmcnt(0)\ns_mov_b64 exec, -1")
            a("v_mov_b32 v2, 0")
            for i in range(24): a(f"v_writelane_b32 v2, s{STAMP0+i}, {i}")
            a(f"s_mul_i32 s52, s2, 12\ns_add_u32 s52, s52, s3\ns_lshl_b32 s52, s52, 7\ns_add_u32 s52, s52, {STAMP_OFF}")
            a("v_lshlrev_b32 v3, 2, v0\ns_mov_b32 exec_hi, 0")
            a(f"buffer_store_dword v2, v3, {SRD_WS}, s52 offen")
        a("s_endpgm")
    def rbf(self, dst, src):
        self.a(f"v_cvt_pk_bf16_f32 {dst}, {src}, {src}\nv_and_b32 {dst}, {S_HI}, {dst}")
    def rbf2(self, d0, d1, s0, s1, tmp):
        self.a(f"v_cvt_pk_bf16_f32 {tmp}, {s0}, {s1}\nv_lshlrev_b32 {d0}, 16, {tmp}\nv_and_b32 {d1}, {S_HI}, {tmp}")
    def dpp(self, op, d, s0, s1, ctl, rm="0xf", bm="0xf"):
        self.a(f"{op}_dpp {d}, {s0}, {s1} {ctl} row_mask:{rm} bank_mask:{bm}")
    def row_reduce(self, op, v, steps=(8, 4, 2, 1)):
        for k in steps: self.dpp(op, v, v, v, f"row_ror:{k}")
    def wave_reduce_to_s(self, op, v, s):
        self.row_reduce(op, v)
        self.dpp(op, v, v, v, "row_bcast:15", rm="0xa")
        self.dpp(op, v, v, v, "row_bcast:31", rm="0xc")
        self.a(f"v_readlane_b32 {s}, {v}, 63")
    def xor32_add(self, v, t):
        self.a(f"v_mov_b32 {t}, {v}\nv_permlane32_swap_b32 {v}, {t}\nv_add_f32 {v}, {v}, {t}")
    def xor16_add(self, v, t):
        self.a(f"v_mov_b32 {t}, {v}\nv_permlane16_swap_b32 {v}, {t}\nv_add_f32 {v}, {v}, {t}")
    def tagcheck(self, regs, acc, first=True):
        a = self.a
        for r in regs:
            if first:
                a(f"v_xor_b32 {acc}, {T0}, v{r+2}"); first = False
            else:
                a(f"v_bitop3_b32 {acc}, {acc}, {T0}, v{r+2} bitop3:0xf6")
            a(f"v_bitop3_b32 {acc}, {acc}, {T1}, v{r+3} bitop3:0xf6")
    def poll(self, issue, regs, acc="v2", sleep=0, pre=False, rslot=None):
        a = self.a
        if rslot is not None and "rounds" in self.exp: a(f"s_mov_b32 s{STAMP0+2*rslot}, {SPIN}")
        L = self.lab("poll"); D = self.lab("pok")
        a.label(L)
        issue()
        a("s_waitcnt vmcnt(0)")
        self.tagcheck(regs, acc)
        a(f"v_cmp_ne_u32 vcc, 0, {acc}")
        if "nopoll" in self.exp and pre: a(f"s_branch {D}")
        a(f"s_cbranch_vccz {D}")
        a(f"s_cmp_eq_u32 {SPIN}, 0")
        a(f"s_cbranch_scc1 {D}")
        a(f"s_sub_u32 {SPIN}, {SPIN}, 1")
        if sleep: a(f"s_sleep {sleep}")
        a(f"s_branch {L}")
        a.label(D)
        if rslot is not None and "rounds" in self.exp: a(f"s_sub_u32 s{STAMP0+2*rslot}, s{STAMP0+2*rslot}, {SPIN}\ns_mov_b32 s{STAMP0+2*rslot+1}, 0")
    def sentcheck(self, regs, acc):
        a = self.a; regs = list(regs)
        if len(regs) == 1: a(f"v_cmp_eq_u32 vcc, -1, v{regs[0]}"); return
        if len(regs) == 2: a(f"v_max_u32 {acc}, v{regs[0]}, v{regs[1]}"); rest = []
        else: a(f"v_max3_u32 {acc}, v{regs[0]}, v{regs[1]}, v{regs[2]}"); rest = regs[3:]
        while rest:
            if len(rest) >= 2: a(f"v_max3_u32 {acc}, {acc}, v{rest[0]}, v{rest[1]}"); rest = rest[2:]
            else: a(f"v_max_u32 {acc}, {acc}, v{rest[0]}"); rest = []
        a(f"v_cmp_eq_u32 vcc, -1, {acc}")
    def poll2(self, issue, regs, nload, consume, acc="v2", rslot=None):
        a = self.a
        if rslot is not None and "rounds" in self.exp: a(f"s_mov_b32 s{STAMP0+2*rslot}, {SPIN}")
        L = self.lab("p2"); OA = L + "_a"; OB = L + "_b"; J = L + "_j"
        if self.single:
            a.label(L); issue(0); a("s_waitcnt vmcnt(0)"); self.sentcheck(regs(0), acc)
            a(f"s_cbranch_vccz {OA}\ns_cmp_eq_u32 {SPIN}, 0\ns_cbranch_scc1 {OA}\ns_sub_u32 {SPIN}, {SPIN}, 1\ns_branch {L}")
            a.label(OA); consume(0)
        else:
            issue(0); a(f"s_sleep {self.stag}"); issue(1)
            a.label(L)
            a(f"s_waitcnt vmcnt({nload})"); self.sentcheck(regs(0), acc); a(f"s_cbranch_vccz {OA}")
            issue(0)
            a(f"s_waitcnt vmcnt({nload})"); self.sentcheck(regs(1), acc); a(f"s_cbranch_vccz {OB}")
            issue(1)
            a(f"s_cmp_eq_u32 {SPIN}, 0\ns_cbranch_scc1 {OA}\ns_sub_u32 {SPIN}, {SPIN}, 1\ns_branch {L}")
            a.label(OB); consume(1); a(f"s_branch {J}")
            a.label(OA); consume(0)
            a.label(J)
        if rslot is not None and "rounds" in self.exp: a(f"s_sub_u32 s{STAMP0+2*rslot}, s{STAMP0+2*rslot}, {SPIN}\ns_mov_b32 s{STAMP0+2*rslot+1}, 0")
    def p3_issue(self, items, mask0):
        a = self.a
        for i, (txt, regs, m0) in enumerate(items): a(f"s_mov_b64 exec, s[{mask0+2*i}:{mask0+2*i+1}]\n{txt}")
        a("s_mov_b64 exec, -1")
    def p3_check(self, items, mask0):
        a = self.a; n = len(items)
        M = lambda i: f"s[{mask0+2*i}:{mask0+2*i+1}]"
        for i, (txt, regs, m0) in enumerate(items):
            regs = list(regs)
            if len(regs) == 1: a(f"v_cmp_eq_u32 {M(i)}, -1, v{regs[0]}")
            else:
                if len(regs) == 2: a(f"v_max_u32 v2, v{regs[0]}, v{regs[1]}")
                else: a(f"v_max3_u32 v2, v{regs[0]}, v{regs[1]}, v{regs[2]}\nv_max_u32 v2, v2, v{regs[3]}")
                a(f"v_cmp_eq_u32 {M(i)}, -1, v2")
        a(f"s_or_b64 vcc, {M(0)}, {M(1)}" if n > 1 else f"s_mov_b64 vcc, {M(0)}")
        for i in range(2, n): a(f"s_or_b64 vcc, vcc, {M(i)}")
    def poll3(self, items, rslot=None, stag=None, sleep=0, mask0=8, depth=2, init=True, sync_first=False):
        a = self.a; n = len(items)
        M = lambda i: f"s[{mask0+2*i}:{mask0+2*i+1}]"
        if rslot is not None and "rounds" in self.exp: a(f"s_mov_b32 s{STAMP0+2*rslot}, {SPIN}")
        if init:
            for i, (txt, regs, m0) in enumerate(items):
                a(f"s_mov_b64 {M(i)}, {m0 if m0 is not None else -1}")
        L = self.lab("p3"); D = L + "_d"
        if self.single: depth = 1
        if sync_first and depth > 1:
            self.p3_issue(items, mask0)
            a("s_waitcnt vmcnt(0)")
            self.p3_check(items, mask0)
            a(f"s_cbranch_vccz {D}")
        for k in range(depth - 1): self.p3_issue(items, mask0); a(f"s_sleep {self.stag if stag is None else stag}")
        a.label(L)
        self.p3_issue(items, mask0)
        a(f"s_waitcnt vmcnt({n * (depth - 1)})")
        self.p3_check(items, mask0)
        a(f"s_cbranch_vccz {D}\ns_cmp_eq_u32 {SPIN}, 0\ns_cbranch_scc1 {D}\ns_sub_u32 {SPIN}, {SPIN}, 1")
        if sleep: a(f"s_sleep {sleep}")
        a(f"s_branch {L}")
        a.label(D)
        if rslot is not None and "rounds" in self.exp: a(f"s_sub_u32 s{STAMP0+2*rslot}, s{STAMP0+2*rslot}, {SPIN}\ns_mov_b32 s{STAMP0+2*rslot+1}, 0")
    def lds_spin(self, off, cmp_op, val, sleep, reg="v2", addr="v3"):
        a = self.a; L = self.lab("ls")
        a(f"v_mov_b32 {addr}, 0")
        a.label(L)
        a(f"""ds_read_b32 {reg}, {addr} offset:{off}
s_waitcnt lgkmcnt(0)
{cmp_op} vcc, {val}, {reg}
s_cbranch_vccnz {L}_ok
s_cmp_eq_u32 {SPIN}, 0
s_cbranch_scc1 {L}_ok
s_sub_u32 {SPIN}, {SPIN}, 1
s_sleep {sleep}
s_branch {L}""")
        a.label(L + "_ok")
    def srd(self, srd, base, size, add=None):
        n = int(srd[2:srd.index(':')])
        if add is None: self.a(f"s_mov_b32 s{n}, s{base}\ns_mov_b32 s{n+1}, s{base+1}")
        else: self.a(f"s_add_u32 s{n}, s{base}, {add}\ns_addc_u32 s{n+1}, s{base+1}, 0")
        self.a(f"s_mov_b32 s{n+2}, {size}\ns_mov_b32 s{n+3}, 0x20000")
    def consts(self):
        a = self.a
        a(f"s_mov_b32 {S_HI}, 0xffff0000\ns_mov_b32 {SPIN}, 0x40000")
        a("s_mov_b32 s64, 0xcccccccc\ns_mov_b32 s65, 0xcccccccc\ns_mov_b32 s66, 0xaaaaaaaa\ns_mov_b32 s67, 0xaaaaaaaa")
        a("s_mov_b32 s68, 0xffff0000\ns_mov_b32 s69, 0\ns_mov_b32 s70, 0\ns_mov_b32 s71, 0xffff\ns_mov_b32 s72, 0\ns_mov_b32 s73, 0xffff0000")
    def epoch(self):
        self.a(f"s_add_u32 s34, s34, 1\ns_addc_u32 s35, s35, 0\ns_xor_b32 {T0}, s34, 0x5bd1e995\ns_xor_b32 {T1}, s35, 0x9e3779b9")
    def dma_tile(self, srd, voff, n, step, lds_base, soff0="0"):
        a = self.a
        a(f"s_mov_b32 s53, {soff0}\ns_mov_b32 m0, {lds_base}")
        for i in range(n):
            a(f"buffer_load_dwordx4 {voff}, {srd}, s53 offen {self.wflag} lds")
            if i < n - 1: a(f"s_add_u32 s53, s53, {step}\ns_add_u32 m0, m0, 1024")
    def tr_addr(self, dst, rowbytes, t0, t1):
        sh = rowbytes.bit_length() - 1
        self.a(f"""v_lshrrev_b32 {t0}, 4, v0
v_bfe_u32 {t1}, v0, 2, 2
v_lshl_add_u32 {t0}, {t0}, 3, {t1}
v_lshlrev_b32 {t0}, {sh}, {t0}
v_and_b32 {t1}, 3, v0
v_lshl_add_u32 {dst}, {t1}, 3, {t0}""")
    def tr_frags(self, base_reg, vaddr, lds_base, rowbytes, nsteps, ntiles):
        for s in range(nsteps):
            for t in range(ntiles):
                r = base_reg + 4 * (s * ntiles + t)
                for h in range(2):
                    off = lds_base + (32 * s + 4 * h) * rowbytes + t * 32
                    self.a(f"ds_read_b64_tr_b16 v[{r+2*h}:{r+2*h+1}], {vaddr} offset:{off}")
    def mfma_tiles(self, dbase, abase, bbase, nsteps, ntiles, zero_first=True):
        for s in range(nsteps):
            for t in range(ntiles):
                d = f"v[{dbase+4*t}:{dbase+4*t+3}]"
                c = "0" if (s == 0 and zero_first) else d
                b = bbase + 4 * (s * ntiles + t)
                self.a(f"v_mfma_f32_16x16x32_bf16 {d}, v[{abase+4*s}:{abase+4*s+3}], v[{b}:{b+3}], {c}")

    def build(self):
        a = self.a; W = self.W
        a.raw(f"; @launch grid=(256,1,1) block=(768,1,1) lds={max(STG + 65536, OVF + 8192 * self.novf)}")
        a.raw('.amdgcn_target "amdgcn-amd-amdhsa--gfx950"')
        a.raw(".text"); a.raw(f".globl {NAME}"); a.raw(".p2align 8"); a.raw(f".type {NAME},@function"); a.raw(f"{NAME}:")
        a("s_cmp_ge_u32 s2, 256\ns_cbranch_scc1 L_exit")
        self.stamp(0)
        if self.diag: a("s_memrealtime s[100:101]")
        a("""s_load_dwordx16 s[8:23], s[0:1], 0
s_load_dwordx8 s[24:31], s[0:1], 64
s_load_dwordx2 s[32:33], s[0:1], 96
v_lshrrev_b32 v1, 6, v0
v_and_b32 v0, 63, v0
v_readfirstlane_b32 s3, v1""")
        if self.prefetch:
            a(f"s_cmp_lg_u32 s3, 11\ns_cbranch_scc1 L_nopf")
            if self.pfmax < 256: a(f"s_cmp_ge_u32 s2, {self.pfmax}\ns_cbranch_scc1 L_nopf")
            a("s_getpc_b64 s[52:53]")
            a.label("L_pc")
            a(f"s_sub_u32 s52, s52, L_pc-{NAME}\ns_subb_u32 s53, s53, 0\nv_lshlrev_b32 v2, 7, v0")
            for i in range(CODE_PAD // 8192):
                a(f"global_load_dword v{4+i}, v2, s[52:53]")
                if i < CODE_PAD // 8192 - 1: a("v_add_u32 v2, 0x2000, v2")
            a.label("L_nopf")
        a("s_cmp_ge_u32 s3, 8\ns_cbranch_scc1 L_ctl")
        self.stream_wave()
        a.label("L_ctl")
        self.ctl_waves()
        a.label("L_exit")
        a("s_endpgm")
        a.raw(f".fill ({CODE_PAD} - (. - {NAME})) / 4, 4, 0xbf800000")
        a.raw("L_code_end:")
        a.raw('.section .rodata,"a"'); a.raw(".p2align 6"); a.raw(f".amdhsa_kernel {NAME}")
        for l in ["  .amdhsa_next_free_vgpr 168", "  .amdhsa_next_free_sgpr 102", "  .amdhsa_accum_offset 168",
                  "  .amdhsa_group_segment_fixed_size 0", "  .amdhsa_kernarg_size 104", "  .amdhsa_user_sgpr_count 2",
                  "  .amdhsa_user_sgpr_kernarg_segment_ptr 1", "  .amdhsa_system_sgpr_workgroup_id_x 1", ".end_amdhsa_kernel"]:
            a.raw(l)
        return a.text()

    def stream_wave(self):
        a = self.a; W = self.W; kv = self.kv; n = self.novf
        ring = lambda j: RING + 4 * j
        a("""s_lshl_b32 s52, s2, 3
s_add_u32 s52, s52, s3
s_lshl_b32 s52, s52, 15
v_lshlrev_b32 v1, 4, v0
s_lshl_b32 s54, s3, 2
s_add_u32 s54, s54, s2
s_and_b32 s54, s54, 31
s_lshl_b32 s54, s54, 10
s_waitcnt lgkmcnt(0)""")
        if "karg" in self.exp: self.stamp(9)
        self.srd(SRD_A, S_K, 32768, "s52")
        if self.b0: a("s_barrier")
        st = dict(issued=0, known=-1)
        def issue():
            i = st["issued"]
            if i < 32:
                r = ring(i); a(f"buffer_load_dwordx4 v[{r}:{r+3}], v1, {SRD_A}, s54 offen {kv}")
            elif i < 32 + n:
                a(f"buffer_load_dwordx4 v1, {SRD_B}, s54 offen {kv} lds")
            else:
                r = ring(i - 32 - n); a(f"buffer_load_dwordx4 v[{r}:{r+3}], v1, {SRD_B}, s54 offen {kv}")
            a("s_add_u32 s54, s54, 1024\ns_and_b32 s54, s54, 0x7fff")
            if 32 <= i < 31 + n: a("s_add_u32 m0, m0, 1024")
            st["issued"] = i + 1
        def tick():
            i = st["issued"]
            Wc = W if i < 32 + n else (self.Wv if i < self.jw else self.Wz)
            if i >= Wc and st["known"] < i - Wc:
                a(f"s_waitcnt vmcnt({Wc-1})"); st["known"] = i - Wc
            issue()
        def need(idx):
            if st["known"] < idx:
                a(f"s_waitcnt vmcnt({st['issued'] - 1 - idx})"); st["known"] = idx
        for j in range(W): issue()
        a(f"s_load_dwordx2 s[34:35], s[{S_WS}:{S_WS+1}], 0")
        self.srd(SRD_B, S_V, 32768, "s52")
        self.srd(SRD_WS, S_WS, 0x200000 if self.stamps else 0x100000)
        self.consts()
        if n:
            a(f"s_mul_i32 s57, s3, {n*1024}\ns_add_u32 s57, s57, {OVF}\ns_mov_b32 m0, s57\nv_add_u32 v3, s57, v1")
        while st["issued"] < 32 + n:
            j = st["issued"]
            tick()
            if j == W: self.stamp(11)
            if j == W + 1:
                a("s_waitcnt lgkmcnt(0)"); self.epoch()
        self.stamp(1)
        if self.stamps: a(f"s_mov_b32 s{STAMP0+12}, 0\ns_mov_b32 s{STAMP0+13}, 0")
        a("v_and_b32 v2, 15, v0\nv_lshlrev_b32 v2, 4, v2")
        a("s_barrier")
        self.stamp(2)
        a(f"ds_read_b128 v[4:7], v2 offset:{QBUF}\ns_waitcnt lgkmcnt(0)")
        if self.prio:
            Lp = self.lab("pr"); a(f"s_cmp_ge_u32 s3, 4\ns_cbranch_scc0 {Lp}\ns_setprio 1"); a.label(Lp)
        t = [10, 11, 12, 13]; ra, rb = 14, 15; u = [16, 17, 18, 19]; x, y = 20, 21; S = [8, 9]
        def group(k):
            need(4 * k + 3)
            js = [4 * k + b for b in range(4)]
            for e in range(4):
                for b in range(4):
                    c = "0" if e == 0 else f"v{t[b]}"
                    a(f"v_dot2_f32_bf16 v{t[b]}, v{ring(js[b])+e}, v{4+e}, {c}")
            self.dpp("v_add_f32", f"v{ra}", f"v{t[0]}", f"v{t[0]}", "row_ror:8", bm="0x3")
            self.dpp("v_add_f32", f"v{rb}", f"v{t[2]}", f"v{t[2]}", "row_ror:8", bm="0x3")
            self.dpp("v_add_f32", f"v{ra}", f"v{t[1]}", f"v{t[1]}", "row_ror:8", bm="0xc")
            self.dpp("v_add_f32", f"v{rb}", f"v{t[3]}", f"v{t[3]}", "row_ror:8", bm="0xc")
            uk = u[k & 3]
            self.dpp("v_add_f32", f"v{uk}", f"v{ra}", f"v{ra}", "row_half_mirror", bm="0x5")
            self.dpp("v_add_f32", f"v{uk}", f"v{rb}", f"v{rb}", "row_half_mirror", bm="0xa")
            if (k & 3) == 3:
                def merge(dst, p, q, ctl, mask):
                    self.dpp("v_add_f32", f"v{x}", f"v{p}", f"v{p}", ctl)
                    self.dpp("v_add_f32", f"v{y}", f"v{q}", f"v{q}", ctl)
                    a(f"v_cndmask_b32 v{dst}, v{x}, v{y}, {mask}")
                merge(u[0], u[0], u[1], "quad_perm:[2,3,0,1]", M_B1)
                merge(u[2], u[2], u[3], "quad_perm:[2,3,0,1]", M_B1)
                merge(S[k >> 2], u[0], u[2], "quad_perm:[1,0,3,2]", M_B0)
        acc = list(range(10, 18)); un = list(range(18, 26)); pb = 26
        def softmax():
            if self.prio == 2: a("s_setprio 0")
            self.stamp(3)
            self.rbf2("v8", "v9", "v8", "v9", "v10")
            a(f"v_mul_f32 v8, {SCALE}, v8\nv_mul_f32 v9, {SCALE}, v9")
            self.rbf2("v8", "v9", "v8", "v9", "v10")
            a("v_max_f32 v10, v8, v9")
            self.wave_reduce_to_s("v_max_f32", "v10", "s55")
            a(f"""v_subrev_f32 v8, s55, v8
v_subrev_f32 v9, s55, v9
v_mul_f32 v8, {LOG2E}, v8
v_mul_f32 v9, {LOG2E}, v9
v_exp_f32 v8, v8
v_exp_f32 v9, v9
v_mov_b32 v11, s55
s_lshl_b32 s56, s3, 2
v_mov_b32 v12, s56
s_mov_b64 exec, 1
ds_write_b32 v12, v11 offset:{MBUF}
s_mov_b64 exec, -1
v_add_f32 v10, v8, v9""")
            self.wave_reduce_to_s("v_add_f32", "v10", "s56")
            for e in acc: a(f"v_mov_b32 v{e}, 0")
        def lane_of(j):
            jj = j & 15; ga_, b = jj >> 2, jj & 3
            return ((b & 1) << 3) | ((b >> 1) << 2) | ((ga_ & 1) << 1) | (ga_ >> 1)
        TQ = [28, 32]
        def lds_read(j):
            need(32 + j)
            r = TQ[j & 1]
            a(f"ds_read_b128 v[{r}:{r+3}], v3 offset:{1024*j}")
        def cu_max():
            L = self.lab("mx")
            a("v_mov_b32 v27, 0")
            a.label(L)
            a(f"""ds_read_b128 v[28:31], v27 offset:{MBUF}
ds_read_b128 v[32:35], v27 offset:{MBUF+16}
s_waitcnt lgkmcnt(0)
v_max3_u32 v36, v28, v29, v30
v_max3_u32 v36, v36, v31, v32
v_max3_u32 v36, v36, v33, v34
v_max_u32 v36, v36, v35
v_cmp_eq_u32 vcc, -1, v36
s_cbranch_vccz {L}_ok
s_cmp_eq_u32 {SPIN}, 0
s_cbranch_scc1 {L}_ok
s_sub_u32 {SPIN}, {SPIN}, 1
s_branch {L}""")
            a.label(L + "_ok")
            a(f"""v_max3_f32 v36, v28, v29, v30
v_max3_f32 v36, v36, v31, v32
v_max3_f32 v36, v36, v33, v34
v_max_f32 v36, v36, v35
v_sub_f32 v37, s55, v36
v_mul_f32 v37, {LOG2E}, v37
v_exp_f32 v37, v37""")
        def consume(j):
            if j < n:
                if j == 0: lds_read(0)
                a("s_waitcnt lgkmcnt(0)")
                if j + 1 < n: lds_read(j + 1)
                r = TQ[j & 1]
            else:
                need(32 + j)
                r = ring(j - n)
            if j == max(20, n):
                cu_max()
                a("v_mov_b32 v38, 1")
            if j == max(20, n, self.jt):
                a(f"ds_write_b32 v27, v38 offset:{TRIG}")
            a(f"v_mov_b32_dpp v{pb}, v{8 + (j >> 4)} row_newbcast:{lane_of(j)} row_mask:0xf bank_mask:0xf")
            for e in range(4):
                a(f"v_lshlrev_b32 v{un[2*e]}, 16, v{r+e}\nv_and_b32 v{un[2*e+1]}, {S_HI}, v{r+e}")
            for e in range(8):
                a(f"v_fmac_f32 v{acc[e]}, v{pb}, v{un[e]}")
        work = [("G", k, 30) for k in range(8)] + [("S", 0, 80)] + [("C", j, 20) for j in range(32)]
        groups_done = 0; consumed = 0
        def can_issue():
            i = st["issued"]
            if i >= 64: return False
            slot = i - 32 - n
            return slot < 0 or groups_done > slot // 4
        BUDGET = self.budget
        while work:
            issued_now = False
            if can_issue():
                tick(); issued_now = True
                if st["issued"] == 64 and self.early:
                    assert consumed > max(20, n)
                    a(f"s_mov_b64 exec, 1\nds_add_u32 v27, v38 offset:{ISSUED}\ns_mov_b64 exec, -1")
            cost = 0
            while work and (cost < BUDGET or not can_issue()):
                kind, k, c = work[0]
                if kind == "C":
                    req = 32 + min(k + 1, n - 1) if k < n else 32 + k
                    if can_issue() and st["known"] < req: break
                work.pop(0); cost += c
                if kind == "G": group(k); groups_done = k + 1
                elif kind == "S": softmax()
                else: consume(k); consumed = k + 1
        assert st["issued"] == 64
        self.stamp(4)
        for e in range(4): a(f"v_permlane32_swap_b32 v{acc[e]}, v{acc[e+4]}")
        for e in range(4): a(f"v_add_f32 v{acc[e]}, v{acc[e]}, v{acc[e+4]}")
        for e in range(2): a(f"v_permlane16_swap_b32 v{acc[e]}, v{acc[e+2]}")
        for e in range(2): a(f"v_add_f32 v{acc[e]}, v{acc[e]}, v{acc[e+2]}")
        a(f"""v_mul_f32 v10, v10, v37
v_mul_f32 v11, v11, v37
v_mul_f32 v12, s56, v37
v_and_b32 v13, 15, v0
v_lshrrev_b32 v14, 4, v0
v_lshl_add_u32 v13, v13, 2, v14
v_lshlrev_b32 v13, 3, v13
s_lshl_b32 s57, s3, 9
v_add_u32 v13, s57, v13
s_lshl_b32 s57, s3, 2
v_mov_b32 v14, s57
ds_write_b64 v13, v[10:11] offset:{OBUF}
ds_write_b32 v14, v12 offset:{LBUF}
v_mov_b32 v15, 1
s_waitcnt lgkmcnt(0)
s_mov_b64 exec, 1
ds_add_rtn_u32 v15, v27, v15 offset:{CNT}
s_mov_b64 exec, -1
v_lshlrev_b32 v13, 3, v0
s_waitcnt lgkmcnt(0)
v_readfirstlane_b32 s57, v15""")
        self.stamp(5)
        a("s_cmp_lg_u32 s57, 7\ns_cbranch_scc1 L_s_pub_done")
        for w in range(8): a(f"ds_read_b64 v[{40+2*w}:{41+2*w}], v13 offset:{OBUF+512*w}")
        a(f"ds_read_b128 v[56:59], v27 offset:{LBUF}\nds_read_b128 v[60:63], v27 offset:{LBUF+16}")
        a(f"s_lshl_b32 s57, s2, 9\ns_add_u32 s57, s57, {O_OFF}\ns_lshl_b32 s58, s2, 3\ns_add_u32 s58, s58, {ML_OFF}\nv_mov_b32 v68, v36")
        a("s_waitcnt lgkmcnt(0)")
        a("""v_add_f32 v64, v40, v42
v_add_f32 v65, v41, v43
v_add_f32 v72, v44, v46
v_add_f32 v73, v45, v47
v_add_f32 v74, v48, v50
v_add_f32 v75, v49, v51
v_add_f32 v76, v52, v54
v_add_f32 v77, v53, v55
v_add_f32 v64, v64, v72
v_add_f32 v65, v65, v73
v_add_f32 v74, v74, v76
v_add_f32 v75, v75, v77
v_add_f32 v64, v64, v74
v_add_f32 v65, v65, v75""")
        a(f"buffer_store_dwordx2 v[64:65], v13, {SRD_WS}, s57 offen sc1")
        a("""v_add_f32 v56, v56, v57
v_add_f32 v58, v58, v59
v_add_f32 v60, v60, v61
v_add_f32 v62, v62, v63
v_add_f32 v56, v56, v58
v_add_f32 v60, v60, v62
v_add_f32 v69, v56, v60
s_mov_b64 exec, 1""")
        a(f"buffer_store_dwordx2 v[68:69], v27, {SRD_WS}, s58 offen sc1")
        if not self.wgate: a(f"s_lshl_b32 s58, s2, 2\ns_add_u32 s58, s58, {GATE_OFF}\ns_mov_b64 exec, {(1 << self.rg) - 1}\nv_lshlrev_b32 v14, 10, v0\nbuffer_store_dword v36, v14, {SRD_WS}, s58 offen sc1")
        a("s_mov_b64 exec, -1")
        if not self.early: a(f"v_mov_b32 v15, 8\nds_write_b32 v27, v15 offset:{ISSUED}")
        self.stamp(6)
        a.label("L_s_pub_done")
        self.role("L_s_exit", "L_s_exit", "L_s_ffn", tick=True)
        a.label("L_s_ffn")
        a("s_barrier")
        self.ffn_wave()
        a.label("L_s_exit")
        self.finish()

    def role(self, l_none, l_wo, l_ffn, tick=False):
        a = self.a
        self.lds_spin(ROLE, "v_cmp_ne_u32", "-1", 2)
        a(f"""s_lshr_b32 s57, s2, 3
s_and_b32 s57, s57, 1
v_readfirstlane_b32 s56, v2
{"s_mov_b32 s%d, s56" % (STAMP0 + 22) if (self.stamps and tick) else ""}
{"s_mov_b32 s%d, 0" % (STAMP0 + 23) if (self.stamps and tick) else ""}
s_lshl_b32 s60, s57, 5
s_add_u32 s60, s60, s56
s_cmp_lt_u32 s56, 32
s_cbranch_scc1 {l_wo}
s_sub_u32 s60, 54, s57
s_cmp_ge_u32 s56, s60
s_cbranch_scc1 {l_none}
s_mul_i32 s60, s57, 22
s_add_u32 s60, s60, s56
s_sub_u32 s60, s60, 32
s_branch {l_ffn}""")

    def ffn_wave(self):
        a = self.a
        a(f"s_lshl_b32 s59, s3, 13\ns_add_u32 s59, s59, {STG}")
        a(f"""v_lshrrev_b32 v4, 4, v0
v_lshlrev_b32 v4, 3, v4
v_and_b32 v5, 7, v0
v_add_u32 v4, v4, v5
v_mov_b32 v30, v4
v_bfe_u32 v5, v0, 3, 1
v_lshl_add_u32 v4, v5, 5, v4
s_lshl_b32 s61, s3, 6
v_add_u32 v5, s61, v4
v_lshlrev_b32 v5, 2, v5
v_lshlrev_b32 v30, 2, v30
v_lshlrev_b32 v8, 2, v4
s_lshl_b32 s61, s3, 8
v_add_u32 v8, s61, v8""")
        self.tr_addr("v6", 64, "v9", "v10"); a("v_add_u32 v6, s59, v6")
        self.tr_addr("v7", 128, "v9", "v10"); a("v_add_u32 v7, s59, v7")
        a(f"""v_and_b32 v31, 31, v0
v_lshlrev_b32 v31, 2, v31
s_lshl_b32 s61, s3, 7
v_add_u32 v31, s61, v31
s_lshl_b32 s61, s3, 3
v_mov_b32 v32, s61
v_and_b32 v33, 7, v0
v_lshlrev_b32 v33, 3, v33
v_mov_b32 v34, 0
v_lshrrev_b32 v35, 4, v0
s_lshl_b32 s61, s3, 2
v_add_u32 v35, s61, v35
v_mul_u32_u24 v35, {F_TILE}, v35
v_and_b32 v36, 15, v0
v_lshl_add_u32 v35, v36, 2, v35
s_lshl_b32 s63, s60, 6
s_add_u32 s63, s63, {F_OFF}
s_and_b32 s52, s60, {self.ry - 1}
s_lshl_b32 s52, s52, 14
s_add_u32 s52, s52, {Y_OFF}
s_add_u32 s53, s52, 4096
s_add_u32 s54, s52, 8192
s_add_u32 s55, s52, 12288
s_barrier""")
        self.stamp(7)
        a(f"ds_read_b32 v40, v5 offset:{XN}\nds_read_b32 v41, v5 offset:{GA}\nds_read_b32 v42, v5 offset:{SB}\nds_read_b32 v43, v5 offset:{CB1}")
        B1f, B2f = 64, 80
        self.tr_frags(B1f, "v6", 0, 64, 2, 2)
        for t in range(4):
            for h in range(2):
                a(f"ds_read_b64_tr_b16 v[{B2f+4*t+2*h}:{B2f+4*t+2*h+1}], v7 offset:{4096 + 4*h*128 + t*32}")
        a("s_waitcnt lgkmcnt(0)")
        if self.wgate: a("s_barrier")
        r = 96
        self.poll3([(f"buffer_load_dword v{r+i}, v8, {SRD_WS}, s{52 + (i >> 1)} offen offset:{2048*(i&1)} sc1", [r + i], None) for i in range(8)], rslot=1, depth=self.d2, stag=self.stag2, sync_first=self.sf2)
        a(f"""v_add_f32 v10, v{r}, v{r+1}
v_add_f32 v11, v{r+2}, v{r+3}
v_add_f32 v12, v{r+4}, v{r+5}
v_add_f32 v13, v{r+6}, v{r+7}
v_add_f32 v10, v10, v11
v_add_f32 v12, v12, v13
v_add_f32 v10, v10, v12""")
        self.stamp(8)
        self.rbf("v10", "v10")
        a("v_mul_f32 v10, v41, v10"); self.rbf("v10", "v10")
        a("v_add_f32 v10, v40, v10"); self.rbf("v10", "v10")
        a(f"v_readfirstlane_b32 s61, v10\nds_write_b32 v5, v10 offset:{X1N}\nv_subrev_f32 v12, s61, v10\nv_mul_f32 v13, v12, v12")
        for k in (8, 4, 2, 1):
            self.dpp("v_add_f32", "v12", "v12", "v12", f"row_ror:{k}"); self.dpp("v_add_f32", "v13", "v13", "v13", f"row_ror:{k}")
        self.dpp("v_add_f32", "v12", "v12", "v12", "row_bcast:15", rm="0xa"); self.dpp("v_add_f32", "v13", "v13", "v13", "row_bcast:15", rm="0xa")
        self.dpp("v_add_f32", "v12", "v12", "v12", "row_bcast:31", rm="0xc"); self.dpp("v_add_f32", "v13", "v13", "v13", "row_bcast:31", rm="0xc")
        a(f"""v_mul_f32 v14, 0x3c800000, v12
v_fma_f32 v15, -v14, v12, v13
v_add_f32 v14, s61, v14
s_mov_b32 exec_lo, 0
s_mov_b32 exec_hi, 0x80000000
ds_write_b64 v32, v[14:15] offset:{STAT}
s_mov_b64 exec, -1
s_waitcnt lgkmcnt(0)
s_barrier""")
        a(f"""ds_read_b64 v[18:19], v33 offset:{STAT}
ds_read_b32 v20, v34 offset:{STAT}
s_waitcnt lgkmcnt(0)
v_sub_f32 v18, v18, v20
v_mul_f32 v21, v18, v18
v_fmac_f32 v19, 0x42800000, v21""")
        for ctl in ("row_half_mirror", "quad_perm:[2,3,0,1]", "quad_perm:[1,0,3,2]"):
            self.dpp("v_add_f32", "v18", "v18", "v18", ctl); self.dpp("v_add_f32", "v19", "v19", "v19", ctl)
        a("""v_mul_f32 v21, v18, v18
v_fmac_f32 v20, 0x3e000000, v18
v_fmac_f32 v19, 0xc1000000, v21
v_mul_f32 v19, 0x3b000000, v19
v_max_f32 v19, 0, v19""")
        self.ln_tail1("v20", "v19", "v10", "v22", "v21", "v24", "v25")
        a("v_mul_f32 v22, v22, v43"); self.rbf("v22", "v22")
        a("v_add_f32 v22, v22, v42")
        a("v_mov_b32_dpp v23, v22 quad_perm:[1,1,3,3] row_mask:0xf bank_mask:0xf\nv_cvt_pk_bf16_f32 v24, v22, v23")
        for k in range(2):
            for q in range(4): a(f"v_mov_b32_dpp v{112+4*k+q}, v24 row_newbcast:{8*k+2*q} row_mask:0xf bank_mask:0xf")
        self.mfma_tiles(120, 112, B1f, 2, 2)
        a(f"""v_cndmask_b32 v29, v120, v124, {M_G1}
s_mov_b32 exec_hi, 0
ds_write_b32 v31, v29 offset:{FP}
s_mov_b64 exec, -1
s_waitcnt lgkmcnt(0)
s_barrier""")
        for w in range(8): a(f"ds_read_b32 v{44+w}, v30 offset:{FP+128*w}")
        a("""s_waitcnt lgkmcnt(0)
v_add_f32 v44, v44, v45
v_add_f32 v46, v46, v47
v_add_f32 v48, v48, v49
v_add_f32 v50, v50, v51
v_add_f32 v44, v44, v46
v_add_f32 v48, v48, v50
v_add_f32 v44, v44, v48
v_max_f32 v44, 0, v44
v_mov_b32_dpp v45, v44 quad_perm:[1,1,3,3] row_mask:0xf bank_mask:0xf
v_cvt_pk_bf16_f32 v46, v44, v45""")
        for q in range(4): a(f"v_mov_b32_dpp v{112+q}, v46 row_newbcast:{2*q} row_mask:0xf bank_mask:0xf")
        self.mfma_tiles(120, 112, B2f, 1, 4)
        a(f"""v_cndmask_b32 v40, v120, v124, {M_G1}
v_cndmask_b32 v40, v40, v128, {M_G2}
v_cndmask_b32 v40, v40, v132, {M_G3}
buffer_store_dword v40, v35, {SRD_WS}, s63 offen sc1""")
        self.stamp(9)
        a("s_cmp_lg_u32 s3, 0\ns_cbranch_scc1 L_s_exit\ns_cmp_ge_u32 s60, 32\ns_cbranch_scc1 L_s_exit")
        a(f"""v_lshlrev_b32 v8, 3, v0
s_mul_i32 s61, s60, {F_TILE}
s_add_u32 s61, s61, {F_OFF}
v_and_b32 v9, 7, v0
s_lshl_b32 s62, s60, 6
v_lshl_add_u32 v9, v9, 3, s62
ds_read_b64 v[10:11], v9 offset:{X1N}
ds_read_b64 v[12:13], v9 offset:{GBN}
v_mov_b32 v58, 0
v_mov_b32 v59, 0
v_mov_b32 v74, 0
v_mov_b32 v75, 0
v_and_b32 v14, 7, v0
v_lshlrev_b32 v14, 2, v14
s_lshl_b32 s62, s60, 5
s_mov_b32 s44, s{S_OUT}
s_mov_b32 s45, s{S_OUT+1}
s_mov_b32 s46, 1024
s_mov_b32 s47, 0x20000""")
        r = 48
        self.poll3([(f"buffer_load_dwordx2 v[{r+2*i}:{r+2*i+1}], v8, {SRD_WS}, s61 offen offset:{512*i} sc1", [r + 2*i, r + 2*i + 1], None if i < 5 else "0xffffff") for i in range(6)], rslot=2, depth=self.d3, stag=self.stag3)
        a(f"""v_add_f32 v80, v{r}, v{r+2}
v_add_f32 v81, v{r+1}, v{r+3}
v_add_f32 v82, v{r+4}, v{r+6}
v_add_f32 v83, v{r+5}, v{r+7}
v_add_f32 v84, v{r+8}, v{r+10}
v_add_f32 v85, v{r+9}, v{r+11}
v_add_f32 v80, v80, v82
v_add_f32 v81, v81, v83
v_add_f32 v80, v80, v84
v_add_f32 v81, v81, v85""")
        self.stamp(10)
        self.dpp("v_add_f32", "v80", "v80", "v80", "row_ror:8"); self.dpp("v_add_f32", "v81", "v81", "v81", "row_ror:8")
        a("v_mov_b32 v82, v80\nv_mov_b32 v83, v81\nv_permlane16_swap_b32 v80, v82\nv_permlane16_swap_b32 v81, v83\nv_add_f32 v80, v80, v82\nv_add_f32 v81, v81, v83")
        a("v_mov_b32 v82, v80\nv_mov_b32 v83, v81\nv_permlane32_swap_b32 v80, v82\nv_permlane32_swap_b32 v81, v83\nv_add_f32 v80, v80, v82\nv_add_f32 v81, v81, v83")
        a("s_waitcnt lgkmcnt(0)")
        self.rbf2("v80", "v81", "v80", "v81", "v82")
        a("v_mul_f32 v80, v12, v80\nv_mul_f32 v81, v13, v81")
        self.rbf2("v80", "v81", "v80", "v81", "v82")
        a(f"""v_add_f32 v80, v10, v80
v_add_f32 v81, v11, v81
v_cvt_pk_bf16_f32 v82, v80, v81
s_mov_b64 exec, 0xff
buffer_store_dword v82, v14, {SRD_A}, s62 offen""")
        if self.diag:
            Ld = self.lab("diag")
            a(f"s_cmp_lg_u32 s60, 0\ns_cbranch_scc1 L_s_exit\ns_mov_b64 exec, -1\ns_memrealtime s[4:5]\ns_mov_b32 s56, {RDY_OFF}\ns_mov_b32 s57, {RDY_OFF+2048}")
            a(f"buffer_load_dwordx4 v[100:103], v1, {SRD_WS}, s56 offen sc1\nbuffer_load_dwordx4 v[104:107], v1, {SRD_WS}, s56 offen offset:1024 sc1")
            a(f"buffer_load_dwordx4 v[108:111], v1, {SRD_WS}, s57 offen sc1\nbuffer_load_dwordx4 v[112:115], v1, {SRD_WS}, s57 offen offset:1024 sc1")
            a("s_waitcnt vmcnt(0) lgkmcnt(0)")
            for r in (100, 104, 108, 112): a(f"v_sub_u32 v{r}, s4, v{r}")
            a("v_max_u32 v116, v100, v104\nv_max3_u32 v116, v116, v108, v112\nv_min_u32 v117, v100, v104\nv_min3_u32 v117, v117, v108, v112")
            self.wave_reduce_to_s("v_max_u32", "v116", "s6"); self.wave_reduce_to_s("v_min_u32", "v117", "s7")
            if self.diag == 2: a("s_sub_u32 s6, s6, s7")
            a(f"s_min_u32 s6, s6, 10000\ns_mul_i32 s6, s6, {self.K}\ns_add_u32 s6, s6, s4")
            a.label(Ld)
            a(f"s_memrealtime s[4:5]\ns_waitcnt lgkmcnt(0)\ns_sub_u32 s7, s4, s6\ns_cmp_lt_i32 s7, 0\ns_cbranch_scc1 {Ld}")
        a(f"""s_cmp_lg_u32 s60, 0
s_cbranch_scc1 L_s_exit
s_mov_b64 exec, 1
v_mov_b32 v52, s34
v_mov_b32 v53, s35
v_mov_b32 v54, 0
buffer_store_dwordx2 v[52:53], v54, {SRD_WS}, 0 offen sc1""")

    def ln_tail1(self, mean, var, x, out, t0, sd, rs):
        a = self.a
        self.rbf2(mean, var, mean, var, t0)
        a(f"v_add_f32 {var}, 0x3727c5ac, {var}\nv_sub_f32 {out}, {x}, {mean}")
        self.rbf(var, var)
        a(f"v_sqrt_f32 {sd}, {var}")
        self.rbf(out, out)
        self.rbf(sd, sd)
        a(f"v_rcp_f32 {rs}, {sd}")
        a(f"v_mul_f32 {t0}, {out}, {rs}\nv_fma_f32 {out}, -{t0}, {sd}, {out}\nv_fma_f32 {out}, {out}, {rs}, {t0}")
        self.rbf(out, out)

    def layernorm_tail(self, mean, var, xs, outs, t0, sd, rs):
        a = self.a
        self.rbf2(mean, var, mean, var, t0)
        a(f"v_add_f32 {var}, 0x3727c5ac, {var}")
        self.rbf(var, var)
        a(f"v_sqrt_f32 {sd}, {var}")
        self.rbf(sd, sd)
        a(f"v_rcp_f32 {rs}, {sd}")
        for x, o in zip(xs, outs): a(f"v_sub_f32 {o}, {x}, {mean}")
        self.rbf2(outs[0], outs[1], outs[0], outs[1], t0)
        for o in outs:
            a(f"v_mul_f32 {t0}, {o}, {rs}\nv_fma_f32 {o}, -{t0}, {sd}, {o}\nv_fma_f32 {o}, {o}, {rs}, {t0}")
        self.rbf2(outs[0], outs[1], outs[0], outs[1], t0)

    def tile128x64_load(self, srd, voff, rowstride, lds_base, soff0):
        self.dma_tile(srd, voff, 16, 8 * rowstride, lds_base, soff0)

    def ctl_waves(self):
        a = self.a
        b0 = (lambda: a("s_barrier")) if self.b0 else (lambda: None)
        a("v_lshlrev_b32 v1, 4, v0\ns_sub_u32 s3, s3, 8")
        a(f"s_lshl_b32 s59, s3, 14\ns_add_u32 s59, s59, {STG}")
        a(f"s_lshl_b32 s58, s3, 8\ns_add_u32 s58, s58, {ABUF + 8*256}")
        a("s_cmp_eq_u32 s3, 1\ns_cbranch_scc1 L_c1")
        self.ctl_common()
        b0()
        a("s_cmp_eq_u32 s3, 0\ns_cbranch_scc1 L_c0")
        a("s_cmp_eq_u32 s3, 2\ns_cbranch_scc0 L_c3")
        a(f"v_mov_b32 v2, -1\nv_lshlrev_b32 v3, 2, v0\ns_mov_b64 exec, 0xff\nds_write_b32 v3, v2 offset:{MBUF}\ns_mov_b64 exec, 1\nv_mov_b32 v2, 0\nds_write_b32 v2, v2 offset:{CNT}\nds_write_b32 v2, v2 offset:{TRIG}\nds_write_b32 v2, v2 offset:{ISSUED}\nv_mov_b32 v3, -1\nds_write_b32 v2, v3 offset:{ROLE}\ns_mov_b64 exec, -1")
        self.clear_slots()
        a(f"s_cmp_lt_u32 s2, {G_A2}\ns_cbranch_scc1 L_c_b1\ns_cmp_ge_u32 s2, {G_COL_END}\ns_cbranch_scc1 L_c_b1")
        self.collect()
        a("s_branch L_c_b1")
        a.label("L_c3")
        if self.touch:
            a(f"""v_and_b32 v2, 7, v0
s_lshl_b32 s52, s2, 3
v_add_u32 v2, s52, v2
v_lshlrev_b32 v2, 15, v2
global_load_dword v8, v2, s[{S_V}:{S_V+1}]""")
        a("s_branch L_c_b1")
        a.label("L_c1")
        self.c1()
        a.label("L_c0")
        self.c0()
        a.label("L_c_b1")
        a("s_waitcnt vmcnt(0) lgkmcnt(0)")
        self.epoch_once()
        self.stamp(7)
        a("s_barrier")
        a("s_cmp_eq_u32 s3, 3\ns_cbranch_scc0 L_c_b2")
        a(f"s_mov_b32 s56, {RDY_OFF}\ns_mov_b32 s57, {RDY_OFF + 2048}")
        def issue_r2():
            a(f"buffer_load_dwordx4 v[8:11], v1, {SRD_WS}, s56 offen sc1\nbuffer_load_dwordx4 v[12:15], v1, {SRD_WS}, s56 offen offset:1024 sc1")
            a(f"buffer_load_dwordx4 v[16:19], v1, {SRD_WS}, s57 offen sc1\nbuffer_load_dwordx4 v[20:23], v1, {SRD_WS}, s57 offen offset:1024 sc1")
        self.poll(issue_r2, [8, 12, 16, 20], sleep=16)
        self.lds_spin(TRIG, "v_cmp_ne_u32", "0", 8)
        a(f"""s_mov_b32 s44, s{S_DBG}
s_mov_b32 s45, s{S_DBG+1}
s_mov_b32 s46, 256
s_mov_b32 s47, 0x20000
s_lshr_b32 s57, s2, 3
s_and_b32 s57, s57, 1
s_lshl_b32 s57, s57, 7
v_mov_b32 v15, 1
v_mov_b32 v16, 0
s_mov_b64 exec, 1
buffer_atomic_add v15, v16, {SRD_A}, s57 offen sc0
s_waitcnt vmcnt(0)
v_and_b32 v15, 127, v15
ds_write_b32 v16, v15 offset:{ROLE}
s_mov_b64 exec, -1""")
        a.label("L_c_b2")
        a("s_waitcnt vmcnt(0) lgkmcnt(0)")
        self.role("L_c_fin", "L_c_wo", "L_c_ffn")
        a.label("L_c_fin")
        a("s_add_u32 s3, s3, 8")
        self.finish()
        a.label("L_c_ffn")
        self.ffn_weights()
        a.label("L_c_wo")
        self.wo_wave()

    def clear_slots(self):
        a = self.a
        a(f"""v_mov_b32 v8, -1
v_mov_b32 v9, -1
v_mov_b32 v10, -1
v_mov_b32 v11, -1
s_lshl_b32 s56, s2, 9
s_add_u32 s56, s56, {O_OFF}
s_lshl_b32 s57, s2, 3
s_add_u32 s57, s57, {ML_OFF}
v_mov_b32 v12, 0
s_mov_b32 exec_hi, 0
buffer_store_dwordx4 v[8:11], v1, {SRD_WS}, s56 offen sc1
s_mov_b64 exec, 1
buffer_store_dwordx2 v[8:9], v12, {SRD_WS}, s57 offen sc1
s_mov_b64 exec, -1""")
        a(f"s_lshl_b32 s56, s2, 2\ns_add_u32 s56, s56, {GATE_OFF}\nv_lshlrev_b32 v13, 10, v0\ns_mov_b64 exec, {(1 << self.rg) - 1}\nbuffer_store_dword v8, v13, {SRD_WS}, s56 offen sc1\ns_mov_b64 exec, -1")
        L1 = self.lab("clr"); L2 = self.lab("clr"); L3 = self.lab("clr")
        a(f"s_cmp_ge_u32 s2, 64\ns_cbranch_scc1 {L1}")
        a(f"s_lshl_b32 s56, s2, 8\ns_add_u32 s56, s56, {Y_OFF}\ns_mov_b64 exec, 0xffff")
        for r in range(self.ry):
            a(f"buffer_store_dwordx4 v[8:11], v1, {SRD_WS}, s56 offen sc1")
            if r < self.ry - 1: a("s_add_u32 s56, s56, 16384")
        a("s_mov_b64 exec, -1")
        a.label(L1)
        a(f"s_cmp_lt_u32 s2, {G_A2}\ns_cbranch_scc1 {L3}\ns_cmp_ge_u32 s2, {G_COL_END}\ns_cbranch_scc1 {L3}")
        a(f"s_sub_u32 s56, s2, {G_A2}\ns_lshl_b32 s56, s56, 7\ns_add_u32 s56, s56, {A2_OFF}\ns_mov_b64 exec, 0xff\nbuffer_store_dwordx4 v[8:11], v1, {SRD_WS}, s56 offen sc1\ns_mov_b64 exec, -1")
        a.label(L3)
        a(f"s_cmp_ge_u32 s2, 43\ns_cbranch_scc1 {L2}")
        a(f"""v_lshrrev_b32 v13, 2, v0
v_mul_u32_u24 v13, {F_TILE}, v13
v_and_b32 v14, 3, v0
v_lshl_add_u32 v13, v14, 4, v13
s_lshl_b32 s56, s2, 6
s_add_u32 s56, s56, {F_OFF}
s_add_u32 s57, s56, {16*F_TILE}
buffer_store_dwordx4 v[8:11], v13, {SRD_WS}, s56 offen sc1
buffer_store_dwordx4 v[8:11], v13, {SRD_WS}, s57 offen sc1""")
        a.label(L2)
        a("s_waitcnt vmcnt(0) lgkmcnt(0)")
        self.epoch_once()
        a(f"""v_mov_b32 v16, {"s100" if self.diag else "0"}
v_mov_b32 v17, 0
v_mov_b32 v18, {T0}
v_mov_b32 v19, {T1}
s_lshl_b32 s56, s2, 4
s_add_u32 s56, s56, {RDY_OFF}
s_mov_b64 exec, 1
buffer_store_dwordx4 v[16:19], v12, {SRD_WS}, s56 offen sc1
s_mov_b64 exec, -1""")

    def ffn_weights(self):
        a = self.a
        Lv = self.lab("vec")
        a("s_barrier")
        a(f"s_cmp_eq_u32 s3, 0\ns_cbranch_scc0 {Lv}")
        self.ffn_vectors()
        a.label(Lv)
        self.srd(SRD_A, S_W1, 512 * 2752)
        self.srd(SRD_B, S_W2, 1376 * 1024)
        a(f"""v_lshrrev_b32 v2, 2, v0
v_mul_u32_u24 v2, 2752, v2
v_and_b32 v3, 3, v0
v_lshl_add_u32 v2, v3, 4, v2
s_lshl_b32 s61, s60, 6
v_add_u32 v2, s61, v2
v_lshrrev_b32 v3, 3, v0
s_lshl_b32 s61, s60, 5
v_add_u32 v3, s61, v3
v_lshlrev_b32 v3, 10, v3
v_and_b32 v4, 7, v0
v_lshl_add_u32 v3, v4, 4, v3
s_lshl_b32 s61, s3, 14
s_add_u32 s61, s61, {STG}
s_mul_i32 s62, s3, {128*2752}
s_lshl_b32 s63, s3, 8""")
        a("s_mov_b32 m0, s61")
        for k in range(2):
            for i in range(4):
                a(f"buffer_load_dwordx4 v2, {SRD_A}, s62 offen {self.wflag} lds\ns_add_u32 s62, s62, {16*2752}\ns_add_u32 m0, m0, 1024")
            a("s_mov_b32 s56, s63")
            for i in range(4):
                a(f"buffer_load_dwordx4 v3, {SRD_B}, s56 offen {self.wflag} lds\ns_add_u32 s56, s56, 8192")
                if not (k == 1 and i == 3): a("s_add_u32 m0, m0, 1024")
            a("s_add_u32 s63, s63, 128")
        Lg = self.lab("gate")
        if self.wgate:
            a("s_waitcnt vmcnt(0) lgkmcnt(0)\ns_barrier")
            a(f"s_cmp_eq_u32 s3, 3\ns_cbranch_scc0 L_c_fin")
            a(f"s_and_b32 s56, s60, {self.rg - 1}\ns_lshl_b32 s56, s56, 10\ns_add_u32 s56, s56, {GATE_OFF}")
            self.poll3([(f"buffer_load_dwordx4 v[8:11], v1, {SRD_WS}, s56 offen sc1", range(8, 12), None)], stag=4, sleep=self.slG, depth=self.dG)
            self.stamp(9)
            a("s_barrier")
            a("s_branch L_c_fin")
        else:
            a(f"s_cmp_eq_u32 s3, 3\ns_cbranch_scc0 {Lg}")
            a(f"s_waitcnt vmcnt(0)\ns_and_b32 s56, s60, {self.rg - 1}\ns_lshl_b32 s56, s56, 10\ns_add_u32 s56, s56, {GATE_OFF}")
            self.poll3([(f"buffer_load_dwordx4 v[8:11], v1, {SRD_WS}, s56 offen sc1", range(8, 12), None)], stag=4, sleep=self.slG, depth=self.dG)
            self.stamp(9)
            a.label(Lg)
            a("s_waitcnt vmcnt(0) lgkmcnt(0)\ns_barrier")
            a("s_branch L_c_fin")

    def ctl_common(self):
        a = self.a
        a("s_waitcnt lgkmcnt(0)")
        a(f"s_load_dwordx2 s[34:35], s[{S_WS}:{S_WS+1}], 0")
        self.srd(SRD_WS, S_WS, 0x200000 if self.stamps else 0x100000)
        self.consts()
        a("s_mov_b32 s75, 0")

    def collect(self):
        a = self.a
        a(f"s_sub_u32 s60, s2, {G_A2}\ns_lshl_b32 s56, s60, 11\ns_add_u32 s56, s56, {AP_OFF + G_A2 * 512}")
        a(f"s_lshl_b32 s57, s60, 7\ns_add_u32 s57, s57, {A2_OFF}")
        def issue():
            a(f"buffer_load_dwordx4 v[8:11], v1, {SRD_WS}, s56 offen sc1\nbuffer_load_dwordx4 v[12:15], v1, {SRD_WS}, s56 offen offset:1024 sc1")
        self.poll(issue, [8, 12], sleep=16)
        a("v_add_f32 v16, v8, v12\nv_add_f32 v17, v9, v13")
        self.xor32_add("v16", "v20"); self.xor32_add("v17", "v21")
        a(f"""v_cvt_pk_bf16_f32 v18, v16, v17
v_lshlrev_b32 v19, 2, v0
s_mov_b32 exec_hi, 0
buffer_store_dword v18, v19, {SRD_WS}, s57 offen sc1
s_mov_b64 exec, -1""")
        self.stamp(2)

    def epoch_once(self):
        a = self.a
        L = self.lab("ep")
        a(f"s_cmp_eq_u32 s75, 1\ns_cbranch_scc1 {L}")
        self.epoch()
        a("s_mov_b32 s75, 1")
        a.label(L)

    def c1(self):
        a = self.a
        a(f"s_mov_b32 s39, 0\ns_cmp_lt_u32 s2, {G_A2}\ns_cbranch_scc1 L_unit")
        self.ctl_common()
        if self.b0: a("s_barrier")
        a(f"s_cmp_ge_u32 s2, {G_WO}\ns_cbranch_scc1 L_c_b1")
        Lh = self.lab("hint")
        a("s_waitcnt lgkmcnt(0)")
        self.epoch_once()
        a("v_mov_b32 v9, 0")
        a.label(Lh)
        a(f"""ds_read_b32 v8, v9 offset:{HINT}
s_waitcnt lgkmcnt(0)
v_cmp_eq_u32 vcc, {T0}, v8
s_cbranch_vccnz {Lh}_ok
s_cmp_eq_u32 {SPIN}, 0
s_cbranch_scc1 {Lh}_ok
s_sub_u32 {SPIN}, {SPIN}, 1
s_sleep 8
s_branch {Lh}""")
        a.label(Lh + "_ok")
        a("s_mov_b32 s39, 1")
        a.label("L_unit")
        a("""s_lshr_b32 s61, s2, 2
s_lshl_b32 s61, s61, 7
s_and_b32 s60, s2, 3
s_lshl_b32 s60, s60, 7
v_lshrrev_b32 v4, 3, v0
v_mul_u32_u24 v4, 6144, v4
v_and_b32 v5, 7, v0
v_lshl_add_u32 v4, v5, 4, v4
v_add_u32 v4, s61, v4
v_lshlrev_b32 v5, 2, v0
s_lshl_b32 s56, s60, 1
s_mul_i32 s57, s60, 6144
s_waitcnt lgkmcnt(0)""")
        self.srd(SRD_A, S_WM, 512 * 6144)
        self.srd(SRD_B, S_C, 1024)
        a(f"buffer_load_dword v10, v5, {SRD_B}, s56 offen")
        self.dma_tile(SRD_A, "v4", 16, 8 * 6144, "s59", "s57")
        a("s_cmp_eq_u32 s39, 1\ns_cbranch_scc1 L_unit_go")
        if self.b0: a("s_barrier")
        self.ctl_common()
        a.label("L_unit_go")
        self.tr_addr("v6", 128, "v8", "v9"); a("v_add_u32 v6, s59, v6")
        a("v_lshrrev_b32 v7, 4, v0\nv_lshl_add_u32 v7, v7, 4, s58\nv_lshl_add_u32 v12, v0, 2, s58")
        a("s_waitcnt vmcnt(16)")
        a(f"v_lshlrev_b32 v8, 16, v10\nv_and_b32 v9, {S_HI}, v10")
        a(f"""v_mul_f32 v10, 0xbfb8aa3b, v8
v_mul_f32 v11, 0xbfb8aa3b, v9
v_exp_f32 v10, v10
v_exp_f32 v11, v11
v_add_f32 v10, 1.0, v10
v_add_f32 v11, 1.0, v11
v_min_f32 v10, 0x7f7fffff, v10
v_min_f32 v11, 0x7f7fffff, v11
v_rcp_f32 v13, v10
v_rcp_f32 v14, v11""")
        a("""v_mul_f32 v15, v8, v13
v_mul_f32 v16, v9, v14
v_fma_f32 v17, -v15, v10, v8
v_fma_f32 v18, -v16, v11, v9
v_fma_f32 v17, v17, v13, v15
v_fma_f32 v18, v18, v14, v16
v_cvt_pk_bf16_f32 v10, v17, v18
ds_write_b32 v12, v10
s_waitcnt lgkmcnt(0)""")
        for k in range(4): a(f"ds_read_b128 v[{108+4*k}:{111+4*k}], v7 offset:{64*k}")
        a("s_waitcnt vmcnt(0)")
        self.tr_frags(40, "v6", 0, 128, 4, 4)
        a("s_waitcnt lgkmcnt(0)")
        self.mfma_tiles(124, 108, 40, 4, 4)
        self.epoch_once()
        a(f"""s_lshl_b32 s63, s2, 9
s_add_u32 s63, s63, {AP_OFF}
v_cndmask_b32 v140, v124, v132, {M_G1}
v_cndmask_b32 v141, v128, v136, {M_G1}
v_mov_b32 v142, {T0}
v_mov_b32 v143, {T1}
s_mov_b32 exec_hi, 0
buffer_store_dwordx4 v[140:143], v1, {SRD_WS}, s63 offen sc1
s_mov_b64 exec, -1""")
        self.stamp(1)
        a("s_branch L_c_b1")

    def c0(self):
        a = self.a
        if "noc0" in self.exp: a("s_branch L_c_b1")
        a("s_lshr_b32 s60, s2, 3\ns_and_b32 s61, s2, 7")
        self.srd(SRD_A, S_WQ, 512 * 8192)
        self.srd(SRD_B, S_X, 1024)
        a("""v_lshrrev_b32 v4, 4, v0
s_lshl_b32 s56, s61, 6
v_add_u32 v4, s56, v4
v_lshlrev_b32 v4, 13, v4
v_and_b32 v5, 15, v0
v_lshl_add_u32 v4, v5, 4, v4
s_lshl_b32 s56, s60, 8
v_add_u32 v4, s56, v4""")
        a(f"buffer_load_dwordx4 v[24:27], v1, {SRD_B}, 0 offen")
        a("""v_bfe_u32 v6, v0, 4, 1
v_lshlrev_b32 v6, 5, v6
v_add_u32 v6, v6, v5
s_lshl_b32 s56, s61, 7
v_lshl_add_u32 v7, v6, 1, s56""")
        a(f"buffer_load_ushort v28, v7, {SRD_B}, 0 offen\nbuffer_load_ushort v29, v7, {SRD_B}, 0 offen offset:32")
        self.dma_tile(SRD_A, "v4", 16, 4 * 8192, "s59")
        a("s_waitcnt vmcnt(16)")
        self.stamp(1)
        for e in range(4): a(f"v_lshlrev_b32 v{8+2*e}, 16, v{24+e}\nv_and_b32 v{9+2*e}, {S_HI}, v{24+e}")
        a("""v_add_f32 v16, v8, v9
v_add_f32 v17, v10, v11
v_add_f32 v18, v12, v13
v_add_f32 v19, v14, v15
v_add_f32 v16, v16, v17
v_add_f32 v18, v18, v19
v_add_f32 v16, v16, v18""")
        self.wave_reduce_to_s("v_add_f32", "v16", "s56")
        a("v_mov_b32 v20, s56\nv_mul_f32 v20, 0x3b000000, v20")
        for e in range(8): a(f"v_sub_f32 v{8+e}, v{8+e}, v20")
        a("v_mul_f32 v16, v8, v8")
        for e in range(1, 8): a(f"v_fmac_f32 v16, v{8+e}, v{8+e}")
        self.wave_reduce_to_s("v_add_f32", "v16", "s56")
        a("v_mov_b32 v19, s56\nv_mul_f32 v19, 0x3b000000, v19")
        a("v_lshlrev_b32 v28, 16, v28\nv_lshlrev_b32 v29, 16, v29")
        self.layernorm_tail("v20", "v19", ["v28", "v29"], ["v30", "v31"], "v21", "v22", "v23")
        a("s_waitcnt lgkmcnt(0)")
        self.epoch(); a("s_mov_b32 s75, 1")
        self.tr_addr("v144", 256, "v8", "v9"); a("v_add_u32 v144, s59, v144")
        a("s_waitcnt vmcnt(0)")
        self.tr_frags(40, "v144", 0, 256, 2, 8)
        a(f"""v_lshrrev_b32 v8, 5, v0
v_lshlrev_b32 v8, 14, v8
v_and_b32 v9, 31, v0
v_lshl_add_u32 v8, v9, 4, v8
s_lshl_b32 s56, s61, 11
s_add_u32 s56, s56, {AP_OFF}
v_add_u32 v8, s56, v8
s_waitcnt lgkmcnt(0)""")
        self.stamp(2)
        G = [104, 108, 112, 116]
        if self.hintA:
            self.poll(lambda: a(f"buffer_load_dwordx4 v[116:119], v8, {SRD_WS}, 0 offen offset:1536 sc1"), [116], sleep=self.slA, pre=True)
        def issueA():
            for i in range(4): a(f"buffer_load_dwordx4 v[{G[i]}:{G[i]+3}], v8, {SRD_WS}, 0 offen offset:{512*i} sc1")
        self.poll(issueA, G, sleep=self.slA, pre=True, rslot=8)
        self.stamp(3)
        a(f"v_mov_b32 v8, {T0}\nv_mov_b32 v9, 0\nds_write_b32 v9, v8 offset:{HINT}")
        a("""v_add_f32 v8, v104, v108
v_add_f32 v9, v105, v109
v_add_f32 v10, v112, v116
v_add_f32 v11, v113, v117
v_add_f32 v8, v8, v10
v_add_f32 v9, v9, v11""")
        self.rbf2("v8", "v9", "v8", "v9", "v10")
        a("v_mov_b32 v10, v8\nv_mov_b32 v11, v9\nv_permlane32_swap_b32 v8, v10\nv_permlane32_swap_b32 v9, v11")
        a("v_add_f32 v10, 1.0, v10\nv_add_f32 v11, 1.0, v11")
        self.rbf2("v10", "v11", "v10", "v11", "v12")
        a("v_mul_f32 v10, v30, v10\nv_mul_f32 v11, v31, v11")
        self.rbf2("v10", "v11", "v10", "v11", "v12")
        a("v_add_f32 v10, v10, v8\nv_add_f32 v11, v11, v9\nv_cvt_pk_bf16_f32 v12, v10, v11")
        a("""v_lshl_add_u32 v13, v6, 1, s58
ds_write_b16 v13, v12
ds_write_b16_d16_hi v13, v12 offset:32
v_lshrrev_b32 v14, 4, v0
v_lshl_add_u32 v14, v14, 4, s58
s_waitcnt lgkmcnt(0)
ds_read_b128 v[136:139], v14
ds_read_b128 v[140:143], v14 offset:64
s_waitcnt lgkmcnt(0)""")
        self.mfma_tiles(104, 136, 40, 2, 8)
        a(f"""v_cndmask_b32 v8, v104, v112, {M_G1}
v_cndmask_b32 v9, v108, v116, {M_G1}
v_cndmask_b32 v8, v8, v120, {M_G2}
v_cndmask_b32 v9, v9, v124, {M_G2}
v_cndmask_b32 v8, v8, v128, {M_G3}
v_cndmask_b32 v9, v9, v132, {M_G3}
v_mov_b32 v10, {T0}
v_mov_b32 v11, {T1}
s_lshl_b32 s56, s2, 10
s_add_u32 s56, s56, {B_OFF}
buffer_store_dwordx4 v[8:11], v1, {SRD_WS}, s56 offen sc1""")
        self.stamp(4)
        a(f"s_lshl_b32 s56, s60, 13\ns_add_u32 s56, s56, {B_OFF}\ns_add_u32 s57, s56, 4096")
        G = [104 + 4 * i for i in range(8)]
        if self.hintB:
            a("v_and_b32 v15, 7, v0\nv_lshlrev_b32 v15, 10, v15\nv_add_u32 v15, 1008, v15")
            self.poll(lambda: a(f"buffer_load_dwordx4 v[104:107], v15, {SRD_WS}, s56 offen sc1"), [104], sleep=self.slB, pre=True)
        def issueB():
            for i in range(8):
                a(f"buffer_load_dwordx4 v[{G[i]}:{G[i]+3}], v1, {SRD_WS}, {'s56' if i < 4 else 's57'} offen offset:{1024*(i&3)} sc1")
        self.poll(issueB, G, sleep=self.slB, pre=True, rslot=9)
        self.stamp(5)
        a("""v_add_f32 v8, v104, v108
v_add_f32 v9, v105, v109
v_add_f32 v10, v112, v116
v_add_f32 v11, v113, v117
v_add_f32 v12, v120, v124
v_add_f32 v13, v121, v125
v_add_f32 v14, v128, v132
v_add_f32 v15, v129, v133
v_add_f32 v8, v8, v10
v_add_f32 v9, v9, v11
v_add_f32 v12, v12, v14
v_add_f32 v13, v13, v15
v_add_f32 v8, v8, v12
v_add_f32 v9, v9, v13
v_cvt_pk_bf16_f32 v8, v8, v9""")
        a(f"""v_lshrrev_b32 v9, 4, v0
v_lshlrev_b32 v9, 5, v9
v_add_u32 v9, v9, v5
v_lshlrev_b32 v9, 1, v9
ds_write_b16 v9, v8 offset:{QBUF}
ds_write_b16_d16_hi v9, v8 offset:{QBUF+32}""")
        self.stamp(6)

    def ffn_vectors(self):
        a = self.a
        self.srd(SRD_B, S_X, 1024)
        a(f"buffer_load_dwordx4 v[104:107], v1, {SRD_B}, 0 offen\ns_mov_b32 s56, {A2_OFF}")
        self.poll3([(f"buffer_load_dwordx4 v[{40+4*k}:{43+4*k}], v1, {SRD_WS}, s56 offen offset:{1024*k} sc1", range(40 + 4*k, 44 + 4*k), None) for k in range(4)], stag=4, sleep=4, mask0=8)
        a(f"""v_lshrrev_b32 v5, 3, v0
v_lshlrev_b32 v5, 6, v5
v_bfe_u32 v6, v0, 2, 1
v_lshl_add_u32 v5, v6, 5, v5
v_and_b32 v6, 3, v0
v_lshl_add_u32 v5, v6, 2, v5
v_lshlrev_b32 v5, 2, v5
v_lshlrev_b32 v9, 5, v0
s_waitcnt vmcnt(0)""")
        for e in range(4): a(f"v_lshlrev_b32 v{108+2*e}, 16, v{104+e}\nv_and_b32 v{109+2*e}, {S_HI}, v{104+e}")
        a(f"ds_write_b128 v9, v[108:111] offset:{XN}\nds_write_b128 v9, v[112:115] offset:{XN+16}")
        for k in range(4):
            r = 40 + 4 * k; lo = 120 + 8 * k; hi = lo + 4
            for e in range(4): a(f"v_lshlrev_b32 v{lo+e}, 16, v{r+e}\nv_and_b32 v{hi+e}, {S_HI}, v{r+e}")
            if k == 2:
                for e in range(8): a(f"v_add_f32 v{lo+e}, 1.0, v{lo+e}")
                for e in range(0, 8, 2): self.rbf2(f"v{lo+e}", f"v{lo+e+1}", f"v{lo+e}", f"v{lo+e+1}", "v10")
            base = [GA, SB, CB1, GBN][k]
            a(f"ds_write_b128 v5, v[{lo}:{lo+3}] offset:{base}\nds_write_b128 v5, v[{hi}:{hi+3}] offset:{base+64}")

    def wo_wave(self):
        a = self.a
        if "wod" in self.exp: self.stamp(3)
        a("s_lshr_b32 s61, s60, 3\ns_and_b32 s62, s60, 7")
        a("s_lshl_b32 s63, s61, 2\ns_add_u32 s63, s63, s3")
        a("v_and_b32 v7, 7, v0")
        self.srd(SRD_A, S_WO, 4096 * 1024)
        a("""v_lshrrev_b32 v4, 3, v0
v_lshlrev_b32 v4, 10, v4
v_and_b32 v5, 7, v0
v_lshl_add_u32 v4, v5, 4, v4
s_lshl_b32 s56, s62, 7
v_add_u32 v4, s56, v4
s_lshl_b32 s54, s63, 17""")
        self.tr_addr("v6", 128, "v8", "v9"); a("v_add_u32 v6, s59, v6")
        a(f"""v_lshlrev_b32 v7, 3, v7
s_lshl_b32 s56, s63, 6
s_add_u32 s56, s56, {ML_OFF}
s_lshl_b32 s57, s63, 12
s_add_u32 s57, s57, {O_OFF}
v_bfe_u32 v3, v0, 2, 2
v_lshlrev_b32 v3, 4, v3
v_lshrrev_b32 v5, 4, v0
v_lshl_add_u32 v3, v5, 2, v3
v_and_b32 v5, 3, v0
v_add_u32 v3, v3, v5
v_lshlrev_b32 v3, 3, v3
v_lshlrev_b32 v150, 2, v0
s_lshl_b32 s55, s3, 8
v_add_u32 v151, s55, v150
s_lshl_b32 s55, s60, 8
s_add_u32 s55, s55, {Y_OFF}""")
        self.lds_spin(ISSUED, "v_cmp_eq_u32", "8", 1, reg="v2", addr="v5")
        if "wod" in self.exp: self.stamp(4)
        self.dma_tile(SRD_A, "v4", 16, 8192, "s59", "s54")
        self.stamp(8)
        P = [8, 10, 12, 14, 16, 18, 20, 22]
        items = [(f"buffer_load_dwordx2 v[24:25], v7, {SRD_WS}, s56 offen sc1", [24, 25], None)] + \
                [(f"buffer_load_dwordx2 v[{P[i]}:{P[i]+1}], v3, {SRD_WS}, s57 offen offset:{512*i} sc1", [P[i], P[i] + 1], None) for i in range(8)]
        for txt, regs, m0 in items: a(txt)
        a("s_waitcnt vmcnt(9)")
        self.stamp(9)
        self.tr_frags(40, "v6", 0, 128, 4, 4)
        a("s_waitcnt vmcnt(0)")
        if self.keepm: self.p3_check(items, 8)
        else: self.sentcheck([r for it in items for r in it[1]], "v2")
        Lg = self.lab("gate")
        a(f"s_cbranch_vccz {Lg}_all")
        a.label(Lg)
        a(f"""buffer_load_dwordx2 v[24:25], v7, {SRD_WS}, s56 offen sc1
s_waitcnt vmcnt(0)
v_max_u32 v2, v24, v25
v_cmp_eq_u32 vcc, -1, v2
s_and_b32 s52, vcc_lo, 0xff
s_bcnt1_i32_b32 s52, s52
s_cmp_le_u32 s52, {self.thr}
s_cbranch_scc1 {Lg}_ok
s_cmp_eq_u32 {SPIN}, 0
s_cbranch_scc1 {Lg}_ok
s_sub_u32 {SPIN}, {SPIN}, 1
s_sleep {self.slW}
s_branch {Lg}""")
        a.label(Lg + "_ok")
        self.poll3(items, rslot=2, mask0=8, init=not self.keepm, sync_first=self.keepm)
        a.label(Lg + "_all")
        if self.wgate:
            a(f"s_lshl_b32 s52, s60, 2\ns_add_u32 s52, s52, s3\ns_lshl_b32 s52, s52, 2\ns_add_u32 s52, s52, {GATE_OFF}\nv_lshlrev_b32 v159, 10, v0\ns_mov_b64 exec, {(1 << self.rg) - 1}\nbuffer_store_dword v24, v159, {SRD_WS}, s52 offen sc1\ns_mov_b64 exec, -1")
        a("s_waitcnt lgkmcnt(0)")
        self.stamp(6)
        m, l = "v24", "v25"
        a(f"v_mov_b32 v144, {m}")
        for ctl in ("row_half_mirror", "quad_perm:[2,3,0,1]", "quad_perm:[1,0,3,2]"): self.dpp("v_max_f32", "v144", "v144", "v144", ctl)
        a(f"v_sub_f32 v145, {m}, v144\nv_mul_f32 v145, {LOG2E}, v145\nv_exp_f32 v145, v145\nv_mov_b32 v152, 0\nv_mul_f32 v146, v145, {l}")
        for ctl in ("row_half_mirror", "quad_perm:[2,3,0,1]", "quad_perm:[1,0,3,2]"): self.dpp("v_add_f32", "v146", "v146", "v146", ctl)
        a("v_mov_b32 v153, 0\nv_rcp_f32 v147, v146")
        for j in range(8):
            a(f"v_fmac_f32_dpp v152, v145, v{P[j]} row_newbcast:{j} row_mask:0xf bank_mask:0xf")
            a(f"v_fmac_f32_dpp v153, v145, v{P[j]+1} row_newbcast:{j} row_mask:0xf bank_mask:0xf")
        self.stamp(10)
        a("""v_mul_f32 v154, v152, v147
v_mul_f32 v155, v153, v147
v_fma_f32 v156, -v154, v146, v152
v_fma_f32 v157, -v155, v146, v153
v_fma_f32 v154, v156, v147, v154
v_fma_f32 v155, v157, v147, v155
v_cvt_pk_bf16_f32 v148, v154, v155""")
        for k in range(4):
            for q in range(4): a(f"v_mov_b32_dpp v{108+4*k+q}, v148 row_newbcast:{4*k+q} row_mask:0xf bank_mask:0xf")
        self.mfma_tiles(124, 108, 40, 4, 4)
        a(f"""v_cndmask_b32 v158, v124, v128, {M_G1}
v_cndmask_b32 v158, v158, v132, {M_G2}
v_cndmask_b32 v158, v158, v136, {M_G3}
ds_write_b32 v151, v158 offset:{YP}
s_waitcnt lgkmcnt(0)
s_barrier""")
        a("s_cmp_lg_u32 s3, 0\ns_cbranch_scc1 L_wo_done")
        for w in range(4): a(f"ds_read_b32 v{160+w}, v150 offset:{YP + 256*w}")
        a(f"""s_waitcnt lgkmcnt(0)
v_add_f32 v160, v160, v161
v_add_f32 v162, v162, v163
v_add_f32 v160, v160, v162
buffer_store_dword v160, v150, {SRD_WS}, s55 offen sc1""")
        for r in range(1, self.ry): a(f"s_add_u32 s55, s55, 16384\nbuffer_store_dword v160, v150, {SRD_WS}, s55 offen sc1")
        self.stamp(11)
        a.label("L_wo_done")
        a("s_add_u32 s3, s3, 8")
        self.finish()

def generate(**kw):
    g = Gen(**kw)
    return g.build()

if __name__ == "__main__":
    import argparse
    p = argparse.ArgumentParser()
    p.add_argument("-o", default="k.s"); p.add_argument("-W", type=int, default=3); p.add_argument("--stamps", action="store_true")
    p.add_argument("--nohintA", action="store_true"); p.add_argument("--nohintB", action="store_true"); p.add_argument("--noprefetch", action="store_true")
    p.add_argument("--dbg", type=int, default=0); p.add_argument("--prio", type=int, default=0); p.add_argument("--keepm", action="store_true"); p.add_argument("--sf2", action="store_true"); p.add_argument("--dG", type=int, default=2); p.add_argument("--rg", type=int, default=4); p.add_argument("--slW", type=int, default=2); p.add_argument("--wgate", action="store_true"); p.add_argument("--Wv", type=int, default=0); p.add_argument("--Wz", type=int, default=0); p.add_argument("--jw", type=int, default=64); p.add_argument("--diag", type=int, default=0); p.add_argument("--K", type=int, default=2); p.add_argument("--ry", type=int, default=1); p.add_argument("--d2", type=int, default=2); p.add_argument("--d3", type=int, default=2); p.add_argument("--stag2", type=int, default=8); p.add_argument("--stag3", type=int, default=8); p.add_argument("--slG", type=int, default=2); p.add_argument("--jt", type=int, default=26); p.add_argument("--early", action="store_true"); p.add_argument("--thr", type=int, default=2); p.add_argument("--single", action="store_true"); p.add_argument("--stag", type=int, default=8); p.add_argument("--novf", type=int, default=0); p.add_argument("--jb", type=int, default=31); p.add_argument("--budget", type=int, default=70); p.add_argument("--pfmax", type=int, default=256); p.add_argument("--nob0", action="store_true"); p.add_argument("--notouch", action="store_true"); p.add_argument("--exp", default=""); p.add_argument("--slA", type=int, default=4); p.add_argument("--slB", type=int, default=2); p.add_argument("--kv", default="nt"); p.add_argument("--wflag", default="nt")
    x = p.parse_args()
    open(x.o, "w").write(generate(W=x.W, stamps=x.stamps, hintA=not x.nohintA, hintB=not x.nohintB, prefetch=not x.noprefetch, kvflag=x.kv, wflag=x.wflag, exp=x.exp, slA=x.slA, slB=x.slB, pfmax=x.pfmax, b0=not x.nob0, touch=not x.notouch, dbg=x.dbg, novf=x.novf, jb=x.jb, budget=x.budget, single=x.single, stag=x.stag, thr=x.thr, jt=x.jt, early=x.early, ry=x.ry, d2=x.d2, d3=x.d3, stag2=x.stag2, stag3=x.stag3, slG=x.slG, diag=x.diag, K=x.K, Wv=x.Wv, Wz=x.Wz, jw=x.jw, wgate=x.wgate, dG=x.dG, rg=x.rg, slW=x.slW, keepm=x.keepm, sf2=x.sf2, prio=x.prio))
```

```python
import sys
from asmlib import Asm

NAME = "adaLN_cond__gqa_block_cached__dense_activation_relu__decode_kernel"

RDY_OFF = 0x1000; A2_OFF = 0x9000; ML_OFF = 0xD000; GATE_OFF = 0x18000; Y_OFF = 0x10000; AP_OFF = 0xD0000
B_OFF = 0x20000; O_OFF = 0x60000; F_OFF = 0xA0000; STAMP_OFF = 0x100000
F_TILE = 48 * 64
G_A2 = 64; G_COL = 192; G_COL_END = 224; G_FFN = 96; G_FFN_END = 139; G_WO = 192
CODE_PAD = 24576
QBUF = 0
MBUF = 256
LBUF = 288
STAT = 320
TRIG = 396
ISSUED = 400
ROLE = 392
CNT = 388
HINT = 384
ABUF = 512
OBUF = 4096
YP = 8192
FP = 9216
XN = 10240; GA = XN + 2048; SB = GA + 2048; CB1 = SB + 2048; GBN = CB1 + 2048; X1N = GBN + 2048
STG = 24576
OVF = STG + 32768
S_X, S_K, S_V, S_WQ, S_WO, S_W1, S_W2 = 8, 10, 12, 14, 16, 20, 22
S_C, S_WM, S_OUT, S_DBG, S_WS = 24, 26, 28, 30, 32
S_E = 34; T0, T1 = "s36", "s37"; SPIN = "s38"
SRD_WS = "s[40:43]"; SRD_A = "s[44:47]"; SRD_B = "s[48:51]"
M_B1 = "s[64:65]"; M_B0 = "s[66:67]"; M_G1 = "s[68:69]"; M_G2 = "s[70:71]"; M_G3 = "s[72:73]"
S_HI = "s74"
STAMP0 = 76
RING = 40
LOG2E = "0x3fb8aa3b"; SCALE = "0x3db504f3"

HEADER = """
;
"""

class Gen:
    def __init__(self, W=3, stamps=False, hintA=True, hintB=True, kvflag="nt", prefetch=True, wflag="nt", dbg=False, exp="", slA=4, slB=2, pfmax=256, b0=True, touch=True, novf=0, jb=31, budget=70, single=False, stag=8, thr=2, jt=26, early=False, ry=1, d2=2, d3=2, stag2=8, stag3=8, slG=2, diag=0, K=2, Wv=None, Wz=None, jw=64, wgate=False, dG=2, rg=4, slW=2, keepm=False, sf2=False, prio=0, slC=64, slY=0, slF=0, sf3=False):
        self.a = Asm(); self.W = W; self.stamps = stamps; self.hintA = hintA; self.hintB = hintB
        self.kv = kvflag; self.prefetch = prefetch; self.wflag = wflag; self.uid = 0; self.dbg = dbg; self.exp = exp.split(','); self.slA = slA; self.slB = slB; self.pfmax = pfmax; self.b0 = b0; self.touch = touch; self.novf = novf; self.jb = jb; self.budget = budget; self.single = single; self.stag = stag; self.thr = thr; self.jt = jt; self.early = early; self.ry = ry; self.d2 = d2; self.d3 = d3; self.stag2 = stag2; self.stag3 = stag3; self.slG = slG; self.diag = diag; self.K = K; self.Wv = Wv or W; self.Wz = Wz or self.Wv; self.jw = jw; self.wgate = wgate; self.dG = dG; self.rg = rg; self.slW = slW; self.keepm = keepm; self.sf2 = sf2; self.prio = prio; self.slC = slC; self.slY = slY; self.slF = slF; self.sf3 = sf3
    def lab(self, p):
        self.uid += 1; return f"L_{p}_{self.uid}"
    def stamp(self, i):
        if self.stamps: self.a(f"s_memrealtime s[{STAMP0+2*i}:{STAMP0+2*i+1}]")
    def finish(self):
        a = self.a
        if self.stamps:
            a("s_waitcnt lgkmcnt(0)\ns_mov_b64 exec, -1")
            a("v_mov_b32 v2, 0")
            for i in range(24): a(f"v_writelane_b32 v2, s{STAMP0+i}, {i}")
            a(f"s_mul_i32 s52, s2, 12\ns_add_u32 s52, s52, s3\ns_lshl_b32 s52, s52, 7\ns_add_u32 s52, s52, {STAMP_OFF}")
            a("v_lshlrev_b32 v3, 2, v0\ns_mov_b32 exec_hi, 0")
            a(f"buffer_store_dword v2, v3, {SRD_WS}, s52 offen")
        a("s_endpgm")
    def rbf(self, dst, src):
        self.a(f"v_cvt_pk_bf16_f32 {dst}, {src}, {src}\nv_and_b32 {dst}, {S_HI}, {dst}")
    def rbf2(self, d0, d1, s0, s1, tmp):
        self.a(f"v_cvt_pk_bf16_f32 {tmp}, {s0}, {s1}\nv_lshlrev_b32 {d0}, 16, {tmp}\nv_and_b32 {d1}, {S_HI}, {tmp}")
    def dpp(self, op, d, s0, s1, ctl, rm="0xf", bm="0xf"):
        self.a(f"{op}_dpp {d}, {s0}, {s1} {ctl} row_mask:{rm} bank_mask:{bm}")
    def row_reduce(self, op, v, steps=(8, 4, 2, 1)):
        for k in steps: self.dpp(op, v, v, v, f"row_ror:{k}")
    def wave_reduce_to_s(self, op, v, s):
        self.row_reduce(op, v)
        self.dpp(op, v, v, v, "row_bcast:15", rm="0xa")
        self.dpp(op, v, v, v, "row_bcast:31", rm="0xc")
        self.a(f"v_readlane_b32 {s}, {v}, 63")
    def xor32_add(self, v, t):
        self.a(f"v_mov_b32 {t}, {v}\nv_permlane32_swap_b32 {v}, {t}\nv_add_f32 {v}, {v}, {t}")
    def xor16_add(self, v, t):
        self.a(f"v_mov_b32 {t}, {v}\nv_permlane16_swap_b32 {v}, {t}\nv_add_f32 {v}, {v}, {t}")
    def tagcheck(self, regs, acc, first=True):
        a = self.a
        for r in regs:
            if first:
                a(f"v_xor_b32 {acc}, {T0}, v{r+2}"); first = False
            else:
                a(f"v_bitop3_b32 {acc}, {acc}, {T0}, v{r+2} bitop3:0xf6")
            a(f"v_bitop3_b32 {acc}, {acc}, {T1}, v{r+3} bitop3:0xf6")
    def poll(self, issue, regs, acc="v2", sleep=0, pre=False, rslot=None):
        a = self.a
        if rslot is not None and "rounds" in self.exp: a(f"s_mov_b32 s{STAMP0+2*rslot}, {SPIN}")
        L = self.lab("poll"); D = self.lab("pok")
        a.label(L)
        issue()
        a("s_waitcnt vmcnt(0)")
        self.tagcheck(regs, acc)
        a(f"v_cmp_ne_u32 vcc, 0, {acc}")
        if "nopoll" in self.exp and pre: a(f"s_branch {D}")
        a(f"s_cbranch_vccz {D}")
        a(f"s_cmp_eq_u32 {SPIN}, 0")
        a(f"s_cbranch_scc1 {D}")
        a(f"s_sub_u32 {SPIN}, {SPIN}, 1")
        if sleep: a(f"s_sleep {sleep}")
        a(f"s_branch {L}")
        a.label(D)
        if rslot is not None and "rounds" in self.exp: a(f"s_sub_u32 s{STAMP0+2*rslot}, s{STAMP0+2*rslot}, {SPIN}\ns_mov_b32 s{STAMP0+2*rslot+1}, 0")
    def sentcheck(self, regs, acc):
        a = self.a; regs = list(regs)
        if len(regs) == 1: a(f"v_cmp_eq_u32 vcc, -1, v{regs[0]}"); return
        if len(regs) == 2: a(f"v_max_u32 {acc}, v{regs[0]}, v{regs[1]}"); rest = []
        else: a(f"v_max3_u32 {acc}, v{regs[0]}, v{regs[1]}, v{regs[2]}"); rest = regs[3:]
        while rest:
            if len(rest) >= 2: a(f"v_max3_u32 {acc}, {acc}, v{rest[0]}, v{rest[1]}"); rest = rest[2:]
            else: a(f"v_max_u32 {acc}, {acc}, v{rest[0]}"); rest = []
        a(f"v_cmp_eq_u32 vcc, -1, {acc}")
    def poll2(self, issue, regs, nload, consume, acc="v2", rslot=None):
        a = self.a
        if rslot is not None and "rounds" in self.exp: a(f"s_mov_b32 s{STAMP0+2*rslot}, {SPIN}")
        L = self.lab("p2"); OA = L + "_a"; OB = L + "_b"; J = L + "_j"
        if self.single:
            a.label(L); issue(0); a("s_waitcnt vmcnt(0)"); self.sentcheck(regs(0), acc)
            a(f"s_cbranch_vccz {OA}\ns_cmp_eq_u32 {SPIN}, 0\ns_cbranch_scc1 {OA}\ns_sub_u32 {SPIN}, {SPIN}, 1\ns_branch {L}")
            a.label(OA); consume(0)
        else:
            issue(0); a(f"s_sleep {self.stag}"); issue(1)
            a.label(L)
            a(f"s_waitcnt vmcnt({nload})"); self.sentcheck(regs(0), acc); a(f"s_cbranch_vccz {OA}")
            issue(0)
            a(f"s_waitcnt vmcnt({nload})"); self.sentcheck(regs(1), acc); a(f"s_cbranch_vccz {OB}")
            issue(1)
            a(f"s_cmp_eq_u32 {SPIN}, 0\ns_cbranch_scc1 {OA}\ns_sub_u32 {SPIN}, {SPIN}, 1\ns_branch {L}")
            a.label(OB); consume(1); a(f"s_branch {J}")
            a.label(OA); consume(0)
            a.label(J)
        if rslot is not None and "rounds" in self.exp: a(f"s_sub_u32 s{STAMP0+2*rslot}, s{STAMP0+2*rslot}, {SPIN}\ns_mov_b32 s{STAMP0+2*rslot+1}, 0")
    def p3_issue(self, items, mask0):
        a = self.a
        for i, (txt, regs, m0) in enumerate(items): a(f"s_mov_b64 exec, s[{mask0+2*i}:{mask0+2*i+1}]\n{txt}")
        a("s_mov_b64 exec, -1")
    def p3_check(self, items, mask0):
        a = self.a; n = len(items)
        M = lambda i: f"s[{mask0+2*i}:{mask0+2*i+1}]"
        for i, (txt, regs, m0) in enumerate(items):
            regs = list(regs)
            if len(regs) == 1: a(f"v_cmp_eq_u32 {M(i)}, -1, v{regs[0]}")
            else:
                if len(regs) == 2: a(f"v_max_u32 v2, v{regs[0]}, v{regs[1]}")
                else: a(f"v_max3_u32 v2, v{regs[0]}, v{regs[1]}, v{regs[2]}\nv_max_u32 v2, v2, v{regs[3]}")
                a(f"v_cmp_eq_u32 {M(i)}, -1, v2")
        a(f"s_or_b64 vcc, {M(0)}, {M(1)}" if n > 1 else f"s_mov_b64 vcc, {M(0)}")
        for i in range(2, n): a(f"s_or_b64 vcc, vcc, {M(i)}")
    def poll3(self, items, rslot=None, stag=None, sleep=0, mask0=8, depth=2, init=True, sync_first=False):
        a = self.a; n = len(items)
        M = lambda i: f"s[{mask0+2*i}:{mask0+2*i+1}]"
        if rslot is not None and "rounds" in self.exp: a(f"s_mov_b32 s{STAMP0+2*rslot}, {SPIN}")
        if init:
            for i, (txt, regs, m0) in enumerate(items):
                a(f"s_mov_b64 {M(i)}, {m0 if m0 is not None else -1}")
        L = self.lab("p3"); D = L + "_d"
        if self.single: depth = 1
        if sync_first and depth > 1:
            self.p3_issue(items, mask0)
            a("s_waitcnt vmcnt(0)")
            self.p3_check(items, mask0)
            a(f"s_cbranch_vccz {D}")
        for k in range(depth - 1): self.p3_issue(items, mask0); a(f"s_sleep {self.stag if stag is None else stag}")
        a.label(L)
        self.p3_issue(items, mask0)
        a(f"s_waitcnt vmcnt({n * (depth - 1)})")
        self.p3_check(items, mask0)
        a(f"s_cbranch_vccz {D}\ns_cmp_eq_u32 {SPIN}, 0\ns_cbranch_scc1 {D}\ns_sub_u32 {SPIN}, {SPIN}, 1")
        if sleep: a(f"s_sleep {sleep}")
        a(f"s_branch {L}")
        a.label(D)
        if rslot is not None and "rounds" in self.exp: a(f"s_sub_u32 s{STAMP0+2*rslot}, s{STAMP0+2*rslot}, {SPIN}\ns_mov_b32 s{STAMP0+2*rslot+1}, 0")
    def lds_spin(self, off, cmp_op, val, sleep, reg="v2", addr="v3"):
        a = self.a; L = self.lab("ls")
        a(f"v_mov_b32 {addr}, 0")
        a.label(L)
        a(f"""ds_read_b32 {reg}, {addr} offset:{off}
s_waitcnt lgkmcnt(0)
{cmp_op} vcc, {val}, {reg}
s_cbranch_vccnz {L}_ok
s_cmp_eq_u32 {SPIN}, 0
s_cbranch_scc1 {L}_ok
s_sub_u32 {SPIN}, {SPIN}, 1
s_sleep {sleep}
s_branch {L}""")
        a.label(L + "_ok")
    def srd(self, srd, base, size, add=None):
        n = int(srd[2:srd.index(':')])
        if add is None: self.a(f"s_mov_b32 s{n}, s{base}\ns_mov_b32 s{n+1}, s{base+1}")
        else: self.a(f"s_add_u32 s{n}, s{base}, {add}\ns_addc_u32 s{n+1}, s{base+1}, 0")
        self.a(f"s_mov_b32 s{n+2}, {size}\ns_mov_b32 s{n+3}, 0x20000")
    def consts(self):
        a = self.a
        a(f"s_mov_b32 {S_HI}, 0xffff0000\ns_mov_b32 {SPIN}, 0x40000")
        a("s_mov_b32 s64, 0xcccccccc\ns_mov_b32 s65, 0xcccccccc\ns_mov_b32 s66, 0xaaaaaaaa\ns_mov_b32 s67, 0xaaaaaaaa")
        a("s_mov_b32 s68, 0xffff0000\ns_mov_b32 s69, 0\ns_mov_b32 s70, 0\ns_mov_b32 s71, 0xffff\ns_mov_b32 s72, 0\ns_mov_b32 s73, 0xffff0000")
    def epoch(self):
        self.a(f"s_add_u32 s34, s34, 1\ns_addc_u32 s35, s35, 0\ns_xor_b32 {T0}, s34, 0x5bd1e995\ns_xor_b32 {T1}, s35, 0x9e3779b9")
    def dma_tile(self, srd, voff, n, step, lds_base, soff0="0"):
        a = self.a
        a(f"s_mov_b32 s53, {soff0}\ns_mov_b32 m0, {lds_base}")
        for i in range(n):
            a(f"buffer_load_dwordx4 {voff}, {srd}, s53 offen {self.wflag} lds")
            if i < n - 1: a(f"s_add_u32 s53, s53, {step}\ns_add_u32 m0, m0, 1024")
    def tr_addr(self, dst, rowbytes, t0, t1):
        sh = rowbytes.bit_length() - 1
        self.a(f"""v_lshrrev_b32 {t0}, 4, v0
v_bfe_u32 {t1}, v0, 2, 2
v_lshl_add_u32 {t0}, {t0}, 3, {t1}
v_lshlrev_b32 {t0}, {sh}, {t0}
v_and_b32 {t1}, 3, v0
v_lshl_add_u32 {dst}, {t1}, 3, {t0}""")
    def tr_frags(self, base_reg, vaddr, lds_base, rowbytes, nsteps, ntiles):
        for s in range(nsteps):
            for t in range(ntiles):
                r = base_reg + 4 * (s * ntiles + t)
                for h in range(2):
                    off = lds_base + (32 * s + 4 * h) * rowbytes + t * 32
                    self.a(f"ds_read_b64_tr_b16 v[{r+2*h}:{r+2*h+1}], {vaddr} offset:{off}")
    def mfma_tiles(self, dbase, abase, bbase, nsteps, ntiles, zero_first=True):
        for s in range(nsteps):
            for t in range(ntiles):
                d = f"v[{dbase+4*t}:{dbase+4*t+3}]"
                c = "0" if (s == 0 and zero_first) else d
                b = bbase + 4 * (s * ntiles + t)
                self.a(f"v_mfma_f32_16x16x32_bf16 {d}, v[{abase+4*s}:{abase+4*s+3}], v[{b}:{b+3}], {c}")

    def build(self):
        a = self.a; W = self.W
        for l in HEADER.strip("\n").split("\n"): a.raw(l)
        a.raw(f"; @launch grid=(256,1,1) block=(768,1,1) lds={max(STG + 65536, OVF + 8192 * self.novf)}")
        a.raw('.amdgcn_target "amdgcn-amd-amdhsa--gfx950"')
        a.raw(".text"); a.raw(f".globl {NAME}"); a.raw(".p2align 8"); a.raw(f".type {NAME},@function"); a.raw(f"{NAME}:")
        a("s_cmp_ge_u32 s2, 256\ns_cbranch_scc1 L_exit")
        self.stamp(0)
        if self.diag: a("s_memrealtime s[100:101]")
        a("""s_load_dwordx16 s[8:23], s[0:1], 0
s_load_dwordx8 s[24:31], s[0:1], 64
s_load_dwordx2 s[32:33], s[0:1], 96
v_lshrrev_b32 v1, 6, v0
v_and_b32 v0, 63, v0
v_readfirstlane_b32 s3, v1""")
        if self.prefetch:
            a(f"s_cmp_lg_u32 s3, 11\ns_cbranch_scc1 L_nopf")
            if self.pfmax < 256: a(f"s_cmp_ge_u32 s2, {self.pfmax}\ns_cbranch_scc1 L_nopf")
            a("s_getpc_b64 s[52:53]")
            a.label("L_pc")
            a(f"s_sub_u32 s52, s52, L_pc-{NAME}\ns_subb_u32 s53, s53, 0\nv_lshlrev_b32 v2, 7, v0")
            for i in range(CODE_PAD // 8192):
                a(f"global_load_dword v{4+i}, v2, s[52:53]")
                if i < CODE_PAD // 8192 - 1: a("v_add_u32 v2, 0x2000, v2")
            a.label("L_nopf")
        a("s_cmp_ge_u32 s3, 8\ns_cbranch_scc1 L_ctl")
        self.stream_wave()
        a.label("L_ctl")
        self.ctl_waves()
        a.label("L_exit")
        a("s_endpgm")
        if self.prefetch: a.raw(f".fill ({CODE_PAD} - (. - {NAME})) / 4, 4, 0xbf800000")
        a.raw('.section .rodata,"a"'); a.raw(".p2align 6"); a.raw(f".amdhsa_kernel {NAME}")
        for l in ["  .amdhsa_next_free_vgpr 168", "  .amdhsa_next_free_sgpr 102", "  .amdhsa_accum_offset 168",
                  "  .amdhsa_group_segment_fixed_size 0", "  .amdhsa_kernarg_size 104", "  .amdhsa_user_sgpr_count 2",
                  "  .amdhsa_user_sgpr_kernarg_segment_ptr 1", "  .amdhsa_system_sgpr_workgroup_id_x 1", ".end_amdhsa_kernel"]:
            a.raw(l)
        return a.text()

    def stream_wave(self):
        a = self.a; W = self.W; kv = self.kv; n = self.novf
        ring = lambda j: RING + 4 * j
        a("""s_lshl_b32 s52, s2, 3
s_add_u32 s52, s52, s3
s_lshl_b32 s52, s52, 15
v_lshlrev_b32 v1, 4, v0
s_lshl_b32 s54, s3, 2
s_add_u32 s54, s54, s2
s_and_b32 s54, s54, 31
s_lshl_b32 s54, s54, 10
s_waitcnt lgkmcnt(0)""")
        if "karg" in self.exp: self.stamp(9)
        self.srd(SRD_A, S_K, 32768, "s52")
        if self.b0: a("s_barrier")
        st = dict(issued=0, known=-1)
        def issue():
            i = st["issued"]
            if i < 32:
                r = ring(i); a(f"buffer_load_dwordx4 v[{r}:{r+3}], v1, {SRD_A}, s54 offen {kv}")
            elif i < 32 + n:
                a(f"buffer_load_dwordx4 v1, {SRD_B}, s54 offen {kv} lds")
            else:
                r = ring(i - 32 - n); a(f"buffer_load_dwordx4 v[{r}:{r+3}], v1, {SRD_B}, s54 offen {kv}")
            a("s_add_u32 s54, s54, 1024\ns_and_b32 s54, s54, 0x7fff")
            if 32 <= i < 31 + n: a("s_add_u32 m0, m0, 1024")
            st["issued"] = i + 1
        def tick():
            i = st["issued"]
            Wc = W if i < 32 + n else (self.Wv if i < self.jw else self.Wz)
            if i >= Wc and st["known"] < i - Wc:
                a(f"s_waitcnt vmcnt({Wc-1})"); st["known"] = i - Wc
            issue()
        def need(idx):
            if st["known"] < idx:
                a(f"s_waitcnt vmcnt({st['issued'] - 1 - idx})"); st["known"] = idx
        for j in range(W): issue()
        a(f"s_load_dwordx2 s[34:35], s[{S_WS}:{S_WS+1}], 0")
        self.srd(SRD_B, S_V, 32768, "s52")
        self.srd(SRD_WS, S_WS, 0x200000 if self.stamps else 0x100000)
        self.consts()
        if n:
            a(f"s_mul_i32 s57, s3, {n*1024}\ns_add_u32 s57, s57, {OVF}\ns_mov_b32 m0, s57\nv_add_u32 v3, s57, v1")
        while st["issued"] < 32 + n:
            j = st["issued"]
            tick()
            if j == W: self.stamp(11)
            if j == W + 1:
                a("s_waitcnt lgkmcnt(0)"); self.epoch()
        self.stamp(1)
        if self.stamps: a(f"s_mov_b32 s{STAMP0+12}, 0\ns_mov_b32 s{STAMP0+13}, 0")
        a("v_and_b32 v2, 15, v0\nv_lshlrev_b32 v2, 4, v2")
        a("s_barrier")
        self.stamp(2)
        a(f"ds_read_b128 v[4:7], v2 offset:{QBUF}\ns_waitcnt lgkmcnt(0)")
        if self.prio:
            Lp = self.lab("pr"); a(f"s_cmp_ge_u32 s3, 4\ns_cbranch_scc0 {Lp}\ns_setprio 1"); a.label(Lp)
        t = [10, 11, 12, 13]; ra, rb = 14, 15; u = [16, 17, 18, 19]; x, y = 20, 21; S = [8, 9]
        def group(k):
            need(4 * k + 3)
            js = [4 * k + b for b in range(4)]
            for e in range(4):
                for b in range(4):
                    c = "0" if e == 0 else f"v{t[b]}"
                    a(f"v_dot2_f32_bf16 v{t[b]}, v{ring(js[b])+e}, v{4+e}, {c}")
            self.dpp("v_add_f32", f"v{ra}", f"v{t[0]}", f"v{t[0]}", "row_ror:8", bm="0x3")
            self.dpp("v_add_f32", f"v{rb}", f"v{t[2]}", f"v{t[2]}", "row_ror:8", bm="0x3")
            self.dpp("v_add_f32", f"v{ra}", f"v{t[1]}", f"v{t[1]}", "row_ror:8", bm="0xc")
            self.dpp("v_add_f32", f"v{rb}", f"v{t[3]}", f"v{t[3]}", "row_ror:8", bm="0xc")
            uk = u[k & 3]
            self.dpp("v_add_f32", f"v{uk}", f"v{ra}", f"v{ra}", "row_half_mirror", bm="0x5")
            self.dpp("v_add_f32", f"v{uk}", f"v{rb}", f"v{rb}", "row_half_mirror", bm="0xa")
            if (k & 3) == 3:
                def merge(dst, p, q, ctl, mask):
                    self.dpp("v_add_f32", f"v{x}", f"v{p}", f"v{p}", ctl)
                    self.dpp("v_add_f32", f"v{y}", f"v{q}", f"v{q}", ctl)
                    a(f"v_cndmask_b32 v{dst}, v{x}, v{y}, {mask}")
                merge(u[0], u[0], u[1], "quad_perm:[2,3,0,1]", M_B1)
                merge(u[2], u[2], u[3], "quad_perm:[2,3,0,1]", M_B1)
                merge(S[k >> 2], u[0], u[2], "quad_perm:[1,0,3,2]", M_B0)
        acc = list(range(10, 18)); un = list(range(18, 26)); pb = 26
        def softmax():
            if self.prio == 2: a("s_setprio 0")
            self.stamp(3)
            self.rbf2("v8", "v9", "v8", "v9", "v10")
            a(f"v_mul_f32 v8, {SCALE}, v8\nv_mul_f32 v9, {SCALE}, v9")
            self.rbf2("v8", "v9", "v8", "v9", "v10")
            a("v_max_f32 v10, v8, v9")
            self.wave_reduce_to_s("v_max_f32", "v10", "s55")
            a(f"""v_subrev_f32 v8, s55, v8
v_subrev_f32 v9, s55, v9
v_mul_f32 v8, {LOG2E}, v8
v_mul_f32 v9, {LOG2E}, v9
v_exp_f32 v8, v8
v_exp_f32 v9, v9
v_mov_b32 v11, s55
s_lshl_b32 s56, s3, 2
v_mov_b32 v12, s56
s_mov_b64 exec, 1
ds_write_b32 v12, v11 offset:{MBUF}
s_mov_b64 exec, -1
v_add_f32 v10, v8, v9""")
            self.wave_reduce_to_s("v_add_f32", "v10", "s56")
            for e in acc: a(f"v_mov_b32 v{e}, 0")
        def lane_of(j):
            jj = j & 15; ga_, b = jj >> 2, jj & 3
            return ((b & 1) << 3) | ((b >> 1) << 2) | ((ga_ & 1) << 1) | (ga_ >> 1)
        TQ = [28, 32]
        def lds_read(j):
            need(32 + j)
            r = TQ[j & 1]
            a(f"ds_read_b128 v[{r}:{r+3}], v3 offset:{1024*j}")
        def cu_max():
            L = self.lab("mx")
            a("v_mov_b32 v27, 0")
            a.label(L)
            a(f"""ds_read_b128 v[28:31], v27 offset:{MBUF}
ds_read_b128 v[32:35], v27 offset:{MBUF+16}
s_waitcnt lgkmcnt(0)
v_max3_u32 v36, v28, v29, v30
v_max3_u32 v36, v36, v31, v32
v_max3_u32 v36, v36, v33, v34
v_max_u32 v36, v36, v35
v_cmp_eq_u32 vcc, -1, v36
s_cbranch_vccz {L}_ok
s_cmp_eq_u32 {SPIN}, 0
s_cbranch_scc1 {L}_ok
s_sub_u32 {SPIN}, {SPIN}, 1
s_branch {L}""")
            a.label(L + "_ok")
            a(f"""v_max3_f32 v36, v28, v29, v30
v_max3_f32 v36, v36, v31, v32
v_max3_f32 v36, v36, v33, v34
v_max_f32 v36, v36, v35
v_sub_f32 v37, s55, v36
v_mul_f32 v37, {LOG2E}, v37
v_exp_f32 v37, v37""")
        def consume(j):
            if j < n:
                if j == 0: lds_read(0)
                a("s_waitcnt lgkmcnt(0)")
                if j + 1 < n: lds_read(j + 1)
                r = TQ[j & 1]
            else:
                need(32 + j)
                r = ring(j - n)
            if j == max(20, n):
                cu_max()
                a(f"""v_mov_b32 v38, 1
v_and_b32 v2, 15, v0
v_lshrrev_b32 v3, 4, v0
v_lshl_add_u32 v2, v2, 2, v3
v_lshlrev_b32 v2, 3, v2
s_lshl_b32 s57, s3, 9
v_add_u32 v2, s57, v2
s_lshl_b32 s57, s3, 2
v_mov_b32 v3, s57
v_mul_f32 v39, s56, v37
ds_write_b32 v3, v39 offset:{LBUF}
v_lshlrev_b32 v39, 3, v0
s_lshl_b32 s61, s2, 9
s_add_u32 s61, s61, {O_OFF}
s_lshl_b32 s62, s2, 3
s_add_u32 s62, s62, {ML_OFF}
s_lshl_b32 s63, s2, 2
s_add_u32 s63, s63, {GATE_OFF}
v_lshlrev_b32 v3, 10, v0""")
            if j == max(20, n, self.jt):
                a(f"ds_write_b32 v27, v38 offset:{TRIG}")
            a(f"v_mov_b32_dpp v{pb}, v{8 + (j >> 4)} row_newbcast:{lane_of(j)} row_mask:0xf bank_mask:0xf")
            for e in range(4):
                a(f"v_lshlrev_b32 v{un[2*e]}, 16, v{r+e}\nv_and_b32 v{un[2*e+1]}, {S_HI}, v{r+e}")
            for e in range(8):
                a(f"v_fmac_f32 v{acc[e]}, v{pb}, v{un[e]}")
        work = [("G", k, 30) for k in range(8)] + [("S", 0, 80)] + [("C", j, 20) for j in range(32)]
        groups_done = 0; consumed = 0
        def can_issue():
            i = st["issued"]
            if i >= 64: return False
            slot = i - 32 - n
            return slot < 0 or groups_done > slot // 4
        BUDGET = self.budget
        while work:
            issued_now = False
            if can_issue():
                tick(); issued_now = True
                if st["issued"] == 64 and self.early:
                    assert consumed > max(20, n)
                    a(f"s_mov_b64 exec, 1\nds_add_u32 v27, v38 offset:{ISSUED}\ns_mov_b64 exec, -1")
            cost = 0
            while work and (cost < BUDGET or not can_issue()):
                kind, k, c = work[0]
                if kind == "C":
                    req = 32 + min(k + 1, n - 1) if k < n else 32 + k
                    if can_issue() and st["known"] < req: break
                work.pop(0); cost += c
                if kind == "G": group(k); groups_done = k + 1
                elif kind == "S": softmax()
                else: consume(k); consumed = k + 1
        assert st["issued"] == 64
        self.stamp(4)
        for e in range(4): a(f"v_permlane32_swap_b32 v{acc[e]}, v{acc[e+4]}")
        for e in range(4): a(f"v_add_f32 v{acc[e]}, v{acc[e]}, v{acc[e+4]}")
        for e in range(2): a(f"v_permlane16_swap_b32 v{acc[e]}, v{acc[e+2]}")
        for e in range(2): a(f"v_add_f32 v{acc[e]}, v{acc[e]}, v{acc[e+2]}")
        a(f"""v_mul_f32 v10, v10, v37
v_mul_f32 v11, v11, v37
v_mov_b32 v15, 1
ds_write_b64 v2, v[10:11] offset:{OBUF}
s_mov_b64 exec, 1
ds_add_rtn_u32 v15, v27, v15 offset:{CNT}
s_mov_b64 exec, -1
s_waitcnt lgkmcnt(0)
v_readfirstlane_b32 s57, v15""")
        self.stamp(5)
        a("s_cmp_lg_u32 s57, 7\ns_cbranch_scc1 L_s_pub_done")
        for w in range(8): a(f"ds_read_b64 v[{40+2*w}:{41+2*w}], v39 offset:{OBUF+512*w}")
        a(f"ds_read_b128 v[56:59], v27 offset:{LBUF}\nds_read_b128 v[60:63], v27 offset:{LBUF+16}\nv_mov_b32 v68, v36")
        a("s_waitcnt lgkmcnt(2)")
        a("""v_add_f32 v64, v40, v42
v_add_f32 v65, v41, v43
v_add_f32 v72, v44, v46
v_add_f32 v73, v45, v47
v_add_f32 v74, v48, v50
v_add_f32 v75, v49, v51
v_add_f32 v76, v52, v54
v_add_f32 v77, v53, v55
v_add_f32 v64, v64, v72
v_add_f32 v65, v65, v73
v_add_f32 v74, v74, v76
v_add_f32 v75, v75, v77
v_add_f32 v64, v64, v74
v_add_f32 v65, v65, v75""")
        a(f"buffer_store_dwordx2 v[64:65], v39, {SRD_WS}, s61 offen sc1")
        a("""s_waitcnt lgkmcnt(0)
v_add_f32 v56, v56, v57
v_add_f32 v58, v58, v59
v_add_f32 v60, v60, v61
v_add_f32 v62, v62, v63
v_add_f32 v56, v56, v58
v_add_f32 v60, v60, v62
v_add_f32 v69, v56, v60
s_mov_b64 exec, 1""")
        a(f"buffer_store_dwordx2 v[68:69], v27, {SRD_WS}, s62 offen sc1")
        if not self.wgate: a(f"s_mov_b64 exec, {(1 << self.rg) - 1}\nbuffer_store_dword v36, v3, {SRD_WS}, s63 offen sc1")
        a("s_mov_b64 exec, -1")
        if not self.early: a(f"v_mov_b32 v15, 8\nds_write_b32 v27, v15 offset:{ISSUED}")
        self.stamp(6)
        a.label("L_s_pub_done")
        self.role("L_s_exit", "L_s_exit", "L_s_ffn", tick=True)
        a.label("L_s_ffn")
        a("s_barrier")
        self.ffn_wave()
        a.label("L_s_exit")
        self.finish()

    def role(self, l_none, l_wo, l_ffn, tick=False):
        a = self.a
        self.lds_spin(ROLE, "v_cmp_ne_u32", "-1", 2)
        a(f"""s_lshr_b32 s57, s2, 3
s_and_b32 s57, s57, 1
v_readfirstlane_b32 s56, v2
{"s_mov_b32 s%d, s56" % (STAMP0 + 22) if (self.stamps and tick) else ""}
{"s_mov_b32 s%d, 0" % (STAMP0 + 23) if (self.stamps and tick) else ""}
s_lshl_b32 s60, s57, 5
s_add_u32 s60, s60, s56
s_cmp_lt_u32 s56, 32
s_cbranch_scc1 {l_wo}
s_sub_u32 s60, 54, s57
s_cmp_ge_u32 s56, s60
s_cbranch_scc1 {l_none}
s_mul_i32 s60, s57, 22
s_add_u32 s60, s60, s56
s_sub_u32 s60, s60, 32
s_branch {l_ffn}""")

    def ffn_wave(self):
        a = self.a
        a(f"s_lshl_b32 s59, s3, 13\ns_add_u32 s59, s59, {STG}")
        a(f"""v_lshrrev_b32 v4, 4, v0
v_lshlrev_b32 v4, 3, v4
v_and_b32 v5, 7, v0
v_add_u32 v4, v4, v5
v_mov_b32 v30, v4
v_bfe_u32 v5, v0, 3, 1
v_lshl_add_u32 v4, v5, 5, v4
s_lshl_b32 s61, s3, 6
v_add_u32 v5, s61, v4
v_lshlrev_b32 v5, 2, v5
v_lshlrev_b32 v30, 2, v30
v_lshlrev_b32 v8, 2, v4
s_lshl_b32 s61, s3, 8
v_add_u32 v8, s61, v8""")
        self.tr_addr("v6", 64, "v9", "v10"); a("v_add_u32 v6, s59, v6")
        self.tr_addr("v7", 128, "v9", "v10"); a("v_add_u32 v7, s59, v7")
        a(f"""v_and_b32 v31, 31, v0
v_lshlrev_b32 v31, 2, v31
s_lshl_b32 s61, s3, 7
v_add_u32 v31, s61, v31
s_lshl_b32 s61, s3, 3
v_mov_b32 v32, s61
v_and_b32 v33, 7, v0
v_lshlrev_b32 v33, 3, v33
v_mov_b32 v34, 0
v_lshrrev_b32 v35, 4, v0
s_lshl_b32 s61, s3, 2
v_add_u32 v35, s61, v35
v_mul_u32_u24 v35, {F_TILE}, v35
v_and_b32 v36, 15, v0
v_lshl_add_u32 v35, v36, 2, v35
s_lshl_b32 s63, s60, 6
s_add_u32 s63, s63, {F_OFF}
s_and_b32 s52, s60, {self.ry - 1}
s_lshl_b32 s52, s52, 14
s_add_u32 s52, s52, {Y_OFF}
s_add_u32 s53, s52, 4096
s_add_u32 s54, s52, 8192
s_add_u32 s55, s52, 12288
s_barrier""")
        self.stamp(7)
        a(f"ds_read_b32 v40, v5 offset:{XN}\nds_read_b32 v41, v5 offset:{GA}\nds_read_b32 v42, v5 offset:{SB}\nds_read_b32 v43, v5 offset:{CB1}")
        B1f, B2f = 64, 80
        self.tr_frags(B1f, "v6", 0, 64, 2, 2)
        for t in range(4):
            for h in range(2):
                a(f"ds_read_b64_tr_b16 v[{B2f+4*t+2*h}:{B2f+4*t+2*h+1}], v7 offset:{4096 + 4*h*128 + t*32}")
        a("s_waitcnt lgkmcnt(0)")
        if self.wgate: a("s_barrier")
        if self.slY: a(f"s_sleep {self.slY}")
        r = 96
        self.poll3([(f"buffer_load_dword v{r+i}, v8, {SRD_WS}, s{52 + (i >> 1)} offen offset:{2048*(i&1)} sc1", [r + i], None) for i in range(8)], rslot=1, depth=self.d2, stag=self.stag2, sync_first=self.sf2)
        a(f"""v_add_f32 v10, v{r}, v{r+1}
v_add_f32 v11, v{r+2}, v{r+3}
v_add_f32 v12, v{r+4}, v{r+5}
v_add_f32 v13, v{r+6}, v{r+7}
v_add_f32 v10, v10, v11
v_add_f32 v12, v12, v13
v_add_f32 v10, v10, v12""")
        self.stamp(8)
        self.rbf("v10", "v10")
        a("v_mul_f32 v10, v41, v10"); self.rbf("v10", "v10")
        a("v_add_f32 v10, v40, v10"); self.rbf("v10", "v10")
        a(f"v_readfirstlane_b32 s61, v10\nds_write_b32 v5, v10 offset:{X1N}\nv_subrev_f32 v12, s61, v10\nv_mul_f32 v13, v12, v12")
        for k in (8, 4, 2, 1):
            self.dpp("v_add_f32", "v12", "v12", "v12", f"row_ror:{k}"); self.dpp("v_add_f32", "v13", "v13", "v13", f"row_ror:{k}")
        self.dpp("v_add_f32", "v12", "v12", "v12", "row_bcast:15", rm="0xa"); self.dpp("v_add_f32", "v13", "v13", "v13", "row_bcast:15", rm="0xa")
        self.dpp("v_add_f32", "v12", "v12", "v12", "row_bcast:31", rm="0xc"); self.dpp("v_add_f32", "v13", "v13", "v13", "row_bcast:31", rm="0xc")
        a(f"""v_mul_f32 v14, 0x3c800000, v12
v_fma_f32 v15, -v14, v12, v13
v_add_f32 v14, s61, v14
s_mov_b32 exec_lo, 0
s_mov_b32 exec_hi, 0x80000000
ds_write_b64 v32, v[14:15] offset:{STAT}
s_mov_b64 exec, -1
s_waitcnt lgkmcnt(0)
s_barrier""")
        a(f"""ds_read_b64 v[18:19], v33 offset:{STAT}
ds_read_b32 v20, v34 offset:{STAT}
s_waitcnt lgkmcnt(0)
v_sub_f32 v18, v18, v20
v_mul_f32 v21, v18, v18
v_fmac_f32 v19, 0x42800000, v21""")
        for ctl in ("row_half_mirror", "quad_perm:[2,3,0,1]", "quad_perm:[1,0,3,2]"):
            self.dpp("v_add_f32", "v18", "v18", "v18", ctl); self.dpp("v_add_f32", "v19", "v19", "v19", ctl)
        a("""v_mul_f32 v21, v18, v18
v_fmac_f32 v20, 0x3e000000, v18
v_fmac_f32 v19, 0xc1000000, v21
v_mul_f32 v19, 0x3b000000, v19
v_max_f32 v19, 0, v19""")
        self.ln_tail1("v20", "v19", "v10", "v22", "v21", "v24", "v25")
        a("v_mul_f32 v22, v22, v43"); self.rbf("v22", "v22")
        a("v_add_f32 v22, v22, v42")
        a("v_mov_b32_dpp v23, v22 quad_perm:[1,1,3,3] row_mask:0xf bank_mask:0xf\nv_cvt_pk_bf16_f32 v24, v22, v23")
        for k in range(2):
            for q in range(4): a(f"v_mov_b32_dpp v{112+4*k+q}, v24 row_newbcast:{8*k+2*q} row_mask:0xf bank_mask:0xf")
        self.mfma_tiles(120, 112, B1f, 2, 2)
        a(f"""v_cndmask_b32 v29, v120, v124, {M_G1}
s_mov_b32 exec_hi, 0
ds_write_b32 v31, v29 offset:{FP}
s_mov_b64 exec, -1
s_waitcnt lgkmcnt(0)
s_barrier""")
        for w in range(8): a(f"ds_read_b32 v{44+w}, v30 offset:{FP+128*w}")
        a("""s_waitcnt lgkmcnt(0)
v_add_f32 v44, v44, v45
v_add_f32 v46, v46, v47
v_add_f32 v48, v48, v49
v_add_f32 v50, v50, v51
v_add_f32 v44, v44, v46
v_add_f32 v48, v48, v50
v_add_f32 v44, v44, v48
v_max_f32 v44, 0, v44
v_mov_b32_dpp v45, v44 quad_perm:[1,1,3,3] row_mask:0xf bank_mask:0xf
v_cvt_pk_bf16_f32 v46, v44, v45""")
        for q in range(4): a(f"v_mov_b32_dpp v{112+q}, v46 row_newbcast:{2*q} row_mask:0xf bank_mask:0xf")
        self.mfma_tiles(120, 112, B2f, 1, 4)
        a(f"""v_cndmask_b32 v40, v120, v124, {M_G1}
v_cndmask_b32 v40, v40, v128, {M_G2}
v_cndmask_b32 v40, v40, v132, {M_G3}
buffer_store_dword v40, v35, {SRD_WS}, s63 offen sc1""")
        self.stamp(9)
        a("s_cmp_lg_u32 s3, 0\ns_cbranch_scc1 L_s_exit\ns_cmp_ge_u32 s60, 32\ns_cbranch_scc1 L_s_exit")
        a(f"""v_lshlrev_b32 v8, 3, v0
s_mul_i32 s61, s60, {F_TILE}
s_add_u32 s61, s61, {F_OFF}
v_and_b32 v9, 7, v0
s_lshl_b32 s62, s60, 6
v_lshl_add_u32 v9, v9, 3, s62
ds_read_b64 v[10:11], v9 offset:{X1N}
ds_read_b64 v[12:13], v9 offset:{GBN}
v_mov_b32 v58, 0
v_mov_b32 v59, 0
v_mov_b32 v74, 0
v_mov_b32 v75, 0
v_and_b32 v14, 7, v0
v_lshlrev_b32 v14, 2, v14
s_lshl_b32 s62, s60, 5
s_mov_b32 s44, s{S_OUT}
s_mov_b32 s45, s{S_OUT+1}
s_mov_b32 s46, 1024
s_mov_b32 s47, 0x20000""")
        if self.slF: a(f"s_sleep {self.slF}")
        r = 48
        self.poll3([(f"buffer_load_dwordx2 v[{r+2*i}:{r+2*i+1}], v8, {SRD_WS}, s61 offen offset:{512*i} sc1", [r + 2*i, r + 2*i + 1], None if i < 5 else "0xffffff") for i in range(6)], rslot=2, depth=self.d3, stag=self.stag3, sync_first=self.sf3)
        a(f"""v_add_f32 v80, v{r}, v{r+2}
v_add_f32 v81, v{r+1}, v{r+3}
v_add_f32 v82, v{r+4}, v{r+6}
v_add_f32 v83, v{r+5}, v{r+7}
v_add_f32 v84, v{r+8}, v{r+10}
v_add_f32 v85, v{r+9}, v{r+11}
v_add_f32 v80, v80, v82
v_add_f32 v81, v81, v83
v_add_f32 v80, v80, v84
v_add_f32 v81, v81, v85""")
        self.stamp(10)
        self.dpp("v_add_f32", "v80", "v80", "v80", "row_ror:8"); self.dpp("v_add_f32", "v81", "v81", "v81", "row_ror:8")
        a("v_mov_b32 v82, v80\nv_mov_b32 v83, v81\nv_permlane16_swap_b32 v80, v82\nv_permlane16_swap_b32 v81, v83\nv_add_f32 v80, v80, v82\nv_add_f32 v81, v81, v83")
        a("v_mov_b32 v82, v80\nv_mov_b32 v83, v81\nv_permlane32_swap_b32 v80, v82\nv_permlane32_swap_b32 v81, v83\nv_add_f32 v80, v80, v82\nv_add_f32 v81, v81, v83")
        a("s_waitcnt lgkmcnt(0)")
        self.rbf2("v80", "v81", "v80", "v81", "v82")
        a("v_mul_f32 v80, v12, v80\nv_mul_f32 v81, v13, v81")
        self.rbf2("v80", "v81", "v80", "v81", "v82")
        a(f"""v_add_f32 v80, v10, v80
v_add_f32 v81, v11, v81
v_cvt_pk_bf16_f32 v82, v80, v81
s_mov_b64 exec, 0xff
buffer_store_dword v82, v14, {SRD_A}, s62 offen""")
        if self.diag:
            Ld = self.lab("diag")
            a(f"s_cmp_lg_u32 s60, 0\ns_cbranch_scc1 L_s_exit\ns_mov_b64 exec, -1\ns_memrealtime s[4:5]\ns_mov_b32 s56, {RDY_OFF}\ns_mov_b32 s57, {RDY_OFF+2048}")
            a(f"buffer_load_dwordx4 v[100:103], v1, {SRD_WS}, s56 offen sc1\nbuffer_load_dwordx4 v[104:107], v1, {SRD_WS}, s56 offen offset:1024 sc1")
            a(f"buffer_load_dwordx4 v[108:111], v1, {SRD_WS}, s57 offen sc1\nbuffer_load_dwordx4 v[112:115], v1, {SRD_WS}, s57 offen offset:1024 sc1")
            a("s_waitcnt vmcnt(0) lgkmcnt(0)")
            for r in (100, 104, 108, 112): a(f"v_sub_u32 v{r}, s4, v{r}")
            a("v_max_u32 v116, v100, v104\nv_max3_u32 v116, v116, v108, v112\nv_min_u32 v117, v100, v104\nv_min3_u32 v117, v117, v108, v112")
            self.wave_reduce_to_s("v_max_u32", "v116", "s6"); self.wave_reduce_to_s("v_min_u32", "v117", "s7")
            if self.diag == 2: a("s_sub_u32 s6, s6, s7")
            a(f"s_min_u32 s6, s6, 10000\ns_mul_i32 s6, s6, {self.K}\ns_add_u32 s6, s6, s4")
            a.label(Ld)
            a(f"s_memrealtime s[4:5]\ns_waitcnt lgkmcnt(0)\ns_sub_u32 s7, s4, s6\ns_cmp_lt_i32 s7, 0\ns_cbranch_scc1 {Ld}")
        a(f"""s_cmp_lg_u32 s60, 0
s_cbranch_scc1 L_s_exit
s_mov_b64 exec, 1
v_mov_b32 v52, s34
v_mov_b32 v53, s35
v_mov_b32 v54, 0
buffer_store_dwordx2 v[52:53], v54, {SRD_WS}, 0 offen sc1""")

    def ln_tail1(self, mean, var, x, out, t0, sd, rs):
        a = self.a
        self.rbf2(mean, var, mean, var, t0)
        a(f"v_add_f32 {var}, 0x3727c5ac, {var}\nv_sub_f32 {out}, {x}, {mean}")
        self.rbf(var, var)
        a(f"v_sqrt_f32 {sd}, {var}")
        self.rbf(out, out)
        self.rbf(sd, sd)
        a(f"v_rcp_f32 {rs}, {sd}")
        a(f"v_mul_f32 {t0}, {out}, {rs}\nv_fma_f32 {out}, -{t0}, {sd}, {out}\nv_fma_f32 {out}, {out}, {rs}, {t0}")
        self.rbf(out, out)

    def layernorm_tail(self, mean, var, xs, outs, t0, sd, rs):
        a = self.a
        self.rbf2(mean, var, mean, var, t0)
        a(f"v_add_f32 {var}, 0x3727c5ac, {var}")
        self.rbf(var, var)
        a(f"v_sqrt_f32 {sd}, {var}")
        self.rbf(sd, sd)
        a(f"v_rcp_f32 {rs}, {sd}")
        for x, o in zip(xs, outs): a(f"v_sub_f32 {o}, {x}, {mean}")
        self.rbf2(outs[0], outs[1], outs[0], outs[1], t0)
        for o in outs:
            a(f"v_mul_f32 {t0}, {o}, {rs}\nv_fma_f32 {o}, -{t0}, {sd}, {o}\nv_fma_f32 {o}, {o}, {rs}, {t0}")
        self.rbf2(outs[0], outs[1], outs[0], outs[1], t0)

    def tile128x64_load(self, srd, voff, rowstride, lds_base, soff0):
        self.dma_tile(srd, voff, 16, 8 * rowstride, lds_base, soff0)

    def ctl_waves(self):
        a = self.a
        b0 = (lambda: a("s_barrier")) if self.b0 else (lambda: None)
        a("v_lshlrev_b32 v1, 4, v0\ns_sub_u32 s3, s3, 8")
        a(f"s_lshl_b32 s59, s3, 14\ns_add_u32 s59, s59, {STG}")
        a(f"s_lshl_b32 s58, s3, 8\ns_add_u32 s58, s58, {ABUF + 8*256}")
        a("s_cmp_eq_u32 s3, 1\ns_cbranch_scc1 L_c1")
        self.ctl_common()
        b0()
        a("s_cmp_eq_u32 s3, 0\ns_cbranch_scc1 L_c0")
        a("s_cmp_eq_u32 s3, 2\ns_cbranch_scc0 L_c3")
        a(f"v_mov_b32 v2, -1\nv_lshlrev_b32 v3, 2, v0\ns_mov_b64 exec, 0xff\nds_write_b32 v3, v2 offset:{MBUF}\ns_mov_b64 exec, 1\nv_mov_b32 v2, 0\nds_write_b32 v2, v2 offset:{CNT}\nds_write_b32 v2, v2 offset:{TRIG}\nds_write_b32 v2, v2 offset:{ISSUED}\nv_mov_b32 v3, -1\nds_write_b32 v2, v3 offset:{ROLE}\ns_mov_b64 exec, -1")
        self.clear_slots()
        a(f"s_cmp_lt_u32 s2, {G_COL}\ns_cbranch_scc1 L_c_b1\ns_cmp_ge_u32 s2, {G_COL_END}\ns_cbranch_scc1 L_c_b1")
        self.lds_spin(HINT, "v_cmp_eq_u32", T0, 16)
        if self.slC: a(f"s_sleep {self.slC}")
        self.collect()
        a("s_branch L_c_b1")
        a.label("L_c3")
        if self.touch:
            a(f"""v_and_b32 v2, 7, v0
s_lshl_b32 s52, s2, 3
v_add_u32 v2, s52, v2
v_lshlrev_b32 v2, 15, v2
global_load_dword v8, v2, s[{S_V}:{S_V+1}]""")
        a("s_branch L_c_b1")
        a.label("L_c1")
        self.c1()
        a.label("L_c0")
        self.c0()
        a.label("L_c_b1")
        a("s_waitcnt vmcnt(0) lgkmcnt(0)")
        self.epoch_once()
        self.stamp(7)
        a("s_barrier")
        a("s_cmp_eq_u32 s3, 3\ns_cbranch_scc0 L_c_b2")
        a(f"s_mov_b32 s56, {RDY_OFF}\ns_mov_b32 s57, {RDY_OFF + 2048}")
        def issue_r2():
            a(f"buffer_load_dwordx4 v[8:11], v1, {SRD_WS}, s56 offen sc1\nbuffer_load_dwordx4 v[12:15], v1, {SRD_WS}, s56 offen offset:1024 sc1")
            a(f"buffer_load_dwordx4 v[16:19], v1, {SRD_WS}, s57 offen sc1\nbuffer_load_dwordx4 v[20:23], v1, {SRD_WS}, s57 offen offset:1024 sc1")
        self.poll(issue_r2, [8, 12, 16, 20], sleep=16)
        self.lds_spin(TRIG, "v_cmp_ne_u32", "0", 8)
        a(f"""s_mov_b32 s44, s{S_DBG}
s_mov_b32 s45, s{S_DBG+1}
s_mov_b32 s46, 256
s_mov_b32 s47, 0x20000
s_lshr_b32 s57, s2, 3
s_and_b32 s57, s57, 1
s_lshl_b32 s57, s57, 7
v_mov_b32 v15, 1
v_mov_b32 v16, 0
s_mov_b64 exec, 1
buffer_atomic_add v15, v16, {SRD_A}, s57 offen sc0
s_waitcnt vmcnt(0)
v_and_b32 v15, 127, v15
ds_write_b32 v16, v15 offset:{ROLE}
s_mov_b64 exec, -1""")
        a.label("L_c_b2")
        a("s_waitcnt vmcnt(0) lgkmcnt(0)")
        self.role("L_c_fin", "L_c_wo", "L_c_ffn")
        a.label("L_c_fin")
        a("s_add_u32 s3, s3, 8")
        self.finish()
        a.label("L_c_ffn")
        self.ffn_weights()
        a.label("L_c_wo")
        self.wo_wave()

    def clear_slots(self):
        a = self.a
        a(f"""v_mov_b32 v8, -1
v_mov_b32 v9, -1
v_mov_b32 v10, -1
v_mov_b32 v11, -1
s_lshl_b32 s56, s2, 9
s_add_u32 s56, s56, {O_OFF}
s_lshl_b32 s57, s2, 3
s_add_u32 s57, s57, {ML_OFF}
v_mov_b32 v12, 0
s_mov_b32 exec_hi, 0
buffer_store_dwordx4 v[8:11], v1, {SRD_WS}, s56 offen sc1
s_mov_b64 exec, 1
buffer_store_dwordx2 v[8:9], v12, {SRD_WS}, s57 offen sc1
s_mov_b64 exec, -1""")
        a(f"s_lshl_b32 s56, s2, 2\ns_add_u32 s56, s56, {GATE_OFF}\nv_lshlrev_b32 v13, 10, v0\ns_mov_b64 exec, {(1 << self.rg) - 1}\nbuffer_store_dword v8, v13, {SRD_WS}, s56 offen sc1\ns_mov_b64 exec, -1")
        L1 = self.lab("clr"); L2 = self.lab("clr"); L3 = self.lab("clr")
        a(f"s_cmp_ge_u32 s2, 64\ns_cbranch_scc1 {L1}")
        a(f"s_lshl_b32 s56, s2, 8\ns_add_u32 s56, s56, {Y_OFF}\ns_mov_b64 exec, 0xffff")
        for r in range(self.ry):
            a(f"buffer_store_dwordx4 v[8:11], v1, {SRD_WS}, s56 offen sc1")
            if r < self.ry - 1: a("s_add_u32 s56, s56, 16384")
        a("s_mov_b64 exec, -1")
        a.label(L1)
        a(f"s_cmp_lt_u32 s2, {G_COL}\ns_cbranch_scc1 {L3}\ns_cmp_ge_u32 s2, {G_COL_END}\ns_cbranch_scc1 {L3}")
        a(f"s_sub_u32 s56, s2, {G_COL}\ns_lshl_b32 s56, s56, 7\ns_add_u32 s56, s56, {A2_OFF}\ns_mov_b64 exec, 0xff\nbuffer_store_dwordx4 v[8:11], v1, {SRD_WS}, s56 offen sc1\ns_mov_b64 exec, -1")
        a.label(L3)
        a(f"s_cmp_ge_u32 s2, 43\ns_cbranch_scc1 {L2}")
        a(f"""v_lshrrev_b32 v13, 2, v0
v_mul_u32_u24 v13, {F_TILE}, v13
v_and_b32 v14, 3, v0
v_lshl_add_u32 v13, v14, 4, v13
s_lshl_b32 s56, s2, 6
s_add_u32 s56, s56, {F_OFF}
s_add_u32 s57, s56, {16*F_TILE}
buffer_store_dwordx4 v[8:11], v13, {SRD_WS}, s56 offen sc1
buffer_store_dwordx4 v[8:11], v13, {SRD_WS}, s57 offen sc1""")
        a.label(L2)
        a("s_waitcnt vmcnt(0) lgkmcnt(0)")
        self.epoch_once()
        a(f"""v_mov_b32 v16, {"s100" if self.diag else "0"}
v_mov_b32 v17, 0
v_mov_b32 v18, {T0}
v_mov_b32 v19, {T1}
s_lshl_b32 s56, s2, 4
s_add_u32 s56, s56, {RDY_OFF}
s_mov_b64 exec, 1
buffer_store_dwordx4 v[16:19], v12, {SRD_WS}, s56 offen sc1
s_mov_b64 exec, -1""")

    def ffn_weights(self):
        a = self.a
        Lv = self.lab("vec")
        a("s_barrier")
        a(f"s_cmp_eq_u32 s3, 0\ns_cbranch_scc0 {Lv}")
        self.ffn_vectors()
        a.label(Lv)
        self.srd(SRD_A, S_W1, 512 * 2752)
        self.srd(SRD_B, S_W2, 1376 * 1024)
        a(f"""v_lshrrev_b32 v2, 2, v0
v_mul_u32_u24 v2, 2752, v2
v_and_b32 v3, 3, v0
v_lshl_add_u32 v2, v3, 4, v2
s_lshl_b32 s61, s60, 6
v_add_u32 v2, s61, v2
v_lshrrev_b32 v3, 3, v0
s_lshl_b32 s61, s60, 5
v_add_u32 v3, s61, v3
v_lshlrev_b32 v3, 10, v3
v_and_b32 v4, 7, v0
v_lshl_add_u32 v3, v4, 4, v3
s_lshl_b32 s61, s3, 14
s_add_u32 s61, s61, {STG}
s_mul_i32 s62, s3, {128*2752}
s_lshl_b32 s63, s3, 8""")
        a("s_mov_b32 m0, s61")
        for k in range(2):
            for i in range(4):
                a(f"buffer_load_dwordx4 v2, {SRD_A}, s62 offen {self.wflag} lds\ns_add_u32 s62, s62, {16*2752}\ns_add_u32 m0, m0, 1024")
            a("s_mov_b32 s56, s63")
            for i in range(4):
                a(f"buffer_load_dwordx4 v3, {SRD_B}, s56 offen {self.wflag} lds\ns_add_u32 s56, s56, 8192")
                if not (k == 1 and i == 3): a("s_add_u32 m0, m0, 1024")
            a("s_add_u32 s63, s63, 128")
        Lg = self.lab("gate")
        if self.wgate:
            a("s_waitcnt vmcnt(0) lgkmcnt(0)\ns_barrier")
            a(f"s_cmp_eq_u32 s3, 3\ns_cbranch_scc0 L_c_fin")
            a(f"s_and_b32 s56, s60, {self.rg - 1}\ns_lshl_b32 s56, s56, 10\ns_add_u32 s56, s56, {GATE_OFF}")
            self.poll3([(f"buffer_load_dwordx4 v[8:11], v1, {SRD_WS}, s56 offen sc1", range(8, 12), None)], stag=4, sleep=self.slG, depth=self.dG)
            self.stamp(9)
            a("s_barrier")
            a("s_branch L_c_fin")
        else:
            a(f"s_cmp_eq_u32 s3, 3\ns_cbranch_scc0 {Lg}")
            a(f"s_waitcnt vmcnt(0)\ns_and_b32 s56, s60, {self.rg - 1}\ns_lshl_b32 s56, s56, 10\ns_add_u32 s56, s56, {GATE_OFF}")
            self.poll3([(f"buffer_load_dwordx4 v[8:11], v1, {SRD_WS}, s56 offen sc1", range(8, 12), None)], stag=4, sleep=self.slG, depth=self.dG)
            self.stamp(9)
            a.label(Lg)
            a("s_waitcnt vmcnt(0) lgkmcnt(0)\ns_barrier")
            a("s_branch L_c_fin")

    def ctl_common(self):
        a = self.a
        a("s_waitcnt lgkmcnt(0)")
        a(f"s_load_dwordx2 s[34:35], s[{S_WS}:{S_WS+1}], 0")
        self.srd(SRD_WS, S_WS, 0x200000 if self.stamps else 0x100000)
        self.consts()
        a("s_mov_b32 s75, 0")

    def collect(self):
        a = self.a
        a(f"s_sub_u32 s60, s2, {G_COL}\ns_lshl_b32 s56, s60, 11\ns_add_u32 s56, s56, {AP_OFF + G_A2 * 512}")
        a(f"s_lshl_b32 s57, s60, 7\ns_add_u32 s57, s57, {A2_OFF}")
        def issue():
            a(f"buffer_load_dwordx4 v[8:11], v1, {SRD_WS}, s56 offen sc1\nbuffer_load_dwordx4 v[12:15], v1, {SRD_WS}, s56 offen offset:1024 sc1")
        self.poll(issue, [8, 12], sleep=32)
        a("v_add_f32 v16, v8, v12\nv_add_f32 v17, v9, v13")
        self.xor32_add("v16", "v20"); self.xor32_add("v17", "v21")
        a(f"""v_cvt_pk_bf16_f32 v18, v16, v17
v_lshlrev_b32 v19, 2, v0
s_mov_b32 exec_hi, 0
buffer_store_dword v18, v19, {SRD_WS}, s57 offen sc1
s_mov_b64 exec, -1""")
        self.stamp(2)

    def epoch_once(self):
        a = self.a
        L = self.lab("ep")
        a(f"s_cmp_eq_u32 s75, 1\ns_cbranch_scc1 {L}")
        self.epoch()
        a("s_mov_b32 s75, 1")
        a.label(L)

    def c1(self):
        a = self.a
        a(f"s_mov_b32 s39, 0\ns_cmp_lt_u32 s2, {G_A2}\ns_cbranch_scc1 L_unit")
        self.ctl_common()
        if self.b0: a("s_barrier")
        a(f"s_cmp_ge_u32 s2, {G_WO}\ns_cbranch_scc1 L_c_b1")
        Lh = self.lab("hint")
        a("s_waitcnt lgkmcnt(0)")
        self.epoch_once()
        a("v_mov_b32 v9, 0")
        a.label(Lh)
        a(f"""ds_read_b32 v8, v9 offset:{HINT}
s_waitcnt lgkmcnt(0)
v_cmp_eq_u32 vcc, {T0}, v8
s_cbranch_vccnz {Lh}_ok
s_cmp_eq_u32 {SPIN}, 0
s_cbranch_scc1 {Lh}_ok
s_sub_u32 {SPIN}, {SPIN}, 1
s_sleep 8
s_branch {Lh}""")
        a.label(Lh + "_ok")
        a("s_mov_b32 s39, 1")
        a.label("L_unit")
        a("""s_lshr_b32 s61, s2, 2
s_lshl_b32 s61, s61, 7
s_and_b32 s60, s2, 3
s_lshl_b32 s60, s60, 7
v_lshrrev_b32 v4, 3, v0
v_mul_u32_u24 v4, 6144, v4
v_and_b32 v5, 7, v0
v_lshl_add_u32 v4, v5, 4, v4
v_add_u32 v4, s61, v4
v_lshlrev_b32 v5, 2, v0
s_lshl_b32 s56, s60, 1
s_mul_i32 s57, s60, 6144
s_waitcnt lgkmcnt(0)""")
        self.srd(SRD_A, S_WM, 512 * 6144)
        self.srd(SRD_B, S_C, 1024)
        a(f"buffer_load_dword v10, v5, {SRD_B}, s56 offen")
        self.dma_tile(SRD_A, "v4", 16, 8 * 6144, "s59", "s57")
        a("s_cmp_eq_u32 s39, 1\ns_cbranch_scc1 L_unit_go")
        if self.b0: a("s_barrier")
        self.ctl_common()
        a.label("L_unit_go")
        self.tr_addr("v6", 128, "v8", "v9"); a("v_add_u32 v6, s59, v6")
        a("v_lshrrev_b32 v7, 4, v0\nv_lshl_add_u32 v7, v7, 4, s58\nv_lshl_add_u32 v12, v0, 2, s58")
        a("s_waitcnt vmcnt(16)")
        a(f"v_lshlrev_b32 v8, 16, v10\nv_and_b32 v9, {S_HI}, v10")
        a(f"""v_mul_f32 v10, 0xbfb8aa3b, v8
v_mul_f32 v11, 0xbfb8aa3b, v9
v_exp_f32 v10, v10
v_exp_f32 v11, v11
v_add_f32 v10, 1.0, v10
v_add_f32 v11, 1.0, v11
v_min_f32 v10, 0x7f7fffff, v10
v_min_f32 v11, 0x7f7fffff, v11
v_rcp_f32 v13, v10
v_rcp_f32 v14, v11""")
        a("""v_mul_f32 v15, v8, v13
v_mul_f32 v16, v9, v14
v_fma_f32 v17, -v15, v10, v8
v_fma_f32 v18, -v16, v11, v9
v_fma_f32 v17, v17, v13, v15
v_fma_f32 v18, v18, v14, v16
v_cvt_pk_bf16_f32 v10, v17, v18
ds_write_b32 v12, v10
s_waitcnt lgkmcnt(0)""")
        for k in range(4): a(f"ds_read_b128 v[{108+4*k}:{111+4*k}], v7 offset:{64*k}")
        a("s_waitcnt vmcnt(0)")
        self.tr_frags(40, "v6", 0, 128, 4, 4)
        a("s_waitcnt lgkmcnt(0)")
        self.mfma_tiles(124, 108, 40, 4, 4)
        self.epoch_once()
        a(f"""s_lshl_b32 s63, s2, 9
s_add_u32 s63, s63, {AP_OFF}
v_cndmask_b32 v140, v124, v132, {M_G1}
v_cndmask_b32 v141, v128, v136, {M_G1}
v_mov_b32 v142, {T0}
v_mov_b32 v143, {T1}
s_mov_b32 exec_hi, 0
buffer_store_dwordx4 v[140:143], v1, {SRD_WS}, s63 offen sc1
s_mov_b64 exec, -1""")
        self.stamp(1)
        a("s_branch L_c_b1")

    def c0(self):
        a = self.a
        if "noc0" in self.exp: a("s_branch L_c_b1")
        a("s_lshr_b32 s60, s2, 3\ns_and_b32 s61, s2, 7")
        self.srd(SRD_A, S_WQ, 512 * 8192)
        self.srd(SRD_B, S_X, 1024)
        a("""v_lshrrev_b32 v4, 4, v0
s_lshl_b32 s56, s61, 6
v_add_u32 v4, s56, v4
v_lshlrev_b32 v4, 13, v4
v_and_b32 v5, 15, v0
v_lshl_add_u32 v4, v5, 4, v4
s_lshl_b32 s56, s60, 8
v_add_u32 v4, s56, v4""")
        a(f"buffer_load_dwordx4 v[24:27], v1, {SRD_B}, 0 offen")
        a("""v_bfe_u32 v6, v0, 4, 1
v_lshlrev_b32 v6, 5, v6
v_add_u32 v6, v6, v5
s_lshl_b32 s56, s61, 7
v_lshl_add_u32 v7, v6, 1, s56""")
        a(f"buffer_load_ushort v28, v7, {SRD_B}, 0 offen\nbuffer_load_ushort v29, v7, {SRD_B}, 0 offen offset:32")
        self.dma_tile(SRD_A, "v4", 16, 4 * 8192, "s59")
        a("s_waitcnt vmcnt(16)")
        self.stamp(1)
        for e in range(4): a(f"v_lshlrev_b32 v{8+2*e}, 16, v{24+e}\nv_and_b32 v{9+2*e}, {S_HI}, v{24+e}")
        a("""v_add_f32 v16, v8, v9
v_add_f32 v17, v10, v11
v_add_f32 v18, v12, v13
v_add_f32 v19, v14, v15
v_add_f32 v16, v16, v17
v_add_f32 v18, v18, v19
v_add_f32 v16, v16, v18""")
        self.wave_reduce_to_s("v_add_f32", "v16", "s56")
        a("v_mov_b32 v20, s56\nv_mul_f32 v20, 0x3b000000, v20")
        for e in range(8): a(f"v_sub_f32 v{8+e}, v{8+e}, v20")
        a("v_mul_f32 v16, v8, v8")
        for e in range(1, 8): a(f"v_fmac_f32 v16, v{8+e}, v{8+e}")
        self.wave_reduce_to_s("v_add_f32", "v16", "s56")
        a("v_mov_b32 v19, s56\nv_mul_f32 v19, 0x3b000000, v19")
        a("v_lshlrev_b32 v28, 16, v28\nv_lshlrev_b32 v29, 16, v29")
        self.layernorm_tail("v20", "v19", ["v28", "v29"], ["v30", "v31"], "v21", "v22", "v23")
        a("s_waitcnt lgkmcnt(0)")
        self.epoch(); a("s_mov_b32 s75, 1")
        self.tr_addr("v144", 256, "v8", "v9"); a("v_add_u32 v144, s59, v144")
        a("s_waitcnt vmcnt(0)")
        self.tr_frags(40, "v144", 0, 256, 2, 8)
        a(f"""v_lshrrev_b32 v8, 5, v0
v_lshlrev_b32 v8, 14, v8
v_and_b32 v9, 31, v0
v_lshl_add_u32 v8, v9, 4, v8
s_lshl_b32 s56, s61, 11
s_add_u32 s56, s56, {AP_OFF}
v_add_u32 v8, s56, v8
s_waitcnt lgkmcnt(0)""")
        self.stamp(2)
        G = [104, 108, 112, 116]
        if self.hintA:
            self.poll(lambda: a(f"buffer_load_dwordx4 v[116:119], v8, {SRD_WS}, 0 offen offset:1536 sc1"), [116], sleep=self.slA, pre=True)
        def issueA():
            for i in range(4): a(f"buffer_load_dwordx4 v[{G[i]}:{G[i]+3}], v8, {SRD_WS}, 0 offen offset:{512*i} sc1")
        self.poll(issueA, G, sleep=self.slA, pre=True, rslot=8)
        self.stamp(3)
        a(f"v_mov_b32 v8, {T0}\nv_mov_b32 v9, 0\nds_write_b32 v9, v8 offset:{HINT}")
        a("""v_add_f32 v8, v104, v108
v_add_f32 v9, v105, v109
v_add_f32 v10, v112, v116
v_add_f32 v11, v113, v117
v_add_f32 v8, v8, v10
v_add_f32 v9, v9, v11""")
        self.rbf2("v8", "v9", "v8", "v9", "v10")
        a("v_mov_b32 v10, v8\nv_mov_b32 v11, v9\nv_permlane32_swap_b32 v8, v10\nv_permlane32_swap_b32 v9, v11")
        a("v_add_f32 v10, 1.0, v10\nv_add_f32 v11, 1.0, v11")
        self.rbf2("v10", "v11", "v10", "v11", "v12")
        a("v_mul_f32 v10, v30, v10\nv_mul_f32 v11, v31, v11")
        self.rbf2("v10", "v11", "v10", "v11", "v12")
        a("v_add_f32 v10, v10, v8\nv_add_f32 v11, v11, v9\nv_cvt_pk_bf16_f32 v12, v10, v11")
        a("""v_lshl_add_u32 v13, v6, 1, s58
ds_write_b16 v13, v12
ds_write_b16_d16_hi v13, v12 offset:32
v_lshrrev_b32 v14, 4, v0
v_lshl_add_u32 v14, v14, 4, s58
s_waitcnt lgkmcnt(0)
ds_read_b128 v[136:139], v14
ds_read_b128 v[140:143], v14 offset:64
s_waitcnt lgkmcnt(0)""")
        self.mfma_tiles(104, 136, 40, 2, 8)
        a(f"""v_cndmask_b32 v8, v104, v112, {M_G1}
v_cndmask_b32 v9, v108, v116, {M_G1}
v_cndmask_b32 v8, v8, v120, {M_G2}
v_cndmask_b32 v9, v9, v124, {M_G2}
v_cndmask_b32 v8, v8, v128, {M_G3}
v_cndmask_b32 v9, v9, v132, {M_G3}
v_mov_b32 v10, {T0}
v_mov_b32 v11, {T1}
s_lshl_b32 s56, s2, 10
s_add_u32 s56, s56, {B_OFF}
buffer_store_dwordx4 v[8:11], v1, {SRD_WS}, s56 offen sc1""")
        self.stamp(4)
        a(f"s_lshl_b32 s56, s60, 13\ns_add_u32 s56, s56, {B_OFF}\ns_add_u32 s57, s56, 4096")
        G = [104 + 4 * i for i in range(8)]
        if self.hintB:
            a("v_and_b32 v15, 7, v0\nv_lshlrev_b32 v15, 10, v15\nv_add_u32 v15, 1008, v15")
            self.poll(lambda: a(f"buffer_load_dwordx4 v[104:107], v15, {SRD_WS}, s56 offen sc1"), [104], sleep=self.slB, pre=True)
        def issueB():
            for i in range(8):
                a(f"buffer_load_dwordx4 v[{G[i]}:{G[i]+3}], v1, {SRD_WS}, {'s56' if i < 4 else 's57'} offen offset:{1024*(i&3)} sc1")
        self.poll(issueB, G, sleep=self.slB, pre=True, rslot=9)
        self.stamp(5)
        a("""v_add_f32 v8, v104, v108
v_add_f32 v9, v105, v109
v_add_f32 v10, v112, v116
v_add_f32 v11, v113, v117
v_add_f32 v12, v120, v124
v_add_f32 v13, v121, v125
v_add_f32 v14, v128, v132
v_add_f32 v15, v129, v133
v_add_f32 v8, v8, v10
v_add_f32 v9, v9, v11
v_add_f32 v12, v12, v14
v_add_f32 v13, v13, v15
v_add_f32 v8, v8, v12
v_add_f32 v9, v9, v13
v_cvt_pk_bf16_f32 v8, v8, v9""")
        a(f"""v_lshrrev_b32 v9, 4, v0
v_lshlrev_b32 v9, 5, v9
v_add_u32 v9, v9, v5
v_lshlrev_b32 v9, 1, v9
ds_write_b16 v9, v8 offset:{QBUF}
ds_write_b16_d16_hi v9, v8 offset:{QBUF+32}""")
        self.stamp(6)

    def ffn_vectors(self):
        a = self.a
        self.srd(SRD_B, S_X, 1024)
        a(f"buffer_load_dwordx4 v[104:107], v1, {SRD_B}, 0 offen\ns_mov_b32 s56, {A2_OFF}")
        self.poll3([(f"buffer_load_dwordx4 v[{40+4*k}:{43+4*k}], v1, {SRD_WS}, s56 offen offset:{1024*k} sc1", range(40 + 4*k, 44 + 4*k), None) for k in range(4)], stag=4, sleep=4, mask0=8)
        a(f"""v_lshrrev_b32 v5, 3, v0
v_lshlrev_b32 v5, 6, v5
v_bfe_u32 v6, v0, 2, 1
v_lshl_add_u32 v5, v6, 5, v5
v_and_b32 v6, 3, v0
v_lshl_add_u32 v5, v6, 2, v5
v_lshlrev_b32 v5, 2, v5
v_lshlrev_b32 v9, 5, v0
s_waitcnt vmcnt(0)""")
        for e in range(4): a(f"v_lshlrev_b32 v{108+2*e}, 16, v{104+e}\nv_and_b32 v{109+2*e}, {S_HI}, v{104+e}")
        a(f"ds_write_b128 v9, v[108:111] offset:{XN}\nds_write_b128 v9, v[112:115] offset:{XN+16}")
        for k in range(4):
            r = 40 + 4 * k; lo = 120 + 8 * k; hi = lo + 4
            for e in range(4): a(f"v_lshlrev_b32 v{lo+e}, 16, v{r+e}\nv_and_b32 v{hi+e}, {S_HI}, v{r+e}")
            if k == 2:
                for e in range(8): a(f"v_add_f32 v{lo+e}, 1.0, v{lo+e}")
                for e in range(0, 8, 2): self.rbf2(f"v{lo+e}", f"v{lo+e+1}", f"v{lo+e}", f"v{lo+e+1}", "v10")
            base = [GA, SB, CB1, GBN][k]
            a(f"ds_write_b128 v5, v[{lo}:{lo+3}] offset:{base}\nds_write_b128 v5, v[{hi}:{hi+3}] offset:{base+64}")

    def wo_wave(self):
        a = self.a
        if "wod" in self.exp: self.stamp(3)
        a("s_lshr_b32 s61, s60, 3\ns_and_b32 s62, s60, 7")
        a("s_lshl_b32 s63, s61, 2\ns_add_u32 s63, s63, s3")
        a("v_and_b32 v7, 7, v0")
        self.srd(SRD_A, S_WO, 4096 * 1024)
        a("""v_lshrrev_b32 v4, 3, v0
v_lshlrev_b32 v4, 10, v4
v_and_b32 v5, 7, v0
v_lshl_add_u32 v4, v5, 4, v4
s_lshl_b32 s56, s62, 7
v_add_u32 v4, s56, v4
s_lshl_b32 s54, s63, 17""")
        self.tr_addr("v6", 128, "v8", "v9"); a("v_add_u32 v6, s59, v6")
        a(f"""v_lshlrev_b32 v7, 3, v7
s_lshl_b32 s56, s63, 6
s_add_u32 s56, s56, {ML_OFF}
s_lshl_b32 s57, s63, 12
s_add_u32 s57, s57, {O_OFF}
v_bfe_u32 v3, v0, 2, 2
v_lshlrev_b32 v3, 4, v3
v_lshrrev_b32 v5, 4, v0
v_lshl_add_u32 v3, v5, 2, v3
v_and_b32 v5, 3, v0
v_add_u32 v3, v3, v5
v_lshlrev_b32 v3, 3, v3
v_lshlrev_b32 v150, 2, v0
s_lshl_b32 s55, s3, 8
v_add_u32 v151, s55, v150
s_lshl_b32 s55, s60, 8
s_add_u32 s55, s55, {Y_OFF}""")
        self.lds_spin(ISSUED, "v_cmp_eq_u32", "8", 1, reg="v2", addr="v5")
        if "wod" in self.exp: self.stamp(4)
        self.dma_tile(SRD_A, "v4", 16, 8192, "s59", "s54")
        self.stamp(8)
        P = [8, 10, 12, 14, 16, 18, 20, 22]
        items = [(f"buffer_load_dwordx2 v[24:25], v7, {SRD_WS}, s56 offen sc1", [24, 25], None)] + \
                [(f"buffer_load_dwordx2 v[{P[i]}:{P[i]+1}], v3, {SRD_WS}, s57 offen offset:{512*i} sc1", [P[i], P[i] + 1], None) for i in range(8)]
        for txt, regs, m0 in items: a(txt)
        a("s_waitcnt vmcnt(9)")
        self.stamp(9)
        self.tr_frags(40, "v6", 0, 128, 4, 4)
        a("s_waitcnt vmcnt(0)")
        if self.keepm: self.p3_check(items, 8)
        else: self.sentcheck([r for it in items for r in it[1]], "v2")
        Lg = self.lab("gate")
        a(f"s_cbranch_vccz {Lg}_all")
        a.label(Lg)
        a(f"""buffer_load_dwordx2 v[24:25], v7, {SRD_WS}, s56 offen sc1
s_waitcnt vmcnt(0)
v_max_u32 v2, v24, v25
v_cmp_eq_u32 vcc, -1, v2
s_and_b32 s52, vcc_lo, 0xff
s_bcnt1_i32_b32 s52, s52
s_cmp_le_u32 s52, {self.thr}
s_cbranch_scc1 {Lg}_ok
s_cmp_eq_u32 {SPIN}, 0
s_cbranch_scc1 {Lg}_ok
s_sub_u32 {SPIN}, {SPIN}, 1
s_sleep {self.slW}
s_branch {Lg}""")
        a.label(Lg + "_ok")
        self.poll3(items, rslot=2, mask0=8, init=not self.keepm, sync_first=self.keepm)
        a.label(Lg + "_all")
        if self.wgate:
            a(f"s_lshl_b32 s52, s60, 2\ns_add_u32 s52, s52, s3\ns_lshl_b32 s52, s52, 2\ns_add_u32 s52, s52, {GATE_OFF}\nv_lshlrev_b32 v159, 10, v0\ns_mov_b64 exec, {(1 << self.rg) - 1}\nbuffer_store_dword v24, v159, {SRD_WS}, s52 offen sc1\ns_mov_b64 exec, -1")
        a("s_waitcnt lgkmcnt(0)")
        self.stamp(6)
        m, l = "v24", "v25"
        a(f"v_mov_b32 v144, {m}")
        for ctl in ("row_half_mirror", "quad_perm:[2,3,0,1]", "quad_perm:[1,0,3,2]"): self.dpp("v_max_f32", "v144", "v144", "v144", ctl)
        a(f"v_sub_f32 v145, {m}, v144\nv_mov_b32 v152, 0\nv_mul_f32 v145, {LOG2E}, v145\nv_mov_b32 v153, 0\nv_exp_f32 v145, v145\ns_nop 0\nv_mul_f32 v146, v145, {l}")
        chain = [("row_half_mirror"), ("quad_perm:[2,3,0,1]"), ("quad_perm:[1,0,3,2]")]
        for j in range(8):
            a(f"v_fmac_f32_dpp v152, v145, v{P[j]} row_newbcast:{j} row_mask:0xf bank_mask:0xf")
            if j < 3: self.dpp("v_add_f32", "v146", "v146", "v146", chain[j])
            if j == 4: a("v_rcp_f32 v147, v146")
            a(f"v_fmac_f32_dpp v153, v145, v{P[j]+1} row_newbcast:{j} row_mask:0xf bank_mask:0xf")
        self.stamp(10)
        a("""v_mul_f32 v154, v152, v147
v_mul_f32 v155, v153, v147
v_fma_f32 v156, -v154, v146, v152
v_fma_f32 v157, -v155, v146, v153
v_fma_f32 v154, v156, v147, v154
v_fma_f32 v155, v157, v147, v155
v_cvt_pk_bf16_f32 v148, v154, v155""")
        bc = lambda k, q: a(f"v_mov_b32_dpp v{108+4*k+q}, v148 row_newbcast:{4*k+q} row_mask:0xf bank_mask:0xf")
        for q in range(4): bc(0, q)
        for q in range(4): bc(1, q)
        for k in range(4):
            for t in range(4):
                d = f"v[{124+4*t}:{127+4*t}]"; b = 40 + 4 * (k * 4 + t)
                a(f"v_mfma_f32_16x16x32_bf16 {d}, v[{108+4*k}:{111+4*k}], v[{b}:{b+3}], {'0' if k == 0 else d}")
                if k < 2: bc(k + 2, t)
        a(f"""v_cndmask_b32 v158, v124, v128, {M_G1}
v_cndmask_b32 v158, v158, v132, {M_G2}
v_cndmask_b32 v158, v158, v136, {M_G3}
ds_write_b32 v151, v158 offset:{YP}
s_waitcnt lgkmcnt(0)
s_barrier""")
        a("s_cmp_lg_u32 s3, 0\ns_cbranch_scc1 L_wo_done")
        for w in range(4): a(f"ds_read_b32 v{160+w}, v150 offset:{YP + 256*w}")
        a(f"""s_waitcnt lgkmcnt(0)
v_add_f32 v160, v160, v161
v_add_f32 v162, v162, v163
v_add_f32 v160, v160, v162
buffer_store_dword v160, v150, {SRD_WS}, s55 offen sc1""")
        for r in range(1, self.ry): a(f"s_add_u32 s55, s55, 16384\nbuffer_store_dword v160, v150, {SRD_WS}, s55 offen sc1")
        self.stamp(11)
        a.label("L_wo_done")
        a("s_add_u32 s3, s3, 8")
        self.finish()

def generate(**kw):
    g = Gen(**kw)
    return g.build()

if __name__ == "__main__":
    import argparse
    p = argparse.ArgumentParser()
    p.add_argument("-o", default="k.s"); p.add_argument("-W", type=int, default=3); p.add_argument("--stamps", action="store_true")
    p.add_argument("--nohintA", action="store_true"); p.add_argument("--nohintB", action="store_true"); p.add_argument("--noprefetch", action="store_true")
    p.add_argument("--dbg", type=int, default=0); p.add_argument("--slY", type=int, default=0); p.add_argument("--slF", type=int, default=0); p.add_argument("--sf3", action="store_true"); p.add_argument("--slC", type=int, default=64); p.add_argument("--prio", type=int, default=0); p.add_argument("--keepm", action="store_true"); p.add_argument("--sf2", action="store_true"); p.add_argument("--dG", type=int, default=2); p.add_argument("--rg", type=int, default=4); p.add_argument("--slW", type=int, default=2); p.add_argument("--wgate", action="store_true"); p.add_argument("--Wv", type=int, default=0); p.add_argument("--Wz", type=int, default=0); p.add_argument("--jw", type=int, default=64); p.add_argument("--diag", type=int, default=0); p.add_argument("--K", type=int, default=2); p.add_argument("--ry", type=int, default=1); p.add_argument("--d2", type=int, default=2); p.add_argument("--d3", type=int, default=2); p.add_argument("--stag2", type=int, default=8); p.add_argument("--stag3", type=int, default=8); p.add_argument("--slG", type=int, default=2); p.add_argument("--jt", type=int, default=26); p.add_argument("--early", action="store_true"); p.add_argument("--thr", type=int, default=2); p.add_argument("--single", action="store_true"); p.add_argument("--stag", type=int, default=8); p.add_argument("--novf", type=int, default=0); p.add_argument("--jb", type=int, default=31); p.add_argument("--budget", type=int, default=70); p.add_argument("--pfmax", type=int, default=256); p.add_argument("--nob0", action="store_true"); p.add_argument("--notouch", action="store_true"); p.add_argument("--exp", default=""); p.add_argument("--slA", type=int, default=4); p.add_argument("--slB", type=int, default=2); p.add_argument("--kv", default="nt"); p.add_argument("--wflag", default="nt")
    x = p.parse_args()
    open(x.o, "w").write(generate(W=x.W, stamps=x.stamps, hintA=not x.nohintA, hintB=not x.nohintB, prefetch=not x.noprefetch, kvflag=x.kv, wflag=x.wflag, exp=x.exp, slA=x.slA, slB=x.slB, pfmax=x.pfmax, b0=not x.nob0, touch=not x.notouch, dbg=x.dbg, novf=x.novf, jb=x.jb, budget=x.budget, single=x.single, stag=x.stag, thr=x.thr, jt=x.jt, early=x.early, ry=x.ry, d2=x.d2, d3=x.d3, stag2=x.stag2, stag3=x.stag3, slG=x.slG, diag=x.diag, K=x.K, Wv=x.Wv, Wz=x.Wz, jw=x.jw, wgate=x.wgate, dG=x.dG, rg=x.rg, slW=x.slW, keepm=x.keepm, sf2=x.sf2, prio=x.prio, slC=x.slC, slY=x.slY, slF=x.slF, sf3=x.sf3))
```

```python
import sys
from asmlib import Asm

NAME = "adaLN_cond__gqa_block_cached__dense_activation_relu__decode_kernel"

RDY_OFF = 0x1000; A2_OFF = 0x9000; ML_OFF = 0xD000; GATE_OFF = 0x18000; Y_OFF = 0x10000; AP_OFF = 0xD0000
B_OFF = 0x20000; O_OFF = 0x60000; F_OFF = 0xA0000; STAMP_OFF = 0x100000
F_TILE = 48 * 64
G_A2 = 64; G_COL = 192; G_COL_END = 224; G_FFN = 96; G_FFN_END = 139; G_WO = 192
CODE_PAD = 24576
QBUF = 0
MBUF = 256
LBUF = 288
STAT = 320
TRIG = 396
ISSUED = 400
ROLE = 392
CNT = 388
HINT = 384
ABUF = 512
OBUF = 4096
YP = 8192
FP = 9216
XN = 10240; GA = XN + 2048; SB = GA + 2048; CB1 = SB + 2048; GBN = CB1 + 2048; X1N = GBN + 2048
STG = 24576
OVF = STG + 32768
S_X, S_K, S_V, S_WQ, S_WO, S_W1, S_W2 = 8, 10, 12, 14, 16, 20, 22
S_C, S_WM, S_OUT, S_DBG, S_WS = 24, 26, 28, 30, 32
S_E = 34; T0, T1 = "s36", "s37"; SPIN = "s38"
SRD_WS = "s[40:43]"; SRD_A = "s[44:47]"; SRD_B = "s[48:51]"
M_B1 = "s[64:65]"; M_B0 = "s[66:67]"; M_G1 = "s[68:69]"; M_G2 = "s[70:71]"; M_G3 = "s[72:73]"
S_HI = "s74"
STAMP0 = 76
RING = 40
LOG2E = "0x3fb8aa3b"; SCALE = "0x3db504f3"

HEADER = """
;
"""

class Gen:
    def __init__(self, W=3, stamps=False, hintA=True, hintB=True, kvflag="nt", prefetch=True, wflag="nt", dbg=False, exp="", slA=4, slB=2, pfmax=256, b0=True, touch=True, novf=0, jb=31, budget=70, single=False, stag=8, thr=2, jt=26, early=False, ry=1, d2=2, d3=2, stag2=8, stag3=8, slG=2, diag=0, K=2, Wv=None, Wz=None, jw=64, wgate=False, dG=2, rg=4, slW=2, keepm=False, sf2=False, prio=0, slC=64, slY=0, slF=0, sf3=False, w1flag='nt', slR=2):
        self.a = Asm(); self.W = W; self.stamps = stamps; self.hintA = hintA; self.hintB = hintB
        self.kv = kvflag; self.prefetch = prefetch; self.wflag = wflag; self.uid = 0; self.dbg = dbg; self.exp = exp.split(','); self.slA = slA; self.slB = slB; self.pfmax = pfmax; self.b0 = b0; self.touch = touch; self.novf = novf; self.jb = jb; self.budget = budget; self.single = single; self.stag = stag; self.thr = thr; self.jt = jt; self.early = early; self.ry = ry; self.d2 = d2; self.d3 = d3; self.stag2 = stag2; self.stag3 = stag3; self.slG = slG; self.diag = diag; self.K = K; self.Wv = Wv or W; self.Wz = Wz or self.Wv; self.jw = jw; self.wgate = wgate; self.dG = dG; self.rg = rg; self.slW = slW; self.keepm = keepm; self.sf2 = sf2; self.prio = prio; self.slC = slC; self.slY = slY; self.slF = slF; self.sf3 = sf3; self.w1flag = w1flag; self.slR = slR
    def lab(self, p):
        self.uid += 1; return f"L_{p}_{self.uid}"
    def stamp(self, i):
        if self.stamps: self.a(f"s_memrealtime s[{STAMP0+2*i}:{STAMP0+2*i+1}]")
    def finish(self):
        a = self.a
        if self.stamps:
            a("s_waitcnt lgkmcnt(0)\ns_mov_b64 exec, -1")
            a("v_mov_b32 v2, 0")
            for i in range(24): a(f"v_writelane_b32 v2, s{STAMP0+i}, {i}")
            a(f"s_mul_i32 s52, s2, 12\ns_add_u32 s52, s52, s3\ns_lshl_b32 s52, s52, 7\ns_add_u32 s52, s52, {STAMP_OFF}")
            a("v_lshlrev_b32 v3, 2, v0\ns_mov_b32 exec_hi, 0")
            a(f"buffer_store_dword v2, v3, {SRD_WS}, s52 offen")
        a("s_endpgm")
    def rbf(self, dst, src):
        self.a(f"v_cvt_pk_bf16_f32 {dst}, {src}, {src}\nv_and_b32 {dst}, {S_HI}, {dst}")
    def rbf2(self, d0, d1, s0, s1, tmp):
        self.a(f"v_cvt_pk_bf16_f32 {tmp}, {s0}, {s1}\nv_lshlrev_b32 {d0}, 16, {tmp}\nv_and_b32 {d1}, {S_HI}, {tmp}")
    def dpp(self, op, d, s0, s1, ctl, rm="0xf", bm="0xf"):
        self.a(f"{op}_dpp {d}, {s0}, {s1} {ctl} row_mask:{rm} bank_mask:{bm}")
    def row_reduce(self, op, v, steps=(8, 4, 2, 1)):
        for k in steps: self.dpp(op, v, v, v, f"row_ror:{k}")
    def wave_reduce_to_s(self, op, v, s):
        self.row_reduce(op, v)
        self.dpp(op, v, v, v, "row_bcast:15", rm="0xa")
        self.dpp(op, v, v, v, "row_bcast:31", rm="0xc")
        self.a(f"v_readlane_b32 {s}, {v}, 63")
    def xor32_add(self, v, t):
        self.a(f"v_mov_b32 {t}, {v}\nv_permlane32_swap_b32 {v}, {t}\nv_add_f32 {v}, {v}, {t}")
    def xor16_add(self, v, t):
        self.a(f"v_mov_b32 {t}, {v}\nv_permlane16_swap_b32 {v}, {t}\nv_add_f32 {v}, {v}, {t}")
    def tagcheck(self, regs, acc, first=True):
        a = self.a
        for r in regs:
            if first:
                a(f"v_xor_b32 {acc}, {T0}, v{r+2}"); first = False
            else:
                a(f"v_bitop3_b32 {acc}, {acc}, {T0}, v{r+2} bitop3:0xf6")
            a(f"v_bitop3_b32 {acc}, {acc}, {T1}, v{r+3} bitop3:0xf6")
    def poll(self, issue, regs, acc="v2", sleep=0, pre=False, rslot=None):
        a = self.a
        if rslot is not None and "rounds" in self.exp: a(f"s_mov_b32 s{STAMP0+2*rslot}, {SPIN}")
        L = self.lab("poll"); D = self.lab("pok")
        a.label(L)
        issue()
        a("s_waitcnt vmcnt(0)")
        self.tagcheck(regs, acc)
        a(f"v_cmp_ne_u32 vcc, 0, {acc}")
        if "nopoll" in self.exp and pre: a(f"s_branch {D}")
        a(f"s_cbranch_vccz {D}")
        a(f"s_cmp_eq_u32 {SPIN}, 0")
        a(f"s_cbranch_scc1 {D}")
        a(f"s_sub_u32 {SPIN}, {SPIN}, 1")
        if sleep: a(f"s_sleep {sleep}")
        a(f"s_branch {L}")
        a.label(D)
        if rslot is not None and "rounds" in self.exp: a(f"s_sub_u32 s{STAMP0+2*rslot}, s{STAMP0+2*rslot}, {SPIN}\ns_mov_b32 s{STAMP0+2*rslot+1}, 0")
    def sentcheck(self, regs, acc):
        a = self.a; regs = list(regs)
        if len(regs) == 1: a(f"v_cmp_eq_u32 vcc, -1, v{regs[0]}"); return
        if len(regs) == 2: a(f"v_max_u32 {acc}, v{regs[0]}, v{regs[1]}"); rest = []
        else: a(f"v_max3_u32 {acc}, v{regs[0]}, v{regs[1]}, v{regs[2]}"); rest = regs[3:]
        while rest:
            if len(rest) >= 2: a(f"v_max3_u32 {acc}, {acc}, v{rest[0]}, v{rest[1]}"); rest = rest[2:]
            else: a(f"v_max_u32 {acc}, {acc}, v{rest[0]}"); rest = []
        a(f"v_cmp_eq_u32 vcc, -1, {acc}")
    def poll2(self, issue, regs, nload, consume, acc="v2", rslot=None):
        a = self.a
        if rslot is not None and "rounds" in self.exp: a(f"s_mov_b32 s{STAMP0+2*rslot}, {SPIN}")
        L = self.lab("p2"); OA = L + "_a"; OB = L + "_b"; J = L + "_j"
        if self.single:
            a.label(L); issue(0); a("s_waitcnt vmcnt(0)"); self.sentcheck(regs(0), acc)
            a(f"s_cbranch_vccz {OA}\ns_cmp_eq_u32 {SPIN}, 0\ns_cbranch_scc1 {OA}\ns_sub_u32 {SPIN}, {SPIN}, 1\ns_branch {L}")
            a.label(OA); consume(0)
        else:
            issue(0); a(f"s_sleep {self.stag}"); issue(1)
            a.label(L)
            a(f"s_waitcnt vmcnt({nload})"); self.sentcheck(regs(0), acc); a(f"s_cbranch_vccz {OA}")
            issue(0)
            a(f"s_waitcnt vmcnt({nload})"); self.sentcheck(regs(1), acc); a(f"s_cbranch_vccz {OB}")
            issue(1)
            a(f"s_cmp_eq_u32 {SPIN}, 0\ns_cbranch_scc1 {OA}\ns_sub_u32 {SPIN}, {SPIN}, 1\ns_branch {L}")
            a.label(OB); consume(1); a(f"s_branch {J}")
            a.label(OA); consume(0)
            a.label(J)
        if rslot is not None and "rounds" in self.exp: a(f"s_sub_u32 s{STAMP0+2*rslot}, s{STAMP0+2*rslot}, {SPIN}\ns_mov_b32 s{STAMP0+2*rslot+1}, 0")
    def p3_issue(self, items, mask0):
        a = self.a
        for i, (txt, regs, m0) in enumerate(items): a(f"s_mov_b64 exec, s[{mask0+2*i}:{mask0+2*i+1}]\n{txt}")
        a("s_mov_b64 exec, -1")
    def p3_check(self, items, mask0):
        a = self.a; n = len(items)
        M = lambda i: f"s[{mask0+2*i}:{mask0+2*i+1}]"
        for i, (txt, regs, m0) in enumerate(items):
            regs = list(regs)
            if len(regs) == 1: a(f"v_cmp_eq_u32 {M(i)}, -1, v{regs[0]}")
            else:
                if len(regs) == 2: a(f"v_max_u32 v2, v{regs[0]}, v{regs[1]}")
                else: a(f"v_max3_u32 v2, v{regs[0]}, v{regs[1]}, v{regs[2]}\nv_max_u32 v2, v2, v{regs[3]}")
                a(f"v_cmp_eq_u32 {M(i)}, -1, v2")
        a(f"s_or_b64 vcc, {M(0)}, {M(1)}" if n > 1 else f"s_mov_b64 vcc, {M(0)}")
        for i in range(2, n): a(f"s_or_b64 vcc, vcc, {M(i)}")
    def poll3(self, items, rslot=None, stag=None, sleep=0, mask0=8, depth=2, init=True, sync_first=False):
        a = self.a; n = len(items)
        M = lambda i: f"s[{mask0+2*i}:{mask0+2*i+1}]"
        if rslot is not None and "rounds" in self.exp: a(f"s_mov_b32 s{STAMP0+2*rslot}, {SPIN}")
        if init:
            for i, (txt, regs, m0) in enumerate(items):
                a(f"s_mov_b64 {M(i)}, {m0 if m0 is not None else -1}")
        L = self.lab("p3"); D = L + "_d"
        if self.single: depth = 1
        if sync_first and depth > 1:
            self.p3_issue(items, mask0)
            a("s_waitcnt vmcnt(0)")
            self.p3_check(items, mask0)
            a(f"s_cbranch_vccz {D}")
        for k in range(depth - 1): self.p3_issue(items, mask0); a(f"s_sleep {self.stag if stag is None else stag}")
        a.label(L)
        self.p3_issue(items, mask0)
        a(f"s_waitcnt vmcnt({n * (depth - 1)})")
        self.p3_check(items, mask0)
        a(f"s_cbranch_vccz {D}\ns_cmp_eq_u32 {SPIN}, 0\ns_cbranch_scc1 {D}\ns_sub_u32 {SPIN}, {SPIN}, 1")
        if sleep: a(f"s_sleep {sleep}")
        a(f"s_branch {L}")
        a.label(D)
        if rslot is not None and "rounds" in self.exp: a(f"s_sub_u32 s{STAMP0+2*rslot}, s{STAMP0+2*rslot}, {SPIN}\ns_mov_b32 s{STAMP0+2*rslot+1}, 0")
    def lds_spin(self, off, cmp_op, val, sleep, reg="v2", addr="v3"):
        a = self.a; L = self.lab("ls")
        a(f"v_mov_b32 {addr}, 0")
        a.label(L)
        a(f"""ds_read_b32 {reg}, {addr} offset:{off}
s_waitcnt lgkmcnt(0)
{cmp_op} vcc, {val}, {reg}
s_cbranch_vccnz {L}_ok
s_cmp_eq_u32 {SPIN}, 0
s_cbranch_scc1 {L}_ok
s_sub_u32 {SPIN}, {SPIN}, 1
s_sleep {sleep}
s_branch {L}""")
        a.label(L + "_ok")
    def srd(self, srd, base, size, add=None):
        n = int(srd[2:srd.index(':')])
        if add is None: self.a(f"s_mov_b32 s{n}, s{base}\ns_mov_b32 s{n+1}, s{base+1}")
        else: self.a(f"s_add_u32 s{n}, s{base}, {add}\ns_addc_u32 s{n+1}, s{base+1}, 0")
        self.a(f"s_mov_b32 s{n+2}, {size}\ns_mov_b32 s{n+3}, 0x20000")
    def consts(self):
        a = self.a
        a(f"s_mov_b32 {S_HI}, 0xffff0000\ns_mov_b32 {SPIN}, 0x40000")
        a("s_mov_b32 s64, 0xcccccccc\ns_mov_b32 s65, 0xcccccccc\ns_mov_b32 s66, 0xaaaaaaaa\ns_mov_b32 s67, 0xaaaaaaaa")
        a("s_mov_b32 s68, 0xffff0000\ns_mov_b32 s69, 0\ns_mov_b32 s70, 0\ns_mov_b32 s71, 0xffff\ns_mov_b32 s72, 0\ns_mov_b32 s73, 0xffff0000")
    def epoch(self):
        self.a(f"s_add_u32 s34, s34, 1\ns_addc_u32 s35, s35, 0\ns_xor_b32 {T0}, s34, 0x5bd1e995\ns_xor_b32 {T1}, s35, 0x9e3779b9")
    def dma_tile(self, srd, voff, n, step, lds_base, soff0="0"):
        a = self.a
        a(f"s_mov_b32 s53, {soff0}\ns_mov_b32 m0, {lds_base}")
        for i in range(n):
            a(f"buffer_load_dwordx4 {voff}, {srd}, s53 offen {self.wflag} lds")
            if i < n - 1: a(f"s_add_u32 s53, s53, {step}\ns_add_u32 m0, m0, 1024")
    def tr_addr(self, dst, rowbytes, t0, t1):
        sh = rowbytes.bit_length() - 1
        self.a(f"""v_lshrrev_b32 {t0}, 4, v0
v_bfe_u32 {t1}, v0, 2, 2
v_lshl_add_u32 {t0}, {t0}, 3, {t1}
v_lshlrev_b32 {t0}, {sh}, {t0}
v_and_b32 {t1}, 3, v0
v_lshl_add_u32 {dst}, {t1}, 3, {t0}""")
    def tr_frags(self, base_reg, vaddr, lds_base, rowbytes, nsteps, ntiles):
        for s in range(nsteps):
            for t in range(ntiles):
                r = base_reg + 4 * (s * ntiles + t)
                for h in range(2):
                    off = lds_base + (32 * s + 4 * h) * rowbytes + t * 32
                    self.a(f"ds_read_b64_tr_b16 v[{r+2*h}:{r+2*h+1}], {vaddr} offset:{off}")
    def mfma_tiles(self, dbase, abase, bbase, nsteps, ntiles, zero_first=True):
        for s in range(nsteps):
            for t in range(ntiles):
                d = f"v[{dbase+4*t}:{dbase+4*t+3}]"
                c = "0" if (s == 0 and zero_first) else d
                b = bbase + 4 * (s * ntiles + t)
                self.a(f"v_mfma_f32_16x16x32_bf16 {d}, v[{abase+4*s}:{abase+4*s+3}], v[{b}:{b+3}], {c}")

    def build(self):
        a = self.a; W = self.W
        for l in HEADER.strip("\n").split("\n"): a.raw(l)
        a.raw(f"; @launch grid=(256,1,1) block=(768,1,1) lds={max(STG + 65536, OVF + 8192 * self.novf)}")
        a.raw('.amdgcn_target "amdgcn-amd-amdhsa--gfx950"')
        a.raw(".text"); a.raw(f".globl {NAME}"); a.raw(".p2align 8"); a.raw(f".type {NAME},@function"); a.raw(f"{NAME}:")
        a("s_cmp_ge_u32 s2, 256\ns_cbranch_scc1 L_exit")
        self.stamp(0)
        if self.diag: a("s_memrealtime s[100:101]")
        a("""s_load_dwordx16 s[8:23], s[0:1], 0
s_load_dwordx8 s[24:31], s[0:1], 64
s_load_dwordx2 s[32:33], s[0:1], 96
v_lshrrev_b32 v1, 6, v0
v_and_b32 v0, 63, v0
v_readfirstlane_b32 s3, v1""")
        if self.prefetch:
            a(f"s_cmp_lg_u32 s3, 11\ns_cbranch_scc1 L_nopf")
            if self.pfmax < 256: a(f"s_cmp_ge_u32 s2, {self.pfmax}\ns_cbranch_scc1 L_nopf")
            a("s_getpc_b64 s[52:53]")
            a.label("L_pc")
            a(f"s_sub_u32 s52, s52, L_pc-{NAME}\ns_subb_u32 s53, s53, 0\nv_lshlrev_b32 v2, 7, v0")
            for i in range(CODE_PAD // 8192):
                a(f"global_load_dword v{4+i}, v2, s[52:53]")
                if i < CODE_PAD // 8192 - 1: a("v_add_u32 v2, 0x2000, v2")
            a.label("L_nopf")
        a("s_cmp_ge_u32 s3, 8\ns_cbranch_scc1 L_ctl")
        self.stream_wave()
        a.label("L_ctl")
        self.ctl_waves()
        a.label("L_exit")
        a("s_endpgm")
        if self.prefetch: a.raw(f".fill ({CODE_PAD} - (. - {NAME})) / 4, 4, 0xbf800000")
        a.raw('.section .rodata,"a"'); a.raw(".p2align 6"); a.raw(f".amdhsa_kernel {NAME}")
        for l in ["  .amdhsa_next_free_vgpr 168", "  .amdhsa_next_free_sgpr 102", "  .amdhsa_accum_offset 168",
                  "  .amdhsa_group_segment_fixed_size 0", "  .amdhsa_kernarg_size 104", "  .amdhsa_user_sgpr_count 2",
                  "  .amdhsa_user_sgpr_kernarg_segment_ptr 1", "  .amdhsa_system_sgpr_workgroup_id_x 1", ".end_amdhsa_kernel"]:
            a.raw(l)
        return a.text()

    def stream_wave(self):
        a = self.a; W = self.W; kv = self.kv; n = self.novf
        ring = lambda j: RING + 4 * j
        a("""s_lshl_b32 s52, s2, 3
s_add_u32 s52, s52, s3
s_lshl_b32 s52, s52, 15
v_lshlrev_b32 v1, 4, v0
s_lshl_b32 s54, s3, 2
s_add_u32 s54, s54, s2
s_and_b32 s54, s54, 31
s_lshl_b32 s54, s54, 10
s_waitcnt lgkmcnt(0)""")
        if "karg" in self.exp: self.stamp(9)
        self.srd(SRD_A, S_K, 32768, "s52")
        if self.b0: a("s_barrier")
        st = dict(issued=0, known=-1)
        def issue():
            i = st["issued"]
            if i < 32:
                r = ring(i); a(f"buffer_load_dwordx4 v[{r}:{r+3}], v1, {SRD_A}, s54 offen {kv}")
            elif i < 32 + n:
                a(f"buffer_load_dwordx4 v1, {SRD_B}, s54 offen {kv} lds")
            else:
                r = ring(i - 32 - n); a(f"buffer_load_dwordx4 v[{r}:{r+3}], v1, {SRD_B}, s54 offen {kv}")
            a("s_add_u32 s54, s54, 1024\ns_and_b32 s54, s54, 0x7fff")
            if 32 <= i < 31 + n: a("s_add_u32 m0, m0, 1024")
            st["issued"] = i + 1
        def tick():
            i = st["issued"]
            Wc = W if i < 32 + n else (self.Wv if i < self.jw else self.Wz)
            if i >= Wc and st["known"] < i - Wc:
                a(f"s_waitcnt vmcnt({Wc-1})"); st["known"] = i - Wc
            issue()
        def need(idx):
            if st["known"] < idx:
                a(f"s_waitcnt vmcnt({st['issued'] - 1 - idx})"); st["known"] = idx
        for j in range(W): issue()
        a(f"s_load_dwordx2 s[34:35], s[{S_WS}:{S_WS+1}], 0")
        self.srd(SRD_B, S_V, 32768, "s52")
        self.srd(SRD_WS, S_WS, 0x200000 if self.stamps else 0x100000)
        self.consts()
        if n:
            a(f"s_mul_i32 s57, s3, {n*1024}\ns_add_u32 s57, s57, {OVF}\ns_mov_b32 m0, s57\nv_add_u32 v3, s57, v1")
        while st["issued"] < 32 + n:
            j = st["issued"]
            tick()
            if j == W: self.stamp(11)
            if j == W + 1:
                a("s_waitcnt lgkmcnt(0)"); self.epoch()
        self.stamp(1)
        if self.stamps: a(f"s_mov_b32 s{STAMP0+12}, 0\ns_mov_b32 s{STAMP0+13}, 0")
        a("v_and_b32 v2, 15, v0\nv_lshlrev_b32 v2, 4, v2")
        a("s_barrier")
        self.stamp(2)
        a(f"ds_read_b128 v[4:7], v2 offset:{QBUF}\ns_waitcnt lgkmcnt(0)")
        if self.prio:
            Lp = self.lab("pr"); a(f"s_cmp_ge_u32 s3, 4\ns_cbranch_scc0 {Lp}\ns_setprio 1"); a.label(Lp)
        t = [10, 11, 12, 13]; ra, rb = 14, 15; u = [16, 17, 18, 19]; x, y = 20, 21; S = [8, 9]
        def group(k):
            need(4 * k + 3)
            js = [4 * k + b for b in range(4)]
            for e in range(4):
                for b in range(4):
                    c = "0" if e == 0 else f"v{t[b]}"
                    a(f"v_dot2_f32_bf16 v{t[b]}, v{ring(js[b])+e}, v{4+e}, {c}")
            self.dpp("v_add_f32", f"v{ra}", f"v{t[0]}", f"v{t[0]}", "row_ror:8", bm="0x3")
            self.dpp("v_add_f32", f"v{rb}", f"v{t[2]}", f"v{t[2]}", "row_ror:8", bm="0x3")
            self.dpp("v_add_f32", f"v{ra}", f"v{t[1]}", f"v{t[1]}", "row_ror:8", bm="0xc")
            self.dpp("v_add_f32", f"v{rb}", f"v{t[3]}", f"v{t[3]}", "row_ror:8", bm="0xc")
            uk = u[k & 3]
            self.dpp("v_add_f32", f"v{uk}", f"v{ra}", f"v{ra}", "row_half_mirror", bm="0x5")
            self.dpp("v_add_f32", f"v{uk}", f"v{rb}", f"v{rb}", "row_half_mirror", bm="0xa")
            if (k & 3) == 3:
                def merge(dst, p, q, ctl, mask):
                    self.dpp("v_add_f32", f"v{x}", f"v{p}", f"v{p}", ctl)
                    self.dpp("v_add_f32", f"v{y}", f"v{q}", f"v{q}", ctl)
                    a(f"v_cndmask_b32 v{dst}, v{x}, v{y}, {mask}")
                merge(u[0], u[0], u[1], "quad_perm:[2,3,0,1]", M_B1)
                merge(u[2], u[2], u[3], "quad_perm:[2,3,0,1]", M_B1)
                merge(S[k >> 2], u[0], u[2], "quad_perm:[1,0,3,2]", M_B0)
        acc = list(range(10, 18)); un = list(range(18, 26)); pb = 26
        def softmax():
            if self.prio == 2: a("s_setprio 0")
            self.stamp(3)
            self.rbf2("v8", "v9", "v8", "v9", "v10")
            a(f"v_mul_f32 v8, {SCALE}, v8\nv_mul_f32 v9, {SCALE}, v9")
            self.rbf2("v8", "v9", "v8", "v9", "v10")
            a("v_max_f32 v10, v8, v9")
            self.wave_reduce_to_s("v_max_f32", "v10", "s55")
            a(f"""v_subrev_f32 v8, s55, v8
v_subrev_f32 v9, s55, v9
v_mul_f32 v8, {LOG2E}, v8
v_mul_f32 v9, {LOG2E}, v9
v_exp_f32 v8, v8
v_exp_f32 v9, v9
v_mov_b32 v11, s55
s_lshl_b32 s56, s3, 2
v_mov_b32 v12, s56
s_mov_b64 exec, 1
ds_write_b32 v12, v11 offset:{MBUF}
s_mov_b64 exec, -1
v_add_f32 v10, v8, v9""")
            self.wave_reduce_to_s("v_add_f32", "v10", "s56")
            for e in acc: a(f"v_mov_b32 v{e}, 0")
        def lane_of(j):
            jj = j & 15; ga_, b = jj >> 2, jj & 3
            return ((b & 1) << 3) | ((b >> 1) << 2) | ((ga_ & 1) << 1) | (ga_ >> 1)
        TQ = [28, 32]
        def lds_read(j):
            need(32 + j)
            r = TQ[j & 1]
            a(f"ds_read_b128 v[{r}:{r+3}], v3 offset:{1024*j}")
        def cu_max():
            L = self.lab("mx")
            a("v_mov_b32 v27, 0")
            a.label(L)
            a(f"""ds_read_b128 v[28:31], v27 offset:{MBUF}
ds_read_b128 v[32:35], v27 offset:{MBUF+16}
s_waitcnt lgkmcnt(0)
v_max3_u32 v36, v28, v29, v30
v_max3_u32 v36, v36, v31, v32
v_max3_u32 v36, v36, v33, v34
v_max_u32 v36, v36, v35
v_cmp_eq_u32 vcc, -1, v36
s_cbranch_vccz {L}_ok
s_cmp_eq_u32 {SPIN}, 0
s_cbranch_scc1 {L}_ok
s_sub_u32 {SPIN}, {SPIN}, 1
s_branch {L}""")
            a.label(L + "_ok")
            a(f"""v_max3_f32 v36, v28, v29, v30
v_max3_f32 v36, v36, v31, v32
v_max3_f32 v36, v36, v33, v34
v_max_f32 v36, v36, v35
v_sub_f32 v37, s55, v36
v_mul_f32 v37, {LOG2E}, v37
v_exp_f32 v37, v37""")
        def consume(j):
            if j < n:
                if j == 0: lds_read(0)
                a("s_waitcnt lgkmcnt(0)")
                if j + 1 < n: lds_read(j + 1)
                r = TQ[j & 1]
            else:
                need(32 + j)
                r = ring(j - n)
            if j == max(20, n):
                cu_max()
                a(f"""v_mov_b32 v38, 1
v_and_b32 v2, 15, v0
v_lshrrev_b32 v3, 4, v0
v_lshl_add_u32 v2, v2, 2, v3
v_lshlrev_b32 v2, 3, v2
s_lshl_b32 s57, s3, 9
v_add_u32 v2, s57, v2
s_lshl_b32 s57, s3, 2
v_mov_b32 v3, s57
v_mul_f32 v39, s56, v37
ds_write_b32 v3, v39 offset:{LBUF}
v_lshlrev_b32 v39, 3, v0
s_lshl_b32 s61, s2, 9
s_add_u32 s61, s61, {O_OFF}
s_lshl_b32 s62, s2, 3
s_add_u32 s62, s62, {ML_OFF}
s_lshl_b32 s63, s2, 2
s_add_u32 s63, s63, {GATE_OFF}
v_lshlrev_b32 v3, 10, v0""")
            if j == max(20, n, self.jt):
                a(f"ds_write_b32 v27, v38 offset:{TRIG}")
            a(f"v_mov_b32_dpp v{pb}, v{8 + (j >> 4)} row_newbcast:{lane_of(j)} row_mask:0xf bank_mask:0xf")
            for e in range(4):
                a(f"v_lshlrev_b32 v{un[2*e]}, 16, v{r+e}\nv_and_b32 v{un[2*e+1]}, {S_HI}, v{r+e}")
            for e in range(8):
                a(f"v_fmac_f32 v{acc[e]}, v{pb}, v{un[e]}")
        work = [("G", k, 30) for k in range(8)] + [("S", 0, 80)] + [("C", j, 20) for j in range(32)]
        groups_done = 0; consumed = 0
        def can_issue():
            i = st["issued"]
            if i >= 64: return False
            slot = i - 32 - n
            return slot < 0 or groups_done > slot // 4
        BUDGET = self.budget
        while work:
            issued_now = False
            if can_issue():
                tick(); issued_now = True
                if st["issued"] == 64 and self.early:
                    assert consumed > max(20, n)
                    a(f"s_mov_b64 exec, 1\nds_add_u32 v27, v38 offset:{ISSUED}\ns_mov_b64 exec, -1")
            cost = 0
            while work and (cost < BUDGET or not can_issue()):
                kind, k, c = work[0]
                if kind == "C":
                    req = 32 + min(k + 1, n - 1) if k < n else 32 + k
                    if can_issue() and st["known"] < req: break
                work.pop(0); cost += c
                if kind == "G": group(k); groups_done = k + 1
                elif kind == "S": softmax()
                else: consume(k); consumed = k + 1
        assert st["issued"] == 64
        self.stamp(4)
        for e in range(4): a(f"v_permlane32_swap_b32 v{acc[e]}, v{acc[e+4]}")
        for e in range(4): a(f"v_add_f32 v{acc[e]}, v{acc[e]}, v{acc[e+4]}")
        for e in range(2): a(f"v_permlane16_swap_b32 v{acc[e]}, v{acc[e+2]}")
        for e in range(2): a(f"v_add_f32 v{acc[e]}, v{acc[e]}, v{acc[e+2]}")
        a(f"""v_mul_f32 v10, v10, v37
v_mul_f32 v11, v11, v37
v_mov_b32 v15, 1
ds_write_b64 v2, v[10:11] offset:{OBUF}
s_mov_b64 exec, 1
ds_add_rtn_u32 v15, v27, v15 offset:{CNT}
s_mov_b64 exec, -1
s_waitcnt lgkmcnt(0)
v_readfirstlane_b32 s57, v15""")
        self.stamp(5)
        a("s_cmp_lg_u32 s57, 7\ns_cbranch_scc1 L_s_pub_done")
        for w in range(8): a(f"ds_read_b64 v[{40+2*w}:{41+2*w}], v39 offset:{OBUF+512*w}")
        a(f"ds_read_b128 v[56:59], v27 offset:{LBUF}\nds_read_b128 v[60:63], v27 offset:{LBUF+16}\nv_mov_b32 v68, v36")
        a("s_waitcnt lgkmcnt(2)")
        a("""v_add_f32 v64, v40, v42
v_add_f32 v65, v41, v43
v_add_f32 v72, v44, v46
v_add_f32 v73, v45, v47
v_add_f32 v74, v48, v50
v_add_f32 v75, v49, v51
v_add_f32 v76, v52, v54
v_add_f32 v77, v53, v55
v_add_f32 v64, v64, v72
v_add_f32 v65, v65, v73
v_add_f32 v74, v74, v76
v_add_f32 v75, v75, v77
v_add_f32 v64, v64, v74
v_add_f32 v65, v65, v75""")
        a(f"buffer_store_dwordx2 v[64:65], v39, {SRD_WS}, s61 offen sc1")
        a("""s_waitcnt lgkmcnt(0)
v_add_f32 v56, v56, v57
v_add_f32 v58, v58, v59
v_add_f32 v60, v60, v61
v_add_f32 v62, v62, v63
v_add_f32 v56, v56, v58
v_add_f32 v60, v60, v62
v_add_f32 v69, v56, v60
s_mov_b64 exec, 1""")
        a(f"buffer_store_dwordx2 v[68:69], v27, {SRD_WS}, s62 offen sc1")
        if not self.wgate: a(f"s_mov_b64 exec, {(1 << self.rg) - 1}\nbuffer_store_dword v36, v3, {SRD_WS}, s63 offen sc1")
        a("s_mov_b64 exec, -1")
        if not self.early: a(f"v_mov_b32 v15, 8\nds_write_b32 v27, v15 offset:{ISSUED}")
        self.stamp(6)
        a.label("L_s_pub_done")
        self.role("L_s_exit", "L_s_exit", "L_s_ffn", tick=True)
        a.label("L_s_ffn")
        a("s_barrier")
        self.ffn_wave()
        a.label("L_s_exit")
        self.finish()

    def role(self, l_none, l_wo, l_ffn, tick=False):
        a = self.a
        self.lds_spin(ROLE, "v_cmp_ne_u32", "-1", 2 if tick else self.slR)
        a(f"""s_lshr_b32 s57, s2, 3
s_and_b32 s57, s57, 1
v_readfirstlane_b32 s56, v2
{"s_mov_b32 s%d, s56" % (STAMP0 + 22) if (self.stamps and tick) else ""}
{"s_mov_b32 s%d, 0" % (STAMP0 + 23) if (self.stamps and tick) else ""}
s_lshl_b32 s60, s57, 5
s_add_u32 s60, s60, s56
s_cmp_lt_u32 s56, 32
s_cbranch_scc1 {l_wo}
s_sub_u32 s60, 54, s57
s_cmp_ge_u32 s56, s60
s_cbranch_scc1 {l_none}
s_mul_i32 s60, s57, 22
s_add_u32 s60, s60, s56
s_sub_u32 s60, s60, 32
s_branch {l_ffn}""")

    def ffn_wave(self):
        a = self.a
        a(f"s_lshl_b32 s59, s3, 13\ns_add_u32 s59, s59, {STG}")
        a(f"""v_lshrrev_b32 v4, 4, v0
v_lshlrev_b32 v4, 3, v4
v_and_b32 v5, 7, v0
v_add_u32 v4, v4, v5
v_mov_b32 v30, v4
v_bfe_u32 v5, v0, 3, 1
v_lshl_add_u32 v4, v5, 5, v4
s_lshl_b32 s61, s3, 6
v_add_u32 v5, s61, v4
v_lshlrev_b32 v5, 2, v5
v_lshlrev_b32 v30, 2, v30
v_lshlrev_b32 v8, 2, v4
s_lshl_b32 s61, s3, 8
v_add_u32 v8, s61, v8""")
        self.tr_addr("v6", 64, "v9", "v10"); a("v_add_u32 v6, s59, v6")
        self.tr_addr("v7", 128, "v9", "v10"); a("v_add_u32 v7, s59, v7")
        a(f"""v_and_b32 v31, 31, v0
v_lshlrev_b32 v31, 2, v31
s_lshl_b32 s61, s3, 7
v_add_u32 v31, s61, v31
s_lshl_b32 s61, s3, 3
v_mov_b32 v32, s61
v_and_b32 v33, 7, v0
v_lshlrev_b32 v33, 3, v33
v_mov_b32 v34, 0
v_lshrrev_b32 v35, 4, v0
s_lshl_b32 s61, s3, 2
v_add_u32 v35, s61, v35
v_mul_u32_u24 v35, {F_TILE}, v35
v_and_b32 v36, 15, v0
v_lshl_add_u32 v35, v36, 2, v35
s_lshl_b32 s63, s60, 6
s_add_u32 s63, s63, {F_OFF}
s_and_b32 s52, s60, {self.ry - 1}
s_lshl_b32 s52, s52, 14
s_add_u32 s52, s52, {Y_OFF}
s_add_u32 s53, s52, 4096
s_add_u32 s54, s52, 8192
s_add_u32 s55, s52, 12288
s_barrier""")
        self.stamp(7)
        a(f"ds_read_b32 v40, v5 offset:{XN}\nds_read_b32 v41, v5 offset:{GA}\nds_read_b32 v42, v5 offset:{SB}\nds_read_b32 v43, v5 offset:{CB1}")
        B1f, B2f = 64, 80
        self.tr_frags(B1f, "v6", 0, 64, 2, 2)
        for t in range(4):
            for h in range(2):
                a(f"ds_read_b64_tr_b16 v[{B2f+4*t+2*h}:{B2f+4*t+2*h+1}], v7 offset:{4096 + 4*h*128 + t*32}")
        a("s_waitcnt lgkmcnt(0)")
        if self.wgate: a("s_barrier")
        if self.slY: a(f"s_sleep {self.slY}")
        r = 96
        self.poll3([(f"buffer_load_dword v{r+i}, v8, {SRD_WS}, s{52 + (i >> 1)} offen offset:{2048*(i&1)} sc1", [r + i], None) for i in range(8)], rslot=1, depth=self.d2, stag=self.stag2, sync_first=self.sf2)
        a(f"""v_add_f32 v10, v{r}, v{r+1}
v_add_f32 v11, v{r+2}, v{r+3}
v_add_f32 v12, v{r+4}, v{r+5}
v_add_f32 v13, v{r+6}, v{r+7}
v_add_f32 v10, v10, v11
v_add_f32 v12, v12, v13
v_add_f32 v10, v10, v12""")
        self.stamp(8)
        self.rbf("v10", "v10")
        a("v_mul_f32 v10, v41, v10"); self.rbf("v10", "v10")
        a("v_add_f32 v10, v40, v10"); self.rbf("v10", "v10")
        a(f"v_readfirstlane_b32 s61, v10\nds_write_b32 v5, v10 offset:{X1N}\nv_subrev_f32 v12, s61, v10\nv_mul_f32 v13, v12, v12")
        for k in (8, 4, 2, 1):
            self.dpp("v_add_f32", "v12", "v12", "v12", f"row_ror:{k}"); self.dpp("v_add_f32", "v13", "v13", "v13", f"row_ror:{k}")
        self.dpp("v_add_f32", "v12", "v12", "v12", "row_bcast:15", rm="0xa"); self.dpp("v_add_f32", "v13", "v13", "v13", "row_bcast:15", rm="0xa")
        self.dpp("v_add_f32", "v12", "v12", "v12", "row_bcast:31", rm="0xc"); self.dpp("v_add_f32", "v13", "v13", "v13", "row_bcast:31", rm="0xc")
        a(f"""v_mul_f32 v14, 0x3c800000, v12
v_fma_f32 v15, -v14, v12, v13
v_add_f32 v14, s61, v14
s_mov_b32 exec_lo, 0
s_mov_b32 exec_hi, 0x80000000
ds_write_b64 v32, v[14:15] offset:{STAT}
s_mov_b64 exec, -1
s_waitcnt lgkmcnt(0)
s_barrier""")
        a(f"""ds_read_b64 v[18:19], v33 offset:{STAT}
ds_read_b32 v20, v34 offset:{STAT}
s_waitcnt lgkmcnt(0)
v_sub_f32 v18, v18, v20
v_mul_f32 v21, v18, v18
v_fmac_f32 v19, 0x42800000, v21""")
        for ctl in ("row_half_mirror", "quad_perm:[2,3,0,1]", "quad_perm:[1,0,3,2]"):
            self.dpp("v_add_f32", "v18", "v18", "v18", ctl); self.dpp("v_add_f32", "v19", "v19", "v19", ctl)
        a("""v_mul_f32 v21, v18, v18
v_fmac_f32 v20, 0x3e000000, v18
v_fmac_f32 v19, 0xc1000000, v21
v_mul_f32 v19, 0x3b000000, v19
v_max_f32 v19, 0, v19""")
        self.ln_tail1("v20", "v19", "v10", "v22", "v21", "v24", "v25")
        a("v_mul_f32 v22, v22, v43"); self.rbf("v22", "v22")
        a("v_add_f32 v22, v22, v42")
        a("v_mov_b32_dpp v23, v22 quad_perm:[1,1,3,3] row_mask:0xf bank_mask:0xf\nv_cvt_pk_bf16_f32 v24, v22, v23")
        for k in range(2):
            for q in range(4): a(f"v_mov_b32_dpp v{112+4*k+q}, v24 row_newbcast:{8*k+2*q} row_mask:0xf bank_mask:0xf")
        self.mfma_tiles(120, 112, B1f, 2, 2)
        a(f"""v_cndmask_b32 v29, v120, v124, {M_G1}
s_mov_b32 exec_hi, 0
ds_write_b32 v31, v29 offset:{FP}
s_mov_b64 exec, -1
s_waitcnt lgkmcnt(0)
s_barrier""")
        for w in range(8): a(f"ds_read_b32 v{44+w}, v30 offset:{FP+128*w}")
        a("""s_waitcnt lgkmcnt(0)
v_add_f32 v44, v44, v45
v_add_f32 v46, v46, v47
v_add_f32 v48, v48, v49
v_add_f32 v50, v50, v51
v_add_f32 v44, v44, v46
v_add_f32 v48, v48, v50
v_add_f32 v44, v44, v48
v_max_f32 v44, 0, v44
v_mov_b32_dpp v45, v44 quad_perm:[1,1,3,3] row_mask:0xf bank_mask:0xf
v_cvt_pk_bf16_f32 v46, v44, v45""")
        for q in range(4): a(f"v_mov_b32_dpp v{112+q}, v46 row_newbcast:{2*q} row_mask:0xf bank_mask:0xf")
        self.mfma_tiles(120, 112, B2f, 1, 4)
        a(f"""v_cndmask_b32 v40, v120, v124, {M_G1}
v_cndmask_b32 v40, v40, v128, {M_G2}
v_cndmask_b32 v40, v40, v132, {M_G3}
buffer_store_dword v40, v35, {SRD_WS}, s63 offen sc1""")
        self.stamp(9)
        a("s_cmp_lg_u32 s3, 0\ns_cbranch_scc1 L_s_exit\ns_cmp_ge_u32 s60, 32\ns_cbranch_scc1 L_s_exit")
        a(f"""v_lshlrev_b32 v8, 3, v0
s_mul_i32 s61, s60, {F_TILE}
s_add_u32 s61, s61, {F_OFF}
v_and_b32 v9, 7, v0
s_lshl_b32 s62, s60, 6
v_lshl_add_u32 v9, v9, 3, s62
ds_read_b64 v[10:11], v9 offset:{X1N}
ds_read_b64 v[12:13], v9 offset:{GBN}
v_mov_b32 v58, 0
v_mov_b32 v59, 0
v_mov_b32 v74, 0
v_mov_b32 v75, 0
v_and_b32 v14, 7, v0
v_lshlrev_b32 v14, 2, v14
s_lshl_b32 s62, s60, 5
s_mov_b32 s44, s{S_OUT}
s_mov_b32 s45, s{S_OUT+1}
s_mov_b32 s46, 1024
s_mov_b32 s47, 0x20000""")
        if self.slF: a(f"s_sleep {self.slF}")
        r = 48
        self.poll3([(f"buffer_load_dwordx2 v[{r+2*i}:{r+2*i+1}], v8, {SRD_WS}, s61 offen offset:{512*i} sc1", [r + 2*i, r + 2*i + 1], None if i < 5 else "0xffffff") for i in range(6)], rslot=2, depth=self.d3, stag=self.stag3, sync_first=self.sf3)
        a(f"""v_add_f32 v80, v{r}, v{r+2}
v_add_f32 v81, v{r+1}, v{r+3}
v_add_f32 v82, v{r+4}, v{r+6}
v_add_f32 v83, v{r+5}, v{r+7}
v_add_f32 v84, v{r+8}, v{r+10}
v_add_f32 v85, v{r+9}, v{r+11}
v_add_f32 v80, v80, v82
v_add_f32 v81, v81, v83
v_add_f32 v80, v80, v84
v_add_f32 v81, v81, v85""")
        self.stamp(10)
        self.dpp("v_add_f32", "v80", "v80", "v80", "row_ror:8"); self.dpp("v_add_f32", "v81", "v81", "v81", "row_ror:8")
        a("v_mov_b32 v82, v80\nv_mov_b32 v83, v81\nv_permlane16_swap_b32 v80, v82\nv_permlane16_swap_b32 v81, v83\nv_add_f32 v80, v80, v82\nv_add_f32 v81, v81, v83")
        a("v_mov_b32 v82, v80\nv_mov_b32 v83, v81\nv_permlane32_swap_b32 v80, v82\nv_permlane32_swap_b32 v81, v83\nv_add_f32 v80, v80, v82\nv_add_f32 v81, v81, v83")
        a("s_waitcnt lgkmcnt(0)")
        self.rbf2("v80", "v81", "v80", "v81", "v82")
        a("v_mul_f32 v80, v12, v80\nv_mul_f32 v81, v13, v81")
        self.rbf2("v80", "v81", "v80", "v81", "v82")
        a(f"""v_add_f32 v80, v10, v80
v_add_f32 v81, v11, v81
v_cvt_pk_bf16_f32 v82, v80, v81
s_mov_b64 exec, 0xff
buffer_store_dword v82, v14, {SRD_A}, s62 offen""")
        if self.diag:
            Ld = self.lab("diag")
            a(f"s_cmp_lg_u32 s60, 0\ns_cbranch_scc1 L_s_exit\ns_mov_b64 exec, -1\ns_memrealtime s[4:5]\ns_mov_b32 s56, {RDY_OFF}\ns_mov_b32 s57, {RDY_OFF+2048}")
            a(f"buffer_load_dwordx4 v[100:103], v1, {SRD_WS}, s56 offen sc1\nbuffer_load_dwordx4 v[104:107], v1, {SRD_WS}, s56 offen offset:1024 sc1")
            a(f"buffer_load_dwordx4 v[108:111], v1, {SRD_WS}, s57 offen sc1\nbuffer_load_dwordx4 v[112:115], v1, {SRD_WS}, s57 offen offset:1024 sc1")
            a("s_waitcnt vmcnt(0) lgkmcnt(0)")
            for r in (100, 104, 108, 112): a(f"v_sub_u32 v{r}, s4, v{r}")
            a("v_max_u32 v116, v100, v104\nv_max3_u32 v116, v116, v108, v112\nv_min_u32 v117, v100, v104\nv_min3_u32 v117, v117, v108, v112")
            self.wave_reduce_to_s("v_max_u32", "v116", "s6"); self.wave_reduce_to_s("v_min_u32", "v117", "s7")
            if self.diag == 2: a("s_sub_u32 s6, s6, s7")
            a(f"s_min_u32 s6, s6, 10000\ns_mul_i32 s6, s6, {self.K}\ns_add_u32 s6, s6, s4")
            a.label(Ld)
            a(f"s_memrealtime s[4:5]\ns_waitcnt lgkmcnt(0)\ns_sub_u32 s7, s4, s6\ns_cmp_lt_i32 s7, 0\ns_cbranch_scc1 {Ld}")
        a(f"""s_cmp_lg_u32 s60, 0
s_cbranch_scc1 L_s_exit
s_mov_b64 exec, 1
v_mov_b32 v52, s34
v_mov_b32 v53, s35
v_mov_b32 v54, 0
buffer_store_dwordx2 v[52:53], v54, {SRD_WS}, 0 offen sc1""")

    def ln_tail1(self, mean, var, x, out, t0, sd, rs):
        a = self.a
        self.rbf2(mean, var, mean, var, t0)
        a(f"v_add_f32 {var}, 0x3727c5ac, {var}\nv_sub_f32 {out}, {x}, {mean}")
        self.rbf(var, var)
        a(f"v_sqrt_f32 {sd}, {var}")
        self.rbf(out, out)
        self.rbf(sd, sd)
        a(f"v_rcp_f32 {rs}, {sd}")
        a(f"v_mul_f32 {t0}, {out}, {rs}\nv_fma_f32 {out}, -{t0}, {sd}, {out}\nv_fma_f32 {out}, {out}, {rs}, {t0}")
        self.rbf(out, out)

    def layernorm_tail(self, mean, var, xs, outs, t0, sd, rs):
        a = self.a
        self.rbf2(mean, var, mean, var, t0)
        a(f"v_add_f32 {var}, 0x3727c5ac, {var}")
        self.rbf(var, var)
        a(f"v_sqrt_f32 {sd}, {var}")
        self.rbf(sd, sd)
        a(f"v_rcp_f32 {rs}, {sd}")
        for x, o in zip(xs, outs): a(f"v_sub_f32 {o}, {x}, {mean}")
        self.rbf2(outs[0], outs[1], outs[0], outs[1], t0)
        for o in outs:
            a(f"v_mul_f32 {t0}, {o}, {rs}\nv_fma_f32 {o}, -{t0}, {sd}, {o}\nv_fma_f32 {o}, {o}, {rs}, {t0}")
        self.rbf2(outs[0], outs[1], outs[0], outs[1], t0)

    def tile128x64_load(self, srd, voff, rowstride, lds_base, soff0):
        self.dma_tile(srd, voff, 16, 8 * rowstride, lds_base, soff0)

    def ctl_waves(self):
        a = self.a
        b0 = (lambda: a("s_barrier")) if self.b0 else (lambda: None)
        a("v_lshlrev_b32 v1, 4, v0\ns_sub_u32 s3, s3, 8")
        a(f"s_lshl_b32 s59, s3, 14\ns_add_u32 s59, s59, {STG}")
        a(f"s_lshl_b32 s58, s3, 8\ns_add_u32 s58, s58, {ABUF + 8*256}")
        a("s_cmp_eq_u32 s3, 1\ns_cbranch_scc1 L_c1")
        self.ctl_common()
        b0()
        a("s_cmp_eq_u32 s3, 0\ns_cbranch_scc1 L_c0")
        a("s_cmp_eq_u32 s3, 2\ns_cbranch_scc0 L_c3")
        a(f"v_mov_b32 v2, -1\nv_lshlrev_b32 v3, 2, v0\ns_mov_b64 exec, 0xff\nds_write_b32 v3, v2 offset:{MBUF}\ns_mov_b64 exec, 1\nv_mov_b32 v2, 0\nds_write_b32 v2, v2 offset:{CNT}\nds_write_b32 v2, v2 offset:{TRIG}\nds_write_b32 v2, v2 offset:{ISSUED}\nv_mov_b32 v3, -1\nds_write_b32 v2, v3 offset:{ROLE}\ns_mov_b64 exec, -1")
        self.clear_slots()
        a(f"s_cmp_lt_u32 s2, {G_COL}\ns_cbranch_scc1 L_c_b1\ns_cmp_ge_u32 s2, {G_COL_END}\ns_cbranch_scc1 L_c_b1")
        self.lds_spin(HINT, "v_cmp_eq_u32", T0, 16)
        if self.slC: a(f"s_sleep {self.slC}")
        self.collect()
        a("s_branch L_c_b1")
        a.label("L_c3")
        if self.touch:
            a(f"""v_and_b32 v2, 7, v0
s_lshl_b32 s52, s2, 3
v_add_u32 v2, s52, v2
v_lshlrev_b32 v2, 15, v2
global_load_dword v8, v2, s[{S_V}:{S_V+1}]""")
        a("s_branch L_c_b1")
        a.label("L_c1")
        self.c1()
        a.label("L_c0")
        self.c0()
        a.label("L_c_b1")
        a("s_waitcnt vmcnt(0) lgkmcnt(0)")
        self.epoch_once()
        self.stamp(7)
        a("s_barrier")
        a("s_cmp_eq_u32 s3, 3\ns_cbranch_scc0 L_c_b2")
        a(f"s_mov_b32 s56, {RDY_OFF}\ns_mov_b32 s57, {RDY_OFF + 2048}")
        def issue_r2():
            a(f"buffer_load_dwordx4 v[8:11], v1, {SRD_WS}, s56 offen sc1\nbuffer_load_dwordx4 v[12:15], v1, {SRD_WS}, s56 offen offset:1024 sc1")
            a(f"buffer_load_dwordx4 v[16:19], v1, {SRD_WS}, s57 offen sc1\nbuffer_load_dwordx4 v[20:23], v1, {SRD_WS}, s57 offen offset:1024 sc1")
        self.poll(issue_r2, [8, 12, 16, 20], sleep=16)
        self.lds_spin(TRIG, "v_cmp_ne_u32", "0", 8)
        a(f"""s_mov_b32 s44, s{S_DBG}
s_mov_b32 s45, s{S_DBG+1}
s_mov_b32 s46, 256
s_mov_b32 s47, 0x20000
s_lshr_b32 s57, s2, 3
s_and_b32 s57, s57, 1
s_lshl_b32 s57, s57, 7
v_mov_b32 v15, 1
v_mov_b32 v16, 0
s_mov_b64 exec, 1
buffer_atomic_add v15, v16, {SRD_A}, s57 offen sc0
s_waitcnt vmcnt(0)
v_and_b32 v15, 127, v15
ds_write_b32 v16, v15 offset:{ROLE}
s_mov_b64 exec, -1""")
        a.label("L_c_b2")
        a("s_waitcnt vmcnt(0) lgkmcnt(0)")
        self.role("L_c_fin", "L_c_wo", "L_c_ffn")
        a.label("L_c_fin")
        a("s_add_u32 s3, s3, 8")
        self.finish()
        a.label("L_c_ffn")
        self.ffn_weights()
        a.label("L_c_wo")
        self.wo_wave()

    def clear_slots(self):
        a = self.a
        a(f"""v_mov_b32 v8, -1
v_mov_b32 v9, -1
v_mov_b32 v10, -1
v_mov_b32 v11, -1
s_lshl_b32 s56, s2, 9
s_add_u32 s56, s56, {O_OFF}
s_lshl_b32 s57, s2, 3
s_add_u32 s57, s57, {ML_OFF}
v_mov_b32 v12, 0
s_mov_b32 exec_hi, 0
buffer_store_dwordx4 v[8:11], v1, {SRD_WS}, s56 offen sc1
s_mov_b64 exec, 1
buffer_store_dwordx2 v[8:9], v12, {SRD_WS}, s57 offen sc1
s_mov_b64 exec, -1""")
        a(f"s_lshl_b32 s56, s2, 2\ns_add_u32 s56, s56, {GATE_OFF}\nv_lshlrev_b32 v13, 10, v0\ns_mov_b64 exec, {(1 << self.rg) - 1}\nbuffer_store_dword v8, v13, {SRD_WS}, s56 offen sc1\ns_mov_b64 exec, -1")
        L1 = self.lab("clr"); L2 = self.lab("clr"); L3 = self.lab("clr")
        a(f"s_cmp_ge_u32 s2, 64\ns_cbranch_scc1 {L1}")
        a(f"s_lshl_b32 s56, s2, 8\ns_add_u32 s56, s56, {Y_OFF}\ns_mov_b64 exec, 0xffff")
        for r in range(self.ry):
            a(f"buffer_store_dwordx4 v[8:11], v1, {SRD_WS}, s56 offen sc1")
            if r < self.ry - 1: a("s_add_u32 s56, s56, 16384")
        a("s_mov_b64 exec, -1")
        a.label(L1)
        a(f"s_cmp_lt_u32 s2, {G_COL}\ns_cbranch_scc1 {L3}\ns_cmp_ge_u32 s2, {G_COL_END}\ns_cbranch_scc1 {L3}")
        a(f"s_sub_u32 s56, s2, {G_COL}\ns_lshl_b32 s56, s56, 7\ns_add_u32 s56, s56, {A2_OFF}\ns_mov_b64 exec, 0xff\nbuffer_store_dwordx4 v[8:11], v1, {SRD_WS}, s56 offen sc1\ns_mov_b64 exec, -1")
        a.label(L3)
        a(f"s_cmp_ge_u32 s2, 43\ns_cbranch_scc1 {L2}")
        a(f"""v_lshrrev_b32 v13, 2, v0
v_mul_u32_u24 v13, {F_TILE}, v13
v_and_b32 v14, 3, v0
v_lshl_add_u32 v13, v14, 4, v13
s_lshl_b32 s56, s2, 6
s_add_u32 s56, s56, {F_OFF}
s_add_u32 s57, s56, {16*F_TILE}
buffer_store_dwordx4 v[8:11], v13, {SRD_WS}, s56 offen sc1
buffer_store_dwordx4 v[8:11], v13, {SRD_WS}, s57 offen sc1""")
        a.label(L2)
        a("s_waitcnt vmcnt(0) lgkmcnt(0)")
        self.epoch_once()
        a(f"""v_mov_b32 v16, {"s100" if self.diag else "0"}
v_mov_b32 v17, 0
v_mov_b32 v18, {T0}
v_mov_b32 v19, {T1}
s_lshl_b32 s56, s2, 4
s_add_u32 s56, s56, {RDY_OFF}
s_mov_b64 exec, 1
buffer_store_dwordx4 v[16:19], v12, {SRD_WS}, s56 offen sc1
s_mov_b64 exec, -1""")

    def ffn_weights(self):
        a = self.a
        Lv = self.lab("vec")
        a("s_barrier")
        a(f"s_cmp_eq_u32 s3, 0\ns_cbranch_scc0 {Lv}")
        self.ffn_vectors()
        a.label(Lv)
        self.srd(SRD_A, S_W1, 512 * 2752)
        self.srd(SRD_B, S_W2, 1376 * 1024)
        a(f"""v_lshrrev_b32 v2, 2, v0
v_mul_u32_u24 v2, 2752, v2
v_and_b32 v3, 3, v0
v_lshl_add_u32 v2, v3, 4, v2
s_lshl_b32 s61, s60, 6
v_add_u32 v2, s61, v2
v_lshrrev_b32 v3, 3, v0
s_lshl_b32 s61, s60, 5
v_add_u32 v3, s61, v3
v_lshlrev_b32 v3, 10, v3
v_and_b32 v4, 7, v0
v_lshl_add_u32 v3, v4, 4, v3
s_lshl_b32 s61, s3, 14
s_add_u32 s61, s61, {STG}
s_mul_i32 s62, s3, {128*2752}
s_lshl_b32 s63, s3, 8""")
        a("s_mov_b32 m0, s61")
        for k in range(2):
            for i in range(4):
                a(f"buffer_load_dwordx4 v2, {SRD_A}, s62 offen {self.w1flag} lds\ns_add_u32 s62, s62, {16*2752}\ns_add_u32 m0, m0, 1024")
            a("s_mov_b32 s56, s63")
            for i in range(4):
                a(f"buffer_load_dwordx4 v3, {SRD_B}, s56 offen {self.wflag} lds\ns_add_u32 s56, s56, 8192")
                if not (k == 1 and i == 3): a("s_add_u32 m0, m0, 1024")
            a("s_add_u32 s63, s63, 128")
        Lg = self.lab("gate")
        if self.wgate:
            a("s_waitcnt vmcnt(0) lgkmcnt(0)\ns_barrier")
            a(f"s_cmp_eq_u32 s3, 3\ns_cbranch_scc0 L_c_fin")
            a(f"s_and_b32 s56, s60, {self.rg - 1}\ns_lshl_b32 s56, s56, 10\ns_add_u32 s56, s56, {GATE_OFF}")
            self.poll3([(f"buffer_load_dwordx4 v[8:11], v1, {SRD_WS}, s56 offen sc1", range(8, 12), None)], stag=4, sleep=self.slG, depth=self.dG)
            self.stamp(9)
            a("s_barrier")
            a("s_branch L_c_fin")
        else:
            a(f"s_cmp_eq_u32 s3, 3\ns_cbranch_scc0 {Lg}")
            a(f"s_waitcnt vmcnt(0)\ns_and_b32 s56, s60, {self.rg - 1}\ns_lshl_b32 s56, s56, 10\ns_add_u32 s56, s56, {GATE_OFF}")
            self.poll3([(f"buffer_load_dwordx4 v[8:11], v1, {SRD_WS}, s56 offen sc1", range(8, 12), None)], stag=4, sleep=self.slG, depth=self.dG)
            self.stamp(9)
            a.label(Lg)
            a("s_waitcnt vmcnt(0) lgkmcnt(0)\ns_barrier")
            a("s_branch L_c_fin")

    def ctl_common(self):
        a = self.a
        a("s_waitcnt lgkmcnt(0)")
        a(f"s_load_dwordx2 s[34:35], s[{S_WS}:{S_WS+1}], 0")
        self.srd(SRD_WS, S_WS, 0x200000 if self.stamps else 0x100000)
        self.consts()
        a("s_mov_b32 s75, 0")

    def collect(self):
        a = self.a
        a(f"s_sub_u32 s60, s2, {G_COL}\ns_lshl_b32 s56, s60, 11\ns_add_u32 s56, s56, {AP_OFF + G_A2 * 512}")
        a(f"s_lshl_b32 s57, s60, 7\ns_add_u32 s57, s57, {A2_OFF}")
        def issue():
            a(f"buffer_load_dwordx4 v[8:11], v1, {SRD_WS}, s56 offen sc1\nbuffer_load_dwordx4 v[12:15], v1, {SRD_WS}, s56 offen offset:1024 sc1")
        self.poll(issue, [8, 12], sleep=32)
        a("v_add_f32 v16, v8, v12\nv_add_f32 v17, v9, v13")
        self.xor32_add("v16", "v20"); self.xor32_add("v17", "v21")
        a(f"""v_cvt_pk_bf16_f32 v18, v16, v17
v_lshlrev_b32 v19, 2, v0
s_mov_b32 exec_hi, 0
buffer_store_dword v18, v19, {SRD_WS}, s57 offen sc1
s_mov_b64 exec, -1""")
        self.stamp(2)

    def epoch_once(self):
        a = self.a
        L = self.lab("ep")
        a(f"s_cmp_eq_u32 s75, 1\ns_cbranch_scc1 {L}")
        self.epoch()
        a("s_mov_b32 s75, 1")
        a.label(L)

    def c1(self):
        a = self.a
        a(f"s_mov_b32 s39, 0\ns_cmp_lt_u32 s2, {G_A2}\ns_cbranch_scc1 L_unit")
        self.ctl_common()
        if self.b0: a("s_barrier")
        a(f"s_cmp_ge_u32 s2, {G_WO}\ns_cbranch_scc1 L_c_b1")
        Lh = self.lab("hint")
        a("s_waitcnt lgkmcnt(0)")
        self.epoch_once()
        a("v_mov_b32 v9, 0")
        a.label(Lh)
        a(f"""ds_read_b32 v8, v9 offset:{HINT}
s_waitcnt lgkmcnt(0)
v_cmp_eq_u32 vcc, {T0}, v8
s_cbranch_vccnz {Lh}_ok
s_cmp_eq_u32 {SPIN}, 0
s_cbranch_scc1 {Lh}_ok
s_sub_u32 {SPIN}, {SPIN}, 1
s_sleep 8
s_branch {Lh}""")
        a.label(Lh + "_ok")
        a("s_mov_b32 s39, 1")
        a.label("L_unit")
        a("""s_lshr_b32 s61, s2, 2
s_lshl_b32 s61, s61, 7
s_and_b32 s60, s2, 3
s_lshl_b32 s60, s60, 7
v_lshrrev_b32 v4, 3, v0
v_mul_u32_u24 v4, 6144, v4
v_and_b32 v5, 7, v0
v_lshl_add_u32 v4, v5, 4, v4
v_add_u32 v4, s61, v4
v_lshlrev_b32 v5, 2, v0
s_lshl_b32 s56, s60, 1
s_mul_i32 s57, s60, 6144
s_waitcnt lgkmcnt(0)""")
        self.srd(SRD_A, S_WM, 512 * 6144)
        self.srd(SRD_B, S_C, 1024)
        a(f"buffer_load_dword v10, v5, {SRD_B}, s56 offen")
        self.dma_tile(SRD_A, "v4", 16, 8 * 6144, "s59", "s57")
        a("s_cmp_eq_u32 s39, 1\ns_cbranch_scc1 L_unit_go")
        if self.b0: a("s_barrier")
        self.ctl_common()
        a.label("L_unit_go")
        self.tr_addr("v6", 128, "v8", "v9"); a("v_add_u32 v6, s59, v6")
        a("v_lshrrev_b32 v7, 4, v0\nv_lshl_add_u32 v7, v7, 4, s58\nv_lshl_add_u32 v12, v0, 2, s58")
        a("s_waitcnt vmcnt(16)")
        a(f"v_lshlrev_b32 v8, 16, v10\nv_and_b32 v9, {S_HI}, v10")
        a(f"""v_mul_f32 v10, 0xbfb8aa3b, v8
v_mul_f32 v11, 0xbfb8aa3b, v9
v_exp_f32 v10, v10
v_exp_f32 v11, v11
v_add_f32 v10, 1.0, v10
v_add_f32 v11, 1.0, v11
v_min_f32 v10, 0x7f7fffff, v10
v_min_f32 v11, 0x7f7fffff, v11
v_rcp_f32 v13, v10
v_rcp_f32 v14, v11""")
        a("""v_mul_f32 v15, v8, v13
v_mul_f32 v16, v9, v14
v_fma_f32 v17, -v15, v10, v8
v_fma_f32 v18, -v16, v11, v9
v_fma_f32 v17, v17, v13, v15
v_fma_f32 v18, v18, v14, v16
v_cvt_pk_bf16_f32 v10, v17, v18
ds_write_b32 v12, v10
s_waitcnt lgkmcnt(0)""")
        for k in range(4): a(f"ds_read_b128 v[{108+4*k}:{111+4*k}], v7 offset:{64*k}")
        a("s_waitcnt vmcnt(0)")
        self.tr_frags(40, "v6", 0, 128, 4, 4)
        a("s_waitcnt lgkmcnt(0)")
        self.mfma_tiles(124, 108, 40, 4, 4)
        self.epoch_once()
        a(f"""s_lshl_b32 s63, s2, 9
s_add_u32 s63, s63, {AP_OFF}
v_cndmask_b32 v140, v124, v132, {M_G1}
v_cndmask_b32 v141, v128, v136, {M_G1}
v_mov_b32 v142, {T0}
v_mov_b32 v143, {T1}
s_mov_b32 exec_hi, 0
buffer_store_dwordx4 v[140:143], v1, {SRD_WS}, s63 offen sc1
s_mov_b64 exec, -1""")
        self.stamp(1)
        a("s_branch L_c_b1")

    def c0(self):
        a = self.a
        if "noc0" in self.exp: a("s_branch L_c_b1")
        a("s_lshr_b32 s60, s2, 3\ns_and_b32 s61, s2, 7")
        self.srd(SRD_A, S_WQ, 512 * 8192)
        self.srd(SRD_B, S_X, 1024)
        a("""v_lshrrev_b32 v4, 4, v0
s_lshl_b32 s56, s61, 6
v_add_u32 v4, s56, v4
v_lshlrev_b32 v4, 13, v4
v_and_b32 v5, 15, v0
v_lshl_add_u32 v4, v5, 4, v4
s_lshl_b32 s56, s60, 8
v_add_u32 v4, s56, v4""")
        a(f"buffer_load_dwordx4 v[24:27], v1, {SRD_B}, 0 offen")
        a("""v_bfe_u32 v6, v0, 4, 1
v_lshlrev_b32 v6, 5, v6
v_add_u32 v6, v6, v5
s_lshl_b32 s56, s61, 7
v_lshl_add_u32 v7, v6, 1, s56""")
        a(f"buffer_load_ushort v28, v7, {SRD_B}, 0 offen\nbuffer_load_ushort v29, v7, {SRD_B}, 0 offen offset:32")
        self.dma_tile(SRD_A, "v4", 16, 4 * 8192, "s59")
        a("s_waitcnt vmcnt(16)")
        self.stamp(1)
        for e in range(4): a(f"v_lshlrev_b32 v{8+2*e}, 16, v{24+e}\nv_and_b32 v{9+2*e}, {S_HI}, v{24+e}")
        a("""v_add_f32 v16, v8, v9
v_add_f32 v17, v10, v11
v_add_f32 v18, v12, v13
v_add_f32 v19, v14, v15
v_add_f32 v16, v16, v17
v_add_f32 v18, v18, v19
v_add_f32 v16, v16, v18""")
        self.wave_reduce_to_s("v_add_f32", "v16", "s56")
        a("v_mov_b32 v20, s56\nv_mul_f32 v20, 0x3b000000, v20")
        for e in range(8): a(f"v_sub_f32 v{8+e}, v{8+e}, v20")
        a("v_mul_f32 v16, v8, v8")
        for e in range(1, 8): a(f"v_fmac_f32 v16, v{8+e}, v{8+e}")
        self.wave_reduce_to_s("v_add_f32", "v16", "s56")
        a("v_mov_b32 v19, s56\nv_mul_f32 v19, 0x3b000000, v19")
        a("v_lshlrev_b32 v28, 16, v28\nv_lshlrev_b32 v29, 16, v29")
        self.layernorm_tail("v20", "v19", ["v28", "v29"], ["v30", "v31"], "v21", "v22", "v23")
        a("s_waitcnt lgkmcnt(0)")
        self.epoch(); a("s_mov_b32 s75, 1")
        self.tr_addr("v144", 256, "v8", "v9"); a("v_add_u32 v144, s59, v144")
        a("s_waitcnt vmcnt(0)")
        self.tr_frags(40, "v144", 0, 256, 2, 8)
        a(f"""v_lshrrev_b32 v8, 5, v0
v_lshlrev_b32 v8, 14, v8
v_and_b32 v9, 31, v0
v_lshl_add_u32 v8, v9, 4, v8
s_lshl_b32 s56, s61, 11
s_add_u32 s56, s56, {AP_OFF}
v_add_u32 v8, s56, v8
s_waitcnt lgkmcnt(0)""")
        self.stamp(2)
        G = [104, 108, 112, 116]
        if self.hintA:
            self.poll(lambda: a(f"buffer_load_dwordx4 v[116:119], v8, {SRD_WS}, 0 offen offset:1536 sc1"), [116], sleep=self.slA, pre=True)
        def issueA():
            for i in range(4): a(f"buffer_load_dwordx4 v[{G[i]}:{G[i]+3}], v8, {SRD_WS}, 0 offen offset:{512*i} sc1")
        self.poll(issueA, G, sleep=self.slA, pre=True, rslot=8)
        self.stamp(3)
        a(f"v_mov_b32 v8, {T0}\nv_mov_b32 v9, 0\nds_write_b32 v9, v8 offset:{HINT}")
        a("""v_add_f32 v8, v104, v108
v_add_f32 v9, v105, v109
v_add_f32 v10, v112, v116
v_add_f32 v11, v113, v117
v_add_f32 v8, v8, v10
v_add_f32 v9, v9, v11""")
        self.rbf2("v8", "v9", "v8", "v9", "v10")
        a("v_mov_b32 v10, v8\nv_mov_b32 v11, v9\nv_permlane32_swap_b32 v8, v10\nv_permlane32_swap_b32 v9, v11")
        a("v_add_f32 v10, 1.0, v10\nv_add_f32 v11, 1.0, v11")
        self.rbf2("v10", "v11", "v10", "v11", "v12")
        a("v_mul_f32 v10, v30, v10\nv_mul_f32 v11, v31, v11")
        self.rbf2("v10", "v11", "v10", "v11", "v12")
        a("v_add_f32 v10, v10, v8\nv_add_f32 v11, v11, v9\nv_cvt_pk_bf16_f32 v12, v10, v11")
        a("""v_lshl_add_u32 v13, v6, 1, s58
ds_write_b16 v13, v12
ds_write_b16_d16_hi v13, v12 offset:32
v_lshrrev_b32 v14, 4, v0
v_lshl_add_u32 v14, v14, 4, s58
s_waitcnt lgkmcnt(0)
ds_read_b128 v[136:139], v14
ds_read_b128 v[140:143], v14 offset:64
s_waitcnt lgkmcnt(0)""")
        self.mfma_tiles(104, 136, 40, 2, 8)
        a(f"""v_cndmask_b32 v8, v104, v112, {M_G1}
v_cndmask_b32 v9, v108, v116, {M_G1}
v_cndmask_b32 v8, v8, v120, {M_G2}
v_cndmask_b32 v9, v9, v124, {M_G2}
v_cndmask_b32 v8, v8, v128, {M_G3}
v_cndmask_b32 v9, v9, v132, {M_G3}
v_mov_b32 v10, {T0}
v_mov_b32 v11, {T1}
s_lshl_b32 s56, s2, 10
s_add_u32 s56, s56, {B_OFF}
buffer_store_dwordx4 v[8:11], v1, {SRD_WS}, s56 offen sc1""")
        self.stamp(4)
        a(f"s_lshl_b32 s56, s60, 13\ns_add_u32 s56, s56, {B_OFF}\ns_add_u32 s57, s56, 4096")
        G = [104 + 4 * i for i in range(8)]
        if self.hintB:
            a("v_and_b32 v15, 7, v0\nv_lshlrev_b32 v15, 10, v15\nv_add_u32 v15, 1008, v15")
            self.poll(lambda: a(f"buffer_load_dwordx4 v[104:107], v15, {SRD_WS}, s56 offen sc1"), [104], sleep=self.slB, pre=True)
        def issueB():
            for i in range(8):
                a(f"buffer_load_dwordx4 v[{G[i]}:{G[i]+3}], v1, {SRD_WS}, {'s56' if i < 4 else 's57'} offen offset:{1024*(i&3)} sc1")
        self.poll(issueB, G, sleep=self.slB, pre=True, rslot=9)
        self.stamp(5)
        a("""v_add_f32 v8, v104, v108
v_add_f32 v9, v105, v109
v_add_f32 v10, v112, v116
v_add_f32 v11, v113, v117
v_add_f32 v12, v120, v124
v_add_f32 v13, v121, v125
v_add_f32 v14, v128, v132
v_add_f32 v15, v129, v133
v_add_f32 v8, v8, v10
v_add_f32 v9, v9, v11
v_add_f32 v12, v12, v14
v_add_f32 v13, v13, v15
v_add_f32 v8, v8, v12
v_add_f32 v9, v9, v13
v_cvt_pk_bf16_f32 v8, v8, v9""")
        a(f"""v_lshrrev_b32 v9, 4, v0
v_lshlrev_b32 v9, 5, v9
v_add_u32 v9, v9, v5
v_lshlrev_b32 v9, 1, v9
ds_write_b16 v9, v8 offset:{QBUF}
ds_write_b16_d16_hi v9, v8 offset:{QBUF+32}""")
        self.stamp(6)

    def ffn_vectors(self):
        a = self.a
        self.srd(SRD_B, S_X, 1024)
        a(f"buffer_load_dwordx4 v[104:107], v1, {SRD_B}, 0 offen\ns_mov_b32 s56, {A2_OFF}")
        self.poll3([(f"buffer_load_dwordx4 v[{40+4*k}:{43+4*k}], v1, {SRD_WS}, s56 offen offset:{1024*k} sc1", range(40 + 4*k, 44 + 4*k), None) for k in range(4)], stag=4, sleep=4, mask0=8)
        a(f"""v_lshrrev_b32 v5, 3, v0
v_lshlrev_b32 v5, 6, v5
v_bfe_u32 v6, v0, 2, 1
v_lshl_add_u32 v5, v6, 5, v5
v_and_b32 v6, 3, v0
v_lshl_add_u32 v5, v6, 2, v5
v_lshlrev_b32 v5, 2, v5
v_lshlrev_b32 v9, 5, v0
s_waitcnt vmcnt(0)""")
        for e in range(4): a(f"v_lshlrev_b32 v{108+2*e}, 16, v{104+e}\nv_and_b32 v{109+2*e}, {S_HI}, v{104+e}")
        a(f"ds_write_b128 v9, v[108:111] offset:{XN}\nds_write_b128 v9, v[112:115] offset:{XN+16}")
        for k in range(4):
            r = 40 + 4 * k; lo = 120 + 8 * k; hi = lo + 4
            for e in range(4): a(f"v_lshlrev_b32 v{lo+e}, 16, v{r+e}\nv_and_b32 v{hi+e}, {S_HI}, v{r+e}")
            if k == 2:
                for e in range(8): a(f"v_add_f32 v{lo+e}, 1.0, v{lo+e}")
                for e in range(0, 8, 2): self.rbf2(f"v{lo+e}", f"v{lo+e+1}", f"v{lo+e}", f"v{lo+e+1}", "v10")
            base = [GA, SB, CB1, GBN][k]
            a(f"ds_write_b128 v5, v[{lo}:{lo+3}] offset:{base}\nds_write_b128 v5, v[{hi}:{hi+3}] offset:{base+64}")

    def wo_wave(self):
        a = self.a
        if "wod" in self.exp: self.stamp(3)
        a("s_lshr_b32 s61, s60, 3\ns_and_b32 s62, s60, 7")
        a("s_lshl_b32 s63, s61, 2\ns_add_u32 s63, s63, s3")
        a("v_and_b32 v7, 7, v0")
        self.srd(SRD_A, S_WO, 4096 * 1024)
        a("""v_lshrrev_b32 v4, 3, v0
v_lshlrev_b32 v4, 10, v4
v_and_b32 v5, 7, v0
v_lshl_add_u32 v4, v5, 4, v4
s_lshl_b32 s56, s62, 7
v_add_u32 v4, s56, v4
s_lshl_b32 s54, s63, 17""")
        self.tr_addr("v6", 128, "v8", "v9"); a("v_add_u32 v6, s59, v6")
        a(f"""v_lshlrev_b32 v7, 3, v7
s_lshl_b32 s56, s63, 6
s_add_u32 s56, s56, {ML_OFF}
s_lshl_b32 s57, s63, 12
s_add_u32 s57, s57, {O_OFF}
v_bfe_u32 v3, v0, 2, 2
v_lshlrev_b32 v3, 4, v3
v_lshrrev_b32 v5, 4, v0
v_lshl_add_u32 v3, v5, 2, v3
v_and_b32 v5, 3, v0
v_add_u32 v3, v3, v5
v_lshlrev_b32 v3, 3, v3
v_lshlrev_b32 v150, 2, v0
s_lshl_b32 s55, s3, 8
v_add_u32 v151, s55, v150
s_lshl_b32 s55, s60, 8
s_add_u32 s55, s55, {Y_OFF}""")
        self.lds_spin(ISSUED, "v_cmp_eq_u32", "8", 1, reg="v2", addr="v5")
        if "wod" in self.exp: self.stamp(4)
        self.dma_tile(SRD_A, "v4", 16, 8192, "s59", "s54")
        self.stamp(8)
        P = [8, 10, 12, 14, 16, 18, 20, 22]
        items = [(f"buffer_load_dwordx2 v[24:25], v7, {SRD_WS}, s56 offen sc1", [24, 25], None)] + \
                [(f"buffer_load_dwordx2 v[{P[i]}:{P[i]+1}], v3, {SRD_WS}, s57 offen offset:{512*i} sc1", [P[i], P[i] + 1], None) for i in range(8)]
        for txt, regs, m0 in items: a(txt)
        a("s_waitcnt vmcnt(9)")
        self.stamp(9)
        self.tr_frags(40, "v6", 0, 128, 4, 4)
        a("s_waitcnt vmcnt(0)")
        if self.keepm: self.p3_check(items, 8)
        else: self.sentcheck([r for it in items for r in it[1]], "v2")
        Lg = self.lab("gate")
        a(f"s_cbranch_vccz {Lg}_all")
        a.label(Lg)
        a(f"""buffer_load_dwordx2 v[24:25], v7, {SRD_WS}, s56 offen sc1
s_waitcnt vmcnt(0)
v_max_u32 v2, v24, v25
v_cmp_eq_u32 vcc, -1, v2
s_and_b32 s52, vcc_lo, 0xff
s_bcnt1_i32_b32 s52, s52
s_cmp_le_u32 s52, {self.thr}
s_cbranch_scc1 {Lg}_ok
s_cmp_eq_u32 {SPIN}, 0
s_cbranch_scc1 {Lg}_ok
s_sub_u32 {SPIN}, {SPIN}, 1
s_sleep {self.slW}
s_branch {Lg}""")
        a.label(Lg + "_ok")
        self.poll3(items, rslot=2, mask0=8, init=not self.keepm, sync_first=self.keepm)
        a.label(Lg + "_all")
        if self.wgate:
            a(f"s_lshl_b32 s52, s60, 2\ns_add_u32 s52, s52, s3\ns_lshl_b32 s52, s52, 2\ns_add_u32 s52, s52, {GATE_OFF}\nv_lshlrev_b32 v159, 10, v0\ns_mov_b64 exec, {(1 << self.rg) - 1}\nbuffer_store_dword v24, v159, {SRD_WS}, s52 offen sc1\ns_mov_b64 exec, -1")
        a("s_waitcnt lgkmcnt(0)")
        self.stamp(6)
        m, l = "v24", "v25"
        a(f"v_mov_b32 v144, {m}")
        for ctl in ("row_half_mirror", "quad_perm:[2,3,0,1]", "quad_perm:[1,0,3,2]"): self.dpp("v_max_f32", "v144", "v144", "v144", ctl)
        a(f"v_sub_f32 v145, {m}, v144\nv_mov_b32 v152, 0\nv_mul_f32 v145, {LOG2E}, v145\nv_mov_b32 v153, 0\nv_exp_f32 v145, v145\ns_nop 0\nv_mul_f32 v146, v145, {l}")
        chain = [("row_half_mirror"), ("quad_perm:[2,3,0,1]"), ("quad_perm:[1,0,3,2]")]
        for j in range(8):
            a(f"v_fmac_f32_dpp v152, v145, v{P[j]} row_newbcast:{j} row_mask:0xf bank_mask:0xf")
            if j < 3: self.dpp("v_add_f32", "v146", "v146", "v146", chain[j])
            if j == 4: a("v_rcp_f32 v147, v146")
            a(f"v_fmac_f32_dpp v153, v145, v{P[j]+1} row_newbcast:{j} row_mask:0xf bank_mask:0xf")
        self.stamp(10)
        a("""v_mul_f32 v154, v152, v147
v_mul_f32 v155, v153, v147
v_fma_f32 v156, -v154, v146, v152
v_fma_f32 v157, -v155, v146, v153
v_fma_f32 v154, v156, v147, v154
v_fma_f32 v155, v157, v147, v155
v_cvt_pk_bf16_f32 v148, v154, v155""")
        bc = lambda k, q: a(f"v_mov_b32_dpp v{108+4*k+q}, v148 row_newbcast:{4*k+q} row_mask:0xf bank_mask:0xf")
        for q in range(4): bc(0, q)
        for q in range(4): bc(1, q)
        for k in range(4):
            for t in range(4):
                d = f"v[{124+4*t}:{127+4*t}]"; b = 40 + 4 * (k * 4 + t)
                a(f"v_mfma_f32_16x16x32_bf16 {d}, v[{108+4*k}:{111+4*k}], v[{b}:{b+3}], {'0' if k == 0 else d}")
                if k < 2: bc(k + 2, t)
        a(f"""v_cndmask_b32 v158, v124, v128, {M_G1}
v_cndmask_b32 v158, v158, v132, {M_G2}
v_cndmask_b32 v158, v158, v136, {M_G3}
ds_write_b32 v151, v158 offset:{YP}
s_waitcnt lgkmcnt(0)
s_barrier""")
        a("s_cmp_lg_u32 s3, 0\ns_cbranch_scc1 L_wo_done")
        for w in range(4): a(f"ds_read_b32 v{160+w}, v150 offset:{YP + 256*w}")
        a(f"""s_waitcnt lgkmcnt(0)
v_add_f32 v160, v160, v161
v_add_f32 v162, v162, v163
v_add_f32 v160, v160, v162
buffer_store_dword v160, v150, {SRD_WS}, s55 offen sc1""")
        for r in range(1, self.ry): a(f"s_add_u32 s55, s55, 16384\nbuffer_store_dword v160, v150, {SRD_WS}, s55 offen sc1")
        self.stamp(11)
        a.label("L_wo_done")
        a("s_add_u32 s3, s3, 8")
        self.finish()

def generate(**kw):
    g = Gen(**kw)
    return g.build()

if __name__ == "__main__":
    import argparse
    p = argparse.ArgumentParser()
    p.add_argument("-o", default="k.s"); p.add_argument("-W", type=int, default=3); p.add_argument("--stamps", action="store_true")
    p.add_argument("--nohintA", action="store_true"); p.add_argument("--nohintB", action="store_true"); p.add_argument("--noprefetch", action="store_true")
    p.add_argument("--dbg", type=int, default=0); p.add_argument("--w1flag", default="nt"); p.add_argument("--slR", type=int, default=2); p.add_argument("--slY", type=int, default=0); p.add_argument("--slF", type=int, default=0); p.add_argument("--sf3", action="store_true"); p.add_argument("--slC", type=int, default=64); p.add_argument("--prio", type=int, default=0); p.add_argument("--keepm", action="store_true"); p.add_argument("--sf2", action="store_true"); p.add_argument("--dG", type=int, default=2); p.add_argument("--rg", type=int, default=4); p.add_argument("--slW", type=int, default=2); p.add_argument("--wgate", action="store_true"); p.add_argument("--Wv", type=int, default=0); p.add_argument("--Wz", type=int, default=0); p.add_argument("--jw", type=int, default=64); p.add_argument("--diag", type=int, default=0); p.add_argument("--K", type=int, default=2); p.add_argument("--ry", type=int, default=1); p.add_argument("--d2", type=int, default=2); p.add_argument("--d3", type=int, default=2); p.add_argument("--stag2", type=int, default=8); p.add_argument("--stag3", type=int, default=8); p.add_argument("--slG", type=int, default=2); p.add_argument("--jt", type=int, default=26); p.add_argument("--early", action="store_true"); p.add_argument("--thr", type=int, default=2); p.add_argument("--single", action="store_true"); p.add_argument("--stag", type=int, default=8); p.add_argument("--novf", type=int, default=0); p.add_argument("--jb", type=int, default=31); p.add_argument("--budget", type=int, default=70); p.add_argument("--pfmax", type=int, default=256); p.add_argument("--nob0", action="store_true"); p.add_argument("--notouch", action="store_true"); p.add_argument("--exp", default=""); p.add_argument("--slA", type=int, default=4); p.add_argument("--slB", type=int, default=2); p.add_argument("--kv", default="nt"); p.add_argument("--wflag", default="nt")
    x = p.parse_args()
    open(x.o, "w").write(generate(W=x.W, stamps=x.stamps, hintA=not x.nohintA, hintB=not x.nohintB, prefetch=not x.noprefetch, kvflag=x.kv, wflag=x.wflag, exp=x.exp, slA=x.slA, slB=x.slB, pfmax=x.pfmax, b0=not x.nob0, touch=not x.notouch, dbg=x.dbg, novf=x.novf, jb=x.jb, budget=x.budget, single=x.single, stag=x.stag, thr=x.thr, jt=x.jt, early=x.early, ry=x.ry, d2=x.d2, d3=x.d3, stag2=x.stag2, stag3=x.stag3, slG=x.slG, diag=x.diag, K=x.K, Wv=x.Wv, Wz=x.Wz, jw=x.jw, wgate=x.wgate, dG=x.dG, rg=x.rg, slW=x.slW, keepm=x.keepm, sf2=x.sf2, prio=x.prio, slC=x.slC, slY=x.slY, slF=x.slF, sf3=x.sf3, w1flag=x.w1flag.replace('none', ''), slR=x.slR))
```
